```python
import torch

def _softmax(x, axis=-1):
    return torch.softmax(x, dim=axis)

def _gelu(x):
    return torch.nn.functional.gelu(x, approximate='tanh')

def _silu(x):
    return torch.nn.functional.silu(x)

def _sigmoid(x):
    return torch.sigmoid(x)

def _layernorm(x, axis=-1, eps=1e-05):
    m = x.mean(dim=axis, keepdim=True)
    v = x.var(dim=axis, keepdim=True, unbiased=False)
    return (x - m) / torch.sqrt(v + eps)

def _scatter_add(tgt, idx, src, axis=0):
    return tgt.clone().index_add_(axis, idx, src)

def _segment_sum(src, seg, n):
    out = torch.zeros((n,) + src.shape[1:], dtype=src.dtype)
    return out.index_add_(0, seg, src)

def _pad(x, pw):
    flat = tuple((v for pair in reversed(pw) for v in pair))
    return torch.nn.functional.pad(x, flat)
kernel_name = 'recurrent_scan__mha_block__mixer_gmlp__prompt'

def setup_inputs():

    _w = lambda a: (lambda t: t.to(torch.bfloat16) if t.is_floating_point() else t)(torch.as_tensor(a))

    def _A_setup():
        B, S, D, H = (1, 2048, 1024, 32)
        return {'x': _w((lambda *s: torch.randn(*s, dtype=torch.bfloat16) * 0.05)(B, S, D)), 'wqkv': _w((lambda *s: torch.randn(*s, dtype=torch.bfloat16) * 0.05)(D, 3 * D)), 'wo': _w((lambda *s: torch.randn(*s, dtype=torch.bfloat16) * 0.05)(D, D))}
    _A_in = _A_setup()

    def _B_setup():
        B, S, D, F = (1, 2048, 1024, 3584)
        Fh = F // 2
        return {'x': _w((lambda *s: torch.randn(*s, dtype=torch.bfloat16) * 0.05)(B, S, D)), 'w_in': _w((lambda *s: torch.randn(*s, dtype=torch.bfloat16) * 0.8)(D, 2 * Fh)), 'w_sp': _w(0.01 * (lambda *s: torch.randn(*s, dtype=torch.bfloat16) * 0.8)(S, S)), 'b_sp': _w(1.0 + 0.01 * (lambda *s: torch.randn(*s, dtype=torch.bfloat16) * 0.05)(S)), 'w_out': _w((lambda *s: torch.randn(*s, dtype=torch.bfloat16) * 0.05)(Fh, D))}
    _B_in = _B_setup()
    return {'A_x': _A_in['x'], 'A_wqkv': _A_in['wqkv'], 'A_wo': _A_in['wo'], 'B_x': _B_in['x'], 'B_w_in': _B_in['w_in'], 'B_w_sp': _B_in['w_sp'], 'B_b_sp': _B_in['b_sp'], 'B_w_out': _B_in['w_out']}

def reference(A_x, A_wqkv, A_wo, B_x, B_w_in, B_w_sp, B_b_sp, B_w_out):

    def _A_ref(x, wqkv, wo):
        B, S, D = x.shape
        H = 32
        Dh = D // H
        qkv = (lambda x, *d: x.permute(*d))((x @ wqkv).reshape(B, S, 3, H, Dh), 2, 0, 3, 1, 4)
        q, k, v = (qkv[0], qkv[1], qkv[2])
        scores = torch.einsum('bhqd,bhkd->bhqk', q, k) * Dh ** (-0.5)
        p = _softmax(scores, axis=-1)
        o = torch.einsum('bhqk,bhkd->bhqd', p, v)
        return (lambda x, *d: x.permute(*d))(o, 0, 2, 1, 3).reshape(B, S, D) @ wo

    def _B_ref(x, w_in, w_sp, b_sp, w_out):
        B, S, D = x.shape
        F = w_in.shape[-1]
        Fh = F // 2
        z = _gelu(torch.einsum('bsd,df->bsf', x, w_in))
        z1 = z[..., :Fh].clone()
        z2 = _layernorm(z[..., Fh:], axis=-1)
        g = torch.einsum('ts,bsf->btf', w_sp, z2) + b_sp[None, :, None]
        return torch.einsum('bsf,fd->bsd', z1 * g, w_out)
    x = A_x
    xn = _layernorm(x, axis=-1)
    s = _A_ref(xn, A_wqkv, A_wo)
    g = _silu(_B_ref(xn, B_w_in, B_w_sp, B_b_sp, B_w_out))
    return x + s * g
```

```python
import re

class Asm:
    def __init__(self):
        self.lines = []
        self._lab = 0
    def __call__(self, s=""):
        for l in s.split("\n"):
            l = l.strip()
            if l: self.lines.append(("    " + l) if not l.endswith(":") else l)
    def raw(self, s): self.lines.append(s)
    def label(self, stem="L"):
        self._lab += 1
        return f"{stem}_{self._lab}"
    def extend(self, lst):
        for x in lst: self(x)
    def text(self): return "\n".join(self.lines) + "\n"

def vr(b, n=1, p="v"):
    return f"{p}{b}" if n == 1 else f"{p}[{b}:{b+n-1}]"
def ar(b, n=1): return vr(b, n, "a")
def sr(b, n=1): return vr(b, n, "s")

def interleave(main, fill, start=0, per=None):
    out = []
    n = len(main) - start
    m = len(fill)
    k = 0
    for i, ins in enumerate(main):
        out.append(ins)
        if i >= start:
            tgt = ((i - start + 1) * m + n - 1) // n if per is None else min(m, (i - start + 1) * per)
            while k < tgt:
                f = fill[k]; k += 1
                if isinstance(f, str): out.append(f)
                else: out.extend(f)
    while k < m:
        f = fill[k]; k += 1
        if isinstance(f, str): out.append(f)
        else: out.extend(f)
    return out

_REG = re.compile(r"(?<![\w.])(-?\|?)(v|a|s)(\d+|\[(\d+):(\d+)\])")
def _regs(tok):
    tok = tok.strip()
    m = re.match(r"^-?\|?(?:abs\()?(v|a|s)(?:(\d+)|\[(\d+):(\d+)\])", tok)
    if m:
        p = m.group(1)
        if m.group(2) is not None: return [(p, int(m.group(2)))]
        return [(p, i) for i in range(int(m.group(3)), int(m.group(4)) + 1)]
    if tok in ("vcc", "exec"): return [(tok, 0), (tok, 1)]
    if tok in ("vcc_lo", "exec_lo"): return [(tok[:-3], 0)]
    if tok in ("vcc_hi", "exec_hi"): return [(tok[:-3], 1)]
    if tok == "m0": return [("m0", 0)]
    return []

TRANS = ("v_exp_f32", "v_log_f32", "v_rcp_f32", "v_rsq_f32", "v_sqrt_f32", "v_sin_f32", "v_cos_f32", "v_rcp_iflag_f32")
def parse(line):
    line = line.split(";")[0].strip()
    if not line or line.endswith(":") or line.startswith("."): return None
    parts = line.split(None, 1)
    op = parts[0]
    ops = []
    if len(parts) > 1:
        depth = 0; cur = ""
        for ch in parts[1]:
            if ch == "[": depth += 1
            if ch == "]": depth -= 1
            if ch == "," and depth == 0: ops.append(cur.strip()); cur = ""
            else: cur += ch
        ops.append(cur.strip())
    d = dict(op=op, ops=ops, line=line)
    base = re.sub(r"_(e32|e64|dpp|sdwa)$", "", op)
    isv = op.startswith("v_")
    d["mfma"] = op.startswith("v_mfma") or op.startswith("v_smfmac")
    d["valu"] = isv and not d["mfma"]
    d["trans"] = base in TRANS
    d["vmem"] = op.startswith(("buffer_", "global_", "flat_"))
    d["ds"] = op.startswith("ds_")
    d["salu"] = op.startswith("s_")
    d["dpp"] = ("quad_perm" in line or "row_" in line or "wave_" in line) and isv
    w, r = [], []
    first = lambda t: t.split()[0] if t else t
    if d["mfma"]:
        w = _regs(ops[0]); d["A"] = _regs(ops[1]); d["B"] = _regs(ops[2])
        if op.startswith("v_smfmac"):
            d["C"] = _regs(ops[0]); d["B"] = d["B"] + _regs(first(ops[3]))
        else: d["C"] = _regs(first(ops[3]))
        r = d["A"] + d["B"] + d["C"]
        d["passes"] = 8 if "32x32" in op else 4
    elif d["valu"]:
        if base.startswith("v_cmp"):
            w = _regs(ops[0]); r = sum((_regs(first(o)) for o in ops[1:]), [])
            if base.startswith("v_cmpx"): w += _regs("exec")
        elif base in ("v_permlane32_swap_b32", "v_permlane16_swap_b32", "v_swap_b32"):
            w = _regs(ops[0]) + _regs(first(ops[1])); r = list(w)
        elif base in ("v_add_co_u32", "v_sub_co_u32", "v_addc_co_u32", "v_subb_co_u32", "v_div_scale_f32", "v_mad_u64_u32"):
            w = _regs(ops[0]) + _regs(ops[1]); r = sum((_regs(first(o)) for o in ops[2:]), [])
        else:
            w = _regs(ops[0]); r = sum((_regs(first(o)) for o in ops[1:]), [])
            if base in ("v_fmac_f32", "v_pk_fmac_f16", "v_dot2c_f32_bf16", "v_writelane_b32") or d["dpp"]: r += w
            if base == "v_cndmask_b32" and len(ops) == 3: r += _regs("vcc")
            if base == "v_div_fmas_f32": r += _regs("vcc")
    elif d["vmem"]:
        lds = " lds" in line
        if "load" in op and not lds:
            w = _regs(ops[0]); r = sum((_regs(first(o)) for o in ops[1:]), [])
        elif "atomic" in op and "sc0" in line:
            w = _regs(ops[0]); r = sum((_regs(first(o)) for o in ops), [])
        else:
            r = sum((_regs(first(o)) for o in ops), [])
            if lds: r += [("m0", 0)]
        d["ldsdma"] = lds
        d["widestore"] = ("store" in op) and ("x3" in op or "x4" in op)
        if d["widestore"]:
            d["data"] = _regs(ops[0]) if op.startswith("buffer_") else _regs(ops[1])
    elif d["ds"]:
        if "read" in op or "bpermute" in op or "permute" in op or "swizzle" in op or "_rtn" in op:
            w = _regs(ops[0]); r = sum((_regs(first(o)) for o in ops[1:]), [])
        else: r = sum((_regs(first(o)) for o in ops), [])
    elif d["salu"]:
        if op.startswith(("s_cmp", "s_cbranch", "s_branch", "s_waitcnt", "s_barrier", "s_nop", "s_endpgm", "s_setprio", "s_sleep", "s_bitcmp")):
            r = sum((_regs(first(o)) for o in ops), [])
        else:
            w = _regs(ops[0]) if ops else []
            r = sum((_regs(first(o)) for o in ops[1:]), [])
            if "saveexec" in op: w += _regs("exec")
    d["w"], d["r"] = set(w), set(r)
    d["ws"] = (int(ops[0], 0) + 1) if op == "s_nop" else 1
    return d

def _need(p, c):
    n = 0
    vw = {x for x in p["w"] if x[0] in "va"}
    sw = {x for x in p["w"] if x[0] in ("s", "vcc")}
    if p["valu"]:
        if c["mfma"] and vw & c["r"]: n = max(n, 2)
        if c["mfma"] and any(x[0] == "exec" for x in p["w"]): n = max(n, 4)
        if c["valu"]:
            b = c["op"]
            if b.startswith(("v_readlane", "v_readfirstlane")) and vw & c["r"]: n = max(n, 1)
            if b.startswith("v_permlane") and vw & c["r"]: n = max(n, 2)
            if c["dpp"] and vw & c["r"]: n = max(n, 2)
            if sw & c["r"]:
                n = max(n, 4 if b.startswith(("v_readlane", "v_writelane", "v_div_fmas")) else 2)
            if p["trans"] and not c["trans"] and vw & c["r"]: n = max(n, 1)
            if any(x[0] == "exec" for x in p["w"]): n = max(n, 5 if c["dpp"] else 4 if b.startswith(("v_read", "v_write", "v_permlane")) else 0)
        if p["trans"] and (c["vmem"] or c["ds"]) and vw & c["r"]: n = max(n, 1)
        if c["vmem"] and sw & c["r"]: n = max(n, 5)
        if c["salu"] and sw & c["r"] and not c["op"].startswith("s_cbranch"): n = max(n, 1)
    if p["mfma"]:
        P = p["passes"]
        big = {4: 8, 8: 12}[P]
        if c["mfma"]:
            if vw & (set(c["A"]) | set(c["B"])): n = max(n, big)
            cc = set(c["C"])
            if vw & cc:
                if not (cc == vw and c["passes"] == P): n = max(n, {4: 6, 8: 10}[P])
            elif vw & c["w"]: n = max(n, {4: 6, 8: 10}[P])
        elif c["valu"]:
            if vw & (c["r"] | c["w"]): n = max(n, big)
            if set(p["C"]) & c["w"]: n = max(n, {4: 3, 8: 7}[P])
        elif c["vmem"] or c["ds"]:
            if vw & (c["r"] | c["w"]): n = max(n, big)
    if p["salu"] and ("m0", 0) in p["w"] and c.get("ldsdma"): n = max(n, 1)
    if p.get("widestore") and set(p["data"]) & c["w"]: n = max(n, 2 if c["valu"] else 1)
    return n

def check_hazards(text, maxd=14):
    raw = text.split("\n")
    ins, labels = [], {}
    for ln, l in enumerate(raw):
        s = l.split(";")[0].strip()
        if s.endswith(":") and not s.startswith("."): labels[s[:-1]] = len(ins); continue
        d = parse(l)
        if d: d["ln"] = ln + 1; ins.append(d)
    errs = []
    def succ(i):
        op = ins[i]["op"]
        if op == "s_endpgm": return []
        if op == "s_branch": return [labels[ins[i]["ops"][0]]]
        r = [i + 1] if i + 1 < len(ins) else []
        if op.startswith("s_cbranch"): r.append(labels[ins[i]["ops"][0]])
        return r
    for i, p in enumerate(ins):
        if not (p["valu"] or p["mfma"] or p.get("widestore") or ("m0", 0) in p["w"]): continue
        stack = [(j, 0) for j in succ(i)]
        seen = set()
        while stack:
            j, dist = stack.pop()
            if (j, dist) in seen or j >= len(ins): continue
            seen.add((j, dist))
            c = ins[j]
            n = _need(p, c)
            if n > dist: errs.append(f"line {p['ln']}: [{p['line']}] -> line {c['ln']}: [{c['line']}] needs {n}, has {dist}")
            nd = dist + c["ws"]
            if nd < maxd:
                for k in succ(j): stack.append((k, nd))
    return errs
```

```python
from asmlib import *
from layout import *
import struct

def f2u(x): return struct.unpack("<I", struct.pack("<f", x))[0]
def fhex(x): return hex(f2u(x))

KARG = dict(x=0, wqkv=8, wo=16, bx=24, win=32, wsp=40, bsp=48, wout=56, out=64, dbg=72, ws=80)

def kd(name, nv=256, ao=256, ns=96):
    return f""".section .rodata,"a"
.p2align 6
.amdhsa_kernel {name}
  .amdhsa_next_free_vgpr {nv}
  .amdhsa_next_free_sgpr {ns}
  .amdhsa_accum_offset {ao}
  .amdhsa_group_segment_fixed_size 0
  .amdhsa_kernarg_size 88
  .amdhsa_user_sgpr_count 2
  .amdhsa_user_sgpr_kernarg_segment_ptr 1
  .amdhsa_system_sgpr_workgroup_id_x 1
  .amdhsa_float_denorm_mode_32 3
.end_amdhsa_kernel
.text
"""

def kstart(A, name):
    A.raw(f".globl {name}\n.p2align 8\n.type {name},@function\n{name}:")

def srd(A, d, ptr, off, size):
    if off:
        A(f"s_add_u32 s{d}, s{ptr}, {hex(off)}")
        A(f"s_addc_u32 s{d+1}, s{ptr+1}, 0")
    else:
        A(f"s_mov_b32 s{d}, s{ptr}")
        A(f"s_mov_b32 s{d+1}, s{ptr+1}")
    A(f"s_mov_b32 s{d+2}, {hex(size)}")
    A(f"s_mov_b32 s{d+3}, 0x00020000")

def wave_sum(A, x, t):
    for mod in ("quad_perm:[1,0,3,2]", "quad_perm:[2,3,0,1]", "row_half_mirror", "row_mirror"):
        A("s_nop 1")
        A(f"v_add_f32_dpp v{x}, v{x}, v{x} {mod} row_mask:0xf bank_mask:0xf")
    for sw in ("v_permlane16_swap_b32", "v_permlane32_swap_b32"):
        A(f"v_mov_b32 v{t}, v{x}")
        A("s_nop 1")
        A(f"{sw} v{x}, v{t}")
        A(f"v_add_f32 v{x}, v{x}, v{t}")

def bf16_round(A, d, s):
    A(f"v_cvt_pk_bf16_f32 v{d}, v{s}, v{s}")
    A(f"v_and_b32 v{d}, 0xffff0000, v{d}")

def magic_div(n, maxv):
    for sh in range(8, 24):
        mul = -(-(1 << sh) // n)
        if mul * maxv < (1 << 32) and all((x * mul) >> sh == x // n for x in range(maxv + 1)): return mul, sh
    raise ValueError

PROFILE = False
def stamp(A, k, real=False):
    import common
    if not PROFILE: return
    A(f"{'s_memrealtime' if real else 's_memtime'} s[{64+2*k}:{65+2*k}]\ns_waitcnt lgkmcnt(0)")

def prof_store(A, n, kidx, wsptr=4):
    if not PROFILE: return
    srd(A, 88, wsptr, PROF + kidx * 256 * 8 * 64, 256 * 8 * 64)
    A("s_lshl_b32 s92, s2, 3\ns_add_u32 s92, s92, s20\ns_lshl_b32 s92, s92, 6\nv_mov_b32 v251, s92")
    for k in range(n):
        A(f"v_mov_b32 v252, s{64+2*k}\nbuffer_store_dword v252, v251, s[88:91], 0 offen offset:{4*k}")
    A("s_getreg_b32 s93, hwreg(HW_REG_XCC_ID)\nv_mov_b32 v252, s93\nbuffer_store_dword v252, v251, s[88:91], 0 offen offset:60")
    A("s_getreg_b32 s93, hwreg(HW_REG_HW_ID)\nv_mov_b32 v252, s93\nbuffer_store_dword v252, v251, s[88:91], 0 offen offset:56")
```

```python
from common import *
import common
from k_g1 import ids, OPT
from k_mid import arrive, poll_issue, poll_check, sync_setup, rot3, FLG

FSLOT = 24576; FW = 16384
FREG = {"A": 0, "B": 3 * FSLOT}
XCH = 6 * FSLOT
LDS = FLG + 2048
R = dict(fr=32, aa=128, wa=129, ab=130, wb=131, da=132, dw=133, F=135, G=136, P=137, T=138, tmp=140)
LOG2E = 1.4426950408889634

def f_dma(base):
    g = []
    for j in range(4):
        ins = ["s_add_u32 m0, s34, s28", "s_nop 0"] if j == 0 else []
        ins.append(f"buffer_load_dwordx4 v{R['da']}, s[8:11], s26 offen offset:{j*1024} lds")
        g.append(ins)
    g.append(["s_add_u32 m0, s34, s30", "s_add_u32 s26, s26, 4096", f"buffer_load_dwordx4 v{R['dw']}, s[12:15], s27 offen lds"])
    g.append([f"buffer_load_dwordx4 v{R['dw']+1}, s[12:15], s27 offen offset:1024 lds", "s_add_u32 s27, s27, 131072"] + rot3(34, FSLOT, base))
    return g
def f_reads(buf):
    f = R["fr"] + 48 * buf; rd = []
    for ks in range(4):
        for hf in range(2): rd.append(f"ds_read_b64_tr_b16 {vr(f+12*ks+2*hf,2)}, v{R['wb']} offset:{(16*ks+8*hf)*128}")
        for i in range(2): rd.append(f"ds_read_b128 {vr(f+12*ks+4+4*i,4)}, v{R['ab']} offset:{i*4096+ks*1024}")
    return rd
def f_mfma(buf):
    f = R["fr"] + 48 * buf
    return [f"v_mfma_f32_32x32x16_bf16 {vr(16*i,16)}, {vr(f+12*ks,4)}, {vr(f+12*ks+4+4*i,4)}, {vr(16*i,16)}" for ks in range(4) for i in range(2)]
def f_addr(base):
    return rot3(35, FSLOT, base) + [f"v_add_u32 v{R['ab']}, s35, v{R['aa']}", f"v_add_u32 v{R['wb']}, s35, v{R['wa']}"]

def fin_ids(A):
    A("""
    s_lshr_b32 s3, s2, 3
    s_lshr_b32 s44, s23, 1
    s_lshl_b32 s44, s44, 2
    s_and_b32 s45, s3, 3
    s_add_u32 s44, s44, s45
    s_and_b32 s45, s23, 1
    s_lshl_b32 s45, s45, 3
    s_lshr_b32 s3, s3, 2
    s_add_u32 s45, s45, s3
    """)

def f_setup(A, role):
    t = R["tmp"]; base = FREG[role]
    nkb = 32 if role == "A" else 56
    srd(A, 8, 4, OF if role == "A" else UF, 64 * nkb * 2048)
    A(f"""
    s_load_dwordx2 s[6:7], s[0:1], {KARG['wo' if role == 'A' else 'wout']}
    s_lshl_b32 s3, s44, 2
    s_add_u32 s3, s3, s21
    s_mul_i32 s3, s3, {nkb*2048}
    v_lshlrev_b32 v{t}, 4, v250
    v_add_u32 v{R['da']}, s3, v{t}
    v_lshrrev_b32 v{t+1}, 3, v250
    s_lshl_b32 s3, s21, 4
    v_add_u32 v{t+1}, s3, v{t+1}
    v_lshlrev_b32 v{t+1}, 11, v{t+1}
    v_bfe_u32 v{t+2}, v250, 4, 1
    v_lshlrev_b32 v{t+2}, 2, v{t+2}
    v_and_b32 v{t+3}, 7, v250
    v_xor_b32 v{t+2}, v{t+2}, v{t+3}
    v_lshl_add_u32 v{t+1}, v{t+2}, 4, v{t+1}
    s_lshl_b32 s3, s45, 7
    v_add_u32 v{R['dw']}, s3, v{t+1}
    v_add_u32 v{R['dw']+1}, {8*2048-1024}, v{R['dw']}
    s_lshl_b32 s28, s21, 12
    s_lshl_b32 s30, s21, 11
    s_add_u32 s30, s30, {FW}
    s_mov_b32 s26, 0
    s_mov_b32 s27, 0
    s_mov_b32 s34, {base}
    s_waitcnt lgkmcnt(0)
    """)
    srd(A, 12, 6, 0, nkb * 32 * 2048)
    for c in range(3):
        for g in f_dma(base): A.extend(g)
    A(f"""
    s_and_b32 s37, s21, 1
    s_lshr_b32 s38, s21, 1
    s_lshl_b32 s3, s37, 13
    v_add_u32 v{R['aa']}, s3, v{t}
    v_lshrrev_b32 v{t+1}, 5, v250
    v_bfe_u32 v{t+2}, v250, 2, 2
    v_lshl_add_u32 v{t+1}, v{t+1}, 2, v{t+2}
    v_lshlrev_b32 v{t+1}, 7, v{t+1}
    v_lshrrev_b32 v{t+2}, 1, v{t+2}
    v_xor_b32 v{t+2}, s38, v{t+2}
    v_lshl_add_u32 v{t+1}, v{t+2}, 6, v{t+1}
    v_bfe_u32 v{t+2}, v250, 4, 1
    v_lshl_add_u32 v{t+1}, v{t+2}, 5, v{t+1}
    v_and_b32 v{t+2}, 3, v250
    v_lshl_add_u32 v{t+1}, v{t+2}, 3, v{t+1}
    v_add_u32 v{R['wa']}, {FW}, v{t+1}
    s_mov_b32 s35, {base + 2*FSLOT}
    """)
    A.extend(f_addr(base))
    for i in range(32): A(f"v_mov_b32 v{i}, 0")

def f_main(A, role):
    base = FREG[role]; nst = 16 if role == "A" else 28
    A("s_waitcnt vmcnt(12)")
    A.extend(arrive(R)); A.extend(poll_issue(R)); A.extend(poll_check(A, R))
    A.extend(f_reads(0))
    A("s_waitcnt vmcnt(6)")
    A.extend(arrive(R))
    A("s_mov_b32 s29, 0")
    def stage(buf, dma, nxt, vm):
        m = f_mfma(buf)
        if not nxt: return ["s_waitcnt lgkmcnt(0)"] + m
        o = poll_issue(R) + ["s_waitcnt lgkmcnt(1)", m[0]] + f_addr(base) + poll_check(A, R) + [m[1]]
        rd = f_reads(buf ^ 1); dm = f_dma(base) if dma else []
        fill = []
        for i, r_ in enumerate(rd):
            fill.append(r_)
            if i % 3 == 2 and dm: fill.append(dm.pop(0))
        fill += dm
        o += interleave(m[2:7], fill)
        if vm is not None: o += [f"s_waitcnt vmcnt({vm})"] + arrive(R)
        return o + m[7:]
    L = A.label("fin" + role)
    A(L + ":")
    A.extend(stage(0, True, True, 6)); A.extend(stage(1, True, True, 6))
    A(f"s_add_u32 s29, s29, 2\ns_cmp_lt_u32 s29, {nst-4}\ns_cbranch_scc1 {L}")
    A.extend(stage(0, True, True, 6)); A.extend(stage(1, False, True, 0)); A.extend(stage(0, False, True, None)); A.extend(stage(1, False, False, None))

def f_epi(A, role):
    t = R["tmp"]; keep = 0 if role == "A" else 16; give = 16 - keep
    X = 48; Y = 32
    A(f"""
    s_load_dwordx2 s[6:7], s[0:1], {KARG['x']}
    s_load_dwordx2 s[16:17], s[0:1], {KARG['out']}
    s_lshl_b32 s3, s44, 2
    s_lshl_b32 s39, s37, 1
    s_add_u32 s3, s3, s39
    s_add_u32 s3, s3, {0 if role == 'A' else 1}
    s_lshl_b32 s3, s3, 5
    v_and_b32 v{t+1}, 31, v250
    v_add_u32 v{t+1}, s3, v{t+1}
    v_lshlrev_b32 v{t+1}, 11, v{t+1}
    v_lshrrev_b32 v{t+2}, 5, v250
    v_lshl_add_u32 v{t+1}, v{t+2}, 4, v{t+1}
    s_lshl_b32 s3, s45, 7
    s_lshl_b32 s39, s38, 6
    s_add_u32 s3, s3, s39
    v_add_u32 v{t+1}, s3, v{t+1}
    s_waitcnt lgkmcnt(0)
    """)
    srd(A, 8, 6, 0, 4 * MB); srd(A, 12, 16, 0, 4 * MB)
    A(f"buffer_load_dwordx4 {vr(X,4)}, v{t+1}, s[8:11], 0 offen\nbuffer_load_dwordx4 {vr(X+4,4)}, v{t+1}, s[8:11], 0 offen offset:32")
    A.extend(arrive(R)); A.extend(poll_issue(R)); A.extend(poll_check(A, R))
    own, oth = FREG[role], FREG["B" if role == "A" else "A"]
    A(f"""
    s_lshl_b32 s3, s21, 12
    v_lshlrev_b32 v{t}, 4, v250
    v_add_u32 v{t}, s3, v{t}
    v_add_u32 v{t+2}, {own}, v{t}
    v_add_u32 v{t+3}, {oth}, v{t}
    """)
    for q in range(4): A(f"ds_write_b128 v{t+2}, {vr(give+4*q,4)} offset:{q*1024}")
    A("s_waitcnt lgkmcnt(0)\ns_barrier")
    for q in range(4): A(f"ds_read_b128 {vr(Y+4*q,4)}, v{t+3} offset:{q*1024}")
    A("s_waitcnt vmcnt(0)")
    for p in range(2):
        A(f"v_permlane32_swap_b32 v{X+4*p}, v{X+4*p+2}\nv_permlane32_swap_b32 v{X+4*p+1}, v{X+4*p+3}")
    A("s_waitcnt lgkmcnt(0)")
    S, T = (keep, Y) if role == "A" else (Y, keep)
    U = 64
    def rnd(b):
        for i in range(8): A(f"v_cvt_pk_bf16_f32 v{U+i}, v{b+2*i}, v{b+2*i+1}")
        for i in range(8): A(f"v_lshlrev_b32 v{b+2*i}, 16, v{U+i}\nv_and_b32 v{b+2*i+1}, 0xffff0000, v{U+i}")
    rnd(S); rnd(T)
    E = 80
    for i in range(16): A(f"v_mul_f32 v{E+i}, {fhex(-LOG2E)}, v{T+i}")
    for i in range(16): A(f"v_exp_f32 v{E+i}, v{E+i}")
    for i in range(16): A(f"v_add_f32 v{E+i}, 1.0, v{E+i}")
    for i in range(16): A(f"v_rcp_f32 v{E+i}, v{E+i}")
    for i in range(16): A(f"v_mul_f32 v{T+i}, v{T+i}, v{E+i}")
    rnd(T)
    for i in range(16): A(f"v_mul_f32 v{S+i}, v{S+i}, v{T+i}")
    rnd(S)
    for i in range(8): A(f"v_lshlrev_b32 v{E+2*i}, 16, v{X+i}\nv_and_b32 v{E+2*i+1}, 0xffff0000, v{X+i}")
    for i in range(16): A(f"v_add_f32 v{S+i}, v{S+i}, v{E+i}")
    for i in range(8): A(f"v_cvt_pk_bf16_f32 v{X+i}, v{S+2*i}, v{S+2*i+1}")
    A("s_nop 1")
    for p in range(2):
        A(f"v_permlane32_swap_b32 v{X+4*p}, v{X+4*p+2}\nv_permlane32_swap_b32 v{X+4*p+1}, v{X+4*p+3}")
    A(f"buffer_store_dwordx4 {vr(X,4)}, v{t+1}, s[12:15], 0 offen\nbuffer_store_dwordx4 {vr(X+4,4)}, v{t+1}, s[12:15], 0 offen offset:32")

def gen_fin(A, name="fin_kernel"):
    kstart(A, name)
    LB = A.label("roleB")
    A(f"""
    s_cmp_ge_u32 s2, 256
    s_cbranch_scc1 {name}_end
    s_load_dwordx2 s[4:5], s[0:1], {KARG['ws']}
    """)
    ids(A); fin_ids(A)
    stamp(A, 0); stamp(A, 5, True)
    sync_setup(A, R, FLG)
    A(f"s_waitcnt lgkmcnt(0)\ns_barrier\ns_cmp_ge_u32 s20, 4\ns_cbranch_scc1 {LB}")
    for role in "AB":
        f_setup(A, role); stamp(A, 1)
        f_main(A, role); stamp(A, 2)
        f_epi(A, role); stamp(A, 3)
        if common.PROFILE: A("s_waitcnt vmcnt(0)")
        stamp(A, 4); stamp(A, 6, True); prof_store(A, 7, 2)
        if role == "A": A(f"s_endpgm\n{LB}:")
    A(f"{name}_end:\ns_endpgm")
    A.raw(kd(name))
```

```python
from common import *
import common

SLOT = 29696; WA_OFF = 16384; WB_OFF = 22528
NST = 32
QSCALE = 32 ** -0.5 * 1.4426950408889634
GC0 = -2.0 * 1.4426950408889634 * 0.7978845608028654
GC1 = GC0 * 0.044715

def ids(A):
    A("""
    v_lshrrev_b32 v1, 6, v0
    v_and_b32 v250, 63, v0
    v_readfirstlane_b32 s20, v1
    s_and_b32 s23, s2, 7
    s_lshr_b32 s24, s2, 3
    s_and_b32 s22, s24, 7
    s_lshr_b32 s24, s24, 3
    s_lshl_b32 s25, s23, 2
    s_add_u32 s25, s25, s24
    s_and_b32 s21, s20, 3
    """)

def g1_step(role, t_mod, dma, reads, R):
    cur = t_mod & 1; nxt = cur ^ 1
    rs = (t_mod + 1) & 3
    st_, so = rs >> 1, (rs & 1) * SLOT
    mf, rd = [], []
    if role == "A":
        fb = lambda buf: R["frag"] + 40 * buf
        xf = lambda buf, ks, rb: fb(buf) + 20 * ks + 4 * rb
        wf = lambda buf, ks, b: fb(buf) + 20 * ks + 8 + 4 * b
        for ks in range(2):
            for rb in range(2):
                for b in range(3):
                    acc = vr((rb * 3 + b) * 16, 16)
                    x_, w_ = vr(xf(cur, ks, rb), 4), vr(wf(cur, ks, b), 4)
                    mf.append(f"v_mfma_f32_32x32x16_bf16 {acc}, {w_}, {x_}, {acc}" if b < 2 else f"v_mfma_f32_32x32x16_bf16 {acc}, {x_}, {w_}, {acc}")
        for ks in range(2):
            for rb in range(2):
                rd.append(f"ds_read_b128 {vr(xf(nxt, ks, rb), 4)}, v{R['xa'] + 2 * st_ + ks} offset:{so + rb * 2048}")
            for b in range(3):
                for hf in range(2):
                    rd.append(f"ds_read_b64_tr_b16 {vr(wf(nxt, ks, b) + 2 * hf, 2)}, v{R['wa'] + st_} offset:{so + WA_OFF + (16 * ks + 4 * hf) * 192 + 64 * b}")
    else:
        fb = lambda buf: R["frag"] + 44 * buf
        xf = lambda buf, st: fb(buf) + 4 * st
        wf = lambda buf, ft: fb(buf) + 16 + 4 * ft
        for ft in range(7):
            for st in range(4):
                acc = vr((st * 7 + ft) * 4, 4)
                mf.append(f"v_mfma_f32_16x16x32_bf16 {acc}, {vr(wf(cur, ft), 4)}, {vr(xf(cur, st), 4)}, {acc}")
        for st in range(4):
            rd.append(f"ds_read_b128 {vr(xf(nxt, st), 4)}, v{R['xa'] + 2 * st_ + (st & 1)} offset:{so + (st >> 1) * 2048}")
        for ft in range(7):
            for hf in range(2):
                rd.append(f"ds_read_b64_tr_b16 {vr(wf(nxt, ft) + 2 * hf, 2)}, v{R['wa'] + st_} offset:{so + WB_OFF + hf * 8 * 224 + 32 * ft}")
    fill = []
    dm = dma_group(role, t_mod, R) if dma else []
    if not reads: rd = []
    if dm:
        k = 0; step = max(1, len(rd) // len(dm))
        for i, r_ in enumerate(rd):
            fill.append(r_)
            if (i + 1) % step == 0 and k < len(dm): fill.append(dm[k]); k += 1
        fill += dm[k:]
    else: fill = rd
    nlast = 2 if role == "A" else 5
    return interleave(mf[:-nlast], fill) + mf[-nlast:], rd

def dma_group(role, slot, R):
    g = []
    for j in range(4):
        ins = []
        if j == 0: ins += [f"s_add_u32 m0, s28, {slot * SLOT}", "s_nop 0"]
        if j == 3 and role == "B": ins.append("s_mov_b64 exec, s[30:31]")
        ins.append(f"buffer_load_dwordx4 v{R['dv'] + j}, s[8:11], s26 offen offset:{j * 1024} lds")
        if j == 3:
            if role == "B": ins.append("s_mov_b64 exec, -1")
            ins.append("s_add_u32 s26, s26, s27")
        g.append(ins)
    return g

OPT = {}
def g1_main(A, role, R, nacc):
    if OPT.get("prio" + role): A(f"s_setprio {OPT['prio' + role]}")
    for s in range(4):
        for ins in dma_group(role, s, R): A.extend(ins)
    for i in range(nacc): A(f"v_mov_b32 v{i}, 0")
    A("s_waitcnt vmcnt(12)\ns_barrier")
    stamp(A, 2)
    _, rd = g1_step(role, 3, False, True, R)
    A.extend(rd)
    A("s_waitcnt vmcnt(8) lgkmcnt(0)")
    stamp(A, 3)
    L = A.label("g1" + role)
    A(f"s_mov_b32 s29, {NST // 4 - 1}")
    A(L + ":")
    for t in range(4):
        if not OPT.get("nobar"): A("s_barrier")
        A.extend(g1_step(role, t, not OPT.get("nodma"), not OPT.get("noread"), R)[0])
        if t == 3: A("s_sub_u32 s29, s29, 1\ns_cmp_lg_u32 s29, 0")
        A("s_waitcnt vmcnt(8) lgkmcnt(0)")
    A(f"s_cbranch_scc1 {L}")
    for t in range(4):
        A("s_barrier")
        A.extend(g1_step(role, t, False, t < 3, R)[0])
        if t == 0: A("s_waitcnt vmcnt(4) lgkmcnt(0)")
        elif t == 1: A("s_waitcnt vmcnt(0) lgkmcnt(0)")
        elif t == 2: A("s_waitcnt lgkmcnt(0)")

RA = dict(frag=96, xa=176, wa=180, dv=182)
RB = dict(frag=112, xa=200, wa=204, dv=206)

def g1_setup_A(A):
    R = RA
    srd(A, 8, 4, XN, 4 * MB)
    A(f"""
    s_mov_b32 s26, 0
    s_mov_b32 s27, 64
    s_lshl_b32 s28, s21, 12
    v_lshrrev_b32 v1, 2, v250
    s_lshl_b32 s3, s22, 8
    s_lshl_b32 s6, s21, 6
    s_add_u32 s3, s3, s6
    v_add_u32 v1, s3, v1
    v_lshlrev_b32 v1, 11, v1
    v_lshrrev_b32 v2, 5, v250
    v_and_b32 v3, 3, v250
    v_mul_u32_u24 v4, 3, v2
    v_xor_b32 v4, v4, v3
    v_add_u32 v5, 1, v2
    v_xor_b32 v5, v5, v3
    v_lshl_add_u32 v4, v4, 4, v1
    v_lshl_add_u32 v5, v5, 4, v1
    v_mov_b32 v{R['dv']}, v4
    v_add_u32 v{R['dv']+1}, {32768-1024}, v5
    v_add_u32 v{R['dv']+2}, {2*(32768-1024)}, v4
    v_add_u32 v{R['dv']+3}, {3*(32768-1024)}, v5
    v_and_b32 v1, 31, v250
    v_lshrrev_b32 v3, 3, v1
    v_lshlrev_b32 v3, 1, v3
    v_mov_b32 v4, 0x9c
    v_lshrrev_b32 v3, v3, v4
    v_and_b32 v3, 3, v3
    v_xor_b32 v3, v3, v2
    v_add_u32 v1, s6, v1
    v_lshlrev_b32 v1, 6, v1
    v_lshl_add_u32 v{R['xa']}, v3, 4, v1
    v_xor_b32 v{R['xa']+1}, 32, v{R['xa']}
    v_add_u32 v{R['xa']+2}, {2*SLOT}, v{R['xa']}
    v_add_u32 v{R['xa']+3}, {2*SLOT}, v{R['xa']+1}
    v_bfe_u32 v1, v250, 2, 2
    v_lshl_add_u32 v1, v2, 3, v1
    v_mul_u32_u24 v1, 192, v1
    v_bfe_u32 v3, v250, 4, 1
    v_lshl_add_u32 v1, v3, 5, v1
    v_and_b32 v3, 3, v250
    v_lshl_add_u32 v{R['wa']}, v3, 3, v1
    v_add_u32 v{R['wa']+1}, {2*SLOT}, v{R['wa']}
    """)

def g1_setup_B(A):
    R = RB
    m12, s12 = magic_div(12, 511); m14, s14 = magic_div(14, 511)
    LB, LE = A.label("sB"), A.label("sE")
    A(f"""
    s_load_dwordx2 s[6:7], s[0:1], {KARG['wqkv']}
    s_load_dwordx2 s[12:13], s[0:1], {KARG['win']}
    s_mov_b32 s26, 0
    s_cmp_eq_u32 s21, 2
    s_cselect_b32 s30, -1, 0
    s_mov_b32 s31, s30
    s_waitcnt lgkmcnt(0)
    s_cmp_ge_u32 s21, 2
    s_cselect_b32 s8, s12, s6
    s_cselect_b32 s9, s13, s7
    s_mov_b32 s10, {1024*6144}
    s_cmov_b32 s10, {1024*7168}
    s_mov_b32 s11, 0x00020000
    s_mov_b32 s27, {32*6144}
    s_cmov_b32 s27, {32*7168}
    s_cbranch_scc1 {LB}
    s_mul_i32 s3, s21, 3
    s_lshl_b32 s28, s3, 10
    s_add_u32 s28, s28, {WA_OFF}
    s_lshl_b32 s3, s3, 6
    s_lshl_b32 s6, s25, 6
    """)
    for j in range(4):
        A(f"""
        v_add_u32 v1, s3, v250
        v_add_u32 v1, {64*j}, v1
        v_mul_u32_u24 v2, {m12}, v1
        v_lshrrev_b32 v2, {s12}, v2
        v_mul_u32_u24 v3, 12, v2
        v_sub_u32 v3, v1, v3
        v_mul_u32_u24 v2, 6144, v2
        v_lshrrev_b32 v4, 2, v3
        v_lshl_add_u32 v2, v4, 11, v2
        v_and_b32 v3, 3, v3
        v_lshl_add_u32 v2, v3, 4, v2
        v_add_u32 v2, s6, v2
        v_subrev_u32 v{R['dv']+j}, {1024*j}, v2
        """)
    A(f"""
    s_branch {LE}
    {LB}:
    s_sub_u32 s3, s21, 2
    s_lshl_b32 s3, s3, 2
    s_lshl_b32 s28, s3, 10
    s_add_u32 s28, s28, {WB_OFF}
    s_lshl_b32 s3, s3, 6
    s_lshr_b32 s6, s24, 1
    s_mul_i32 s6, s6, 3584
    s_mul_i32 s7, s23, 448
    s_add_u32 s6, s6, s7
    s_and_b32 s7, s24, 1
    s_mul_i32 s7, s7, 224
    s_add_u32 s6, s6, s7
    """)
    for j in range(4):
        A(f"""
        v_add_u32 v1, s3, v250
        v_add_u32 v1, {64*j}, v1
        v_mul_u32_u24 v2, {m14}, v1
        v_lshrrev_b32 v2, {s14}, v2
        v_mul_u32_u24 v3, 14, v2
        v_sub_u32 v3, v1, v3
        v_and_b32 v4, 0x13, v2
        v_bfe_u32 v5, v2, 2, 1
        v_lshl_add_u32 v4, v5, 3, v4
        v_bfe_u32 v5, v2, 3, 1
        v_lshl_add_u32 v4, v5, 2, v4
        v_mul_u32_u24 v4, 7168, v4
        v_lshl_add_u32 v4, v3, 4, v4
        v_add_u32 v4, s6, v4
        v_subrev_u32 v{R['dv']+j}, {1024*j}, v4
        """)
    A(f"""
    {LE}:
    v_and_b32 v1, 15, v250
    v_lshrrev_b32 v2, 4, v250
    v_lshrrev_b32 v3, 3, v1
    v_mul_u32_u24 v4, 3, v3
    v_xor_b32 v4, v4, v2
    v_add_u32 v5, 1, v3
    v_xor_b32 v5, v5, v2
    s_lshl_b32 s6, s21, 6
    v_add_u32 v1, s6, v1
    v_lshlrev_b32 v1, 6, v1
    v_lshl_add_u32 v{R['xa']}, v4, 4, v1
    v_lshl_add_u32 v{R['xa']+1}, v5, 4, v1
    v_add_u32 v{R['xa']+1}, 1024, v{R['xa']+1}
    v_add_u32 v{R['xa']+2}, {2*SLOT}, v{R['xa']}
    v_add_u32 v{R['xa']+3}, {2*SLOT}, v{R['xa']+1}
    v_bfe_u32 v1, v250, 2, 2
    v_bfe_u32 v3, v250, 4, 1
    v_lshl_add_u32 v1, v3, 2, v1
    v_lshrrev_b32 v3, 5, v250
    v_lshl_add_u32 v1, v3, 4, v1
    v_mul_u32_u24 v1, 224, v1
    v_and_b32 v3, 3, v250
    v_lshl_add_u32 v{R['wa']}, v3, 3, v1
    v_add_u32 v{R['wa']+1}, {2*SLOT}, v{R['wa']}
    """)

def epi_A(A):
    srd(A, 12, 4, QF, 12 * MB)
    A(f"""
    s_lshl_b32 s3, s25, 6
    s_lshl_b32 s6, s22, 3
    s_add_u32 s3, s3, s6
    s_lshl_b32 s6, s21, 1
    s_add_u32 s3, s3, s6
    s_lshl_b32 s3, s3, 11
    v_lshlrev_b32 v200, 4, v250
    v_add_u32 v200, s3, v200
    s_mov_b32 s16, {fhex(QSCALE)}
    s_mov_b32 s17, {4*MB}
    s_mov_b32 s18, {8*MB}
    s_nop 4
    """)
    for b in (1, 2, 0):
        for rb in range(2):
            a0 = (rb * 3 + b) * 16
            if b == 0:
                for i in range(16): A(f"v_mul_f32 v{a0+i}, s16, v{a0+i}")
            d0 = 96 + (b * 2 + rb) * 8
            for i in range(8): A(f"v_cvt_pk_bf16_f32 v{d0+i}, v{a0+2*i}, v{a0+2*i+1}")
            so = ("0", "s17", "s18")[b]
            for f in range(2): A(f"buffer_store_dwordx4 {vr(d0+4*f,4)}, v200, s[12:15], {so} offen offset:{(rb*2+f)*1024}")

def gelu_pairs(A, regs, tmp, cst):
    c0, c1, one = vr(cst, 2), vr(cst + 2, 2), vr(cst + 4, 2)
    G = 4
    for i in range(0, len(regs), G):
        grp = regs[i:i + G]
        T = [tmp + 2 * k for k in range(len(grp))]
        for x, t in zip(grp, T): A(f"v_pk_mul_f32 {vr(t,2)}, {vr(x,2)}, {vr(x,2)}")
        for x, t in zip(grp, T): A(f"v_pk_fma_f32 {vr(t,2)}, {vr(t,2)}, {c1}, {c0}")
        for x, t in zip(grp, T): A(f"v_pk_mul_f32 {vr(t,2)}, {vr(t,2)}, {vr(x,2)}")
        for x, t in zip(grp, T): A(f"v_exp_f32 v{t}, v{t}\nv_exp_f32 v{t+1}, v{t+1}")
        for x, t in zip(grp, T): A(f"v_pk_add_f32 {vr(t,2)}, {vr(t,2)}, {one}")
        for x, t in zip(grp, T): A(f"v_rcp_f32 v{t}, v{t}\nv_rcp_f32 v{t+1}, v{t+1}")
        for x, t in zip(grp, T): A(f"v_pk_mul_f32 {vr(x,2)}, {vr(x,2)}, {vr(t,2)}")

def reduce4(A, S):
    A(f"""
    s_nop 1
    v_permlane16_swap_b32 v{S}, v{S+1}
    v_permlane16_swap_b32 v{S+2}, v{S+3}
    v_add_f32 v{S}, v{S}, v{S+1}
    v_add_f32 v{S+2}, v{S+2}, v{S+3}
    s_nop 1
    v_permlane32_swap_b32 v{S}, v{S+2}
    v_add_f32 v{S}, v{S}, v{S+2}
    """)

def bcast4(A, T, D):
    A(f"""
    v_mov_b32 v{D}, v{T}
    v_mov_b32 v{D+4}, v{T}
    s_nop 1
    v_permlane32_swap_b32 v{D}, v{D+4}
    v_mov_b32 v{D+2}, v{D}
    v_mov_b32 v{D+6}, v{D+4}
    s_nop 1
    v_permlane16_swap_b32 v{D}, v{D+2}
    v_permlane16_swap_b32 v{D+4}, v{D+6}
    v_mov_b32 v{D+1}, v{D}
    v_mov_b32 v{D+3}, v{D+2}
    v_mov_b32 v{D+5}, v{D+4}
    v_mov_b32 v{D+7}, v{D+6}
    """)

def z2_store(A, srdn, P):
    k = 0
    for st in range(4):
        so = "0" if st < 2 else "s17"
        for ft in (0, 2, 4):
            d = P + 4 * (k % 4); k += 1
            for u in range(2):
                a = (st * 7 + ft + u) * 4
                A(f"v_cvt_pk_bf16_f32 v{d+2*u}, v{a}, v{a+1}\nv_cvt_pk_bf16_f32 v{d+2*u+1}, v{a+2}, v{a+3}")
            A(f"s_nop 1\nv_permlane16_swap_b32 v{d}, v{d+2}\nv_permlane16_swap_b32 v{d+1}, v{d+3}")
            A(f"buffer_store_dwordx4 {vr(d,4)}, v208, {sr(srdn,4)}, {so} offen offset:{(st&1)*3584+32*ft}")
        if st & 1:
            d = P + 4 * (k % 4); k += 1
            for u in range(2):
                a = ((st - 1 + u) * 7 + 6) * 4
                A(f"v_cvt_pk_bf16_f32 v{d+2*u}, v{a}, v{a+1}\nv_cvt_pk_bf16_f32 v{d+2*u+1}, v{a+2}, v{a+3}")
            A(f"s_nop 1\nv_permlane16_swap_b32 v{d}, v{d+2}\nv_permlane16_swap_b32 v{d+1}, v{d+3}")
            A(f"buffer_store_dwordx4 {vr(d,4)}, v209, {sr(srdn,4)}, {so} offen")

def epi_B(A, name):
    LZ2, LEND = A.label("z2"), A.label("eB")
    CS, TM = 112, 120
    A(f"""
    v_mov_b32 v{CS}, {fhex(GC0)}
    v_mov_b32 v{CS+1}, {fhex(GC0)}
    v_mov_b32 v{CS+2}, {fhex(GC1)}
    v_mov_b32 v{CS+3}, {fhex(GC1)}
    v_mov_b32 v{CS+4}, 1.0
    v_mov_b32 v{CS+5}, 1.0
    s_nop 1
    """)
    gelu_pairs(A, list(range(0, 112, 2)), TM, CS)
    stamp(A, 5)
    A(f"s_cmp_ge_u32 s24, 2\ns_cbranch_scc1 {LZ2}")
    srd(A, 12, 4, Z1F, ZBYTES)
    A(f"""
    v_and_b32 v1_, 15, v250
    """.replace("v1_", "v130"))
    A(f"""
    v_lshrrev_b32 v131, 5, v250
    v_lshl_add_u32 v130, v131, 4, v130
    v_bfe_u32 v131, v250, 4, 1
    v_lshl_add_u32 v130, v131, 5, v130
    v_lshlrev_b32 v130, 5, v130
    s_lshl_b32 s3, s23, 6
    s_lshl_b32 s6, s22, 3
    s_add_u32 s3, s3, s6
    s_lshl_b32 s6, s21, 1
    s_add_u32 s3, s3, s6
    s_mul_i32 s3, s3, {7*2048}
    v_add_u32 v130, s3, v130
    v_add_u32 v131, {7*2048}, v130
    s_mul_i32 s3, s24, 7
    """)
    for ft in range(7):
        A(f"""
        s_add_u32 s6, s3, {ft}
        s_lshr_b32 s7, s6, 1
        s_lshl_b32 s7, s7, 11
        s_and_b32 s6, s6, 1
        s_lshl_b32 s6, s6, 4
        s_add_u32 s{40+ft}, s6, s7
        """)
    k = 0
    for sp in range(2):
        for ft in range(7):
            d = 136 + 4 * (k % 4); k += 1
            for u in range(2):
                a = ((2 * sp + u) * 7 + ft) * 4
                A(f"v_cvt_pk_bf16_f32 v{d+2*u}, v{a}, v{a+1}\nv_cvt_pk_bf16_f32 v{d+2*u+1}, v{a+2}, v{a+3}")
            A(f"s_nop 1\nv_permlane32_swap_b32 v{d}, v{d+2}\nv_permlane32_swap_b32 v{d+1}, v{d+3}")
            A(f"buffer_store_dwordx4 {vr(d,4)}, v{130+sp}, s[12:15], s{40+ft} offen")
    A(f"s_branch {LEND}\n{LZ2}:")
    S = 128
    for st in range(4):
        a = st * 28
        A(f"v_pk_add_f32 {vr(S+2*st,2)}, {vr(a,2)}, {vr(a+2,2)}")
    for i in range(2, 14):
        for st in range(4):
            A(f"v_pk_add_f32 {vr(S+2*st,2)}, {vr(S+2*st,2)}, {vr(st*28+2*i,2)}")
    for st in range(4): A(f"v_add_f32 v{136+st}, v{S+2*st}, v{S+2*st+1}")
    reduce4(A, 136)
    A(f"v_mul_f32 v137, {fhex(-1/112)}, v136")
    bcast4(A, 137, 140)
    for i in range(14):
        for st in range(4):
            A(f"v_pk_add_f32 {vr(148+2*st,2)}, {vr(st*28+2*i,2)}, {vr(140+2*st,2)}")
        for st in range(4):
            if i == 0: A(f"v_pk_mul_f32 {vr(S+2*st,2)}, {vr(148+2*st,2)}, {vr(148+2*st,2)}")
            else: A(f"v_pk_fma_f32 {vr(S+2*st,2)}, {vr(148+2*st,2)}, {vr(148+2*st,2)}, {vr(S+2*st,2)}")
    for st in range(4): A(f"v_add_f32 v{156+st}, v{S+2*st}, v{S+2*st+1}")
    reduce4(A, 156)
    A("v_mov_b32 v137, v156")
    srd(A, 12, 4, STAT, 16 * 2048 * 8)
    srd(A, 36, 4, Z2, ZBYTES)
    A(f"""
    s_lshl_b32 s3, s23, 1
    s_add_u32 s3, s3, s24
    s_sub_u32 s3, s3, 2
    s_lshl_b32 s3, s3, 11
    s_lshl_b32 s6, s22, 8
    s_add_u32 s3, s3, s6
    s_lshl_b32 s6, s21, 6
    s_add_u32 s3, s3, s6
    v_add_u32 v160, s3, v250
    v_lshlrev_b32 v160, 3, v160
    buffer_store_dwordx2 v[136:137], v160, s[12:15], 0 offen
    s_mul_i32 s3, s3, 224
    v_and_b32 v161, 15, v250
    v_bfe_u32 v162, v250, 4, 1
    v_lshrrev_b32 v163, 5, v250
    v_mul_u32_u24 v208, 224, v161
    v_lshl_add_u32 v208, v163, 4, v208
    v_add_u32 v208, s3, v208
    v_mul_u32_u24 v209, 3584, v162
    v_add_u32 v209, v209, v208
    v_add_u32 v209, 192, v209
    v_lshl_add_u32 v208, v162, 5, v208
    s_mov_b32 s17, 7168
    """)
    z2_store(A, 36, 164)
    A(f"{LEND}:")

def gen_g1(A, name="g1_kernel"):
    kstart(A, name)
    LB = A.label("roleB")
    A(f"""
    s_cmp_ge_u32 s2, 256
    s_cbranch_scc1 {name}_end
    s_load_dwordx2 s[4:5], s[0:1], {KARG['ws']}
    """)
    ids(A)
    stamp(A, 0); stamp(A, 8, True)
    A(f"s_waitcnt lgkmcnt(0)\ns_cmp_ge_u32 s20, 4\ns_cbranch_scc1 {LB}")
    g1_setup_A(A)
    stamp(A, 1)
    g1_main(A, "A", RA, 96)
    stamp(A, 4); stamp(A, 5)
    epi_A(A)
    stamp(A, 6)
    if common.PROFILE: A("s_waitcnt vmcnt(0)")
    stamp(A, 7); stamp(A, 9, True)
    prof_store(A, 10, 0)
    A(f"s_endpgm\n{LB}:")
    g1_setup_B(A)
    stamp(A, 1)
    g1_main(A, "B", RB, 112)
    stamp(A, 4)
    epi_B(A, name)
    stamp(A, 6)
    if common.PROFILE: A("s_waitcnt vmcnt(0)")
    stamp(A, 7); stamp(A, 9, True)
    prof_store(A, 10, 0)
    A(f"{name}_end:\ns_endpgm")
    A.raw(kd(name))

def gen_norm(A, name="norm_kernel"):
    kstart(A, name)
    m14, s14 = magic_div(14, 511)
    A(f"""
    s_cmp_ge_u32 s2, 1024
    s_cbranch_scc1 {name}_end
    s_load_dwordx2 s[4:5], s[0:1], {KARG['ws']}
    s_waitcnt lgkmcnt(0)
    """)
    srd(A, 8, 4, STAT, 16 * 2048 * 8); srd(A, 12, 4, Z2, ZBYTES); srd(A, 16, 4, Z2N, ZBYTES)
    A(f"""
    v_mul_u32_u24 v1, {m14}, v0
    v_lshrrev_b32 v1, {s14}, v1
    s_and_b32 s3, s2, 63
    s_lshl_b32 s3, s3, 5
    v_add_u32 v1, s3, v1
    v_lshlrev_b32 v1, 3, v1
    s_mul_i32 s3, s2, {32*224}
    v_lshlrev_b32 v2, 4, v0
    v_add_u32 v2, s3, v2
    buffer_load_dwordx4 v[4:7], v2, s[12:15], 0 offen
    """)
    for ct in range(16):
        A(f"s_mov_b32 s20, {ct*16384}\nbuffer_load_dwordx2 {vr(16+2*ct,2)}, v1, s[8:11], s20 offen")
    A("s_waitcnt vmcnt(0)")
    stats_combine(A, 16, 48)
    for i in range(4):
        A(f"v_lshlrev_b32 v{8+2*i}, 16, v{4+i}\nv_and_b32 v{9+2*i}, 0xffff0000, v{4+i}")
    for i in range(8): A(f"v_sub_f32 v{8+i}, v{8+i}, v48")
    for i in range(4): A(f"v_cvt_pk_bf16_f32 v{4+i}, v{8+2*i}, v{9+2*i}")
    for i in range(4):
        A(f"v_lshlrev_b32 v{8+2*i}, 16, v{4+i}\nv_and_b32 v{9+2*i}, 0xffff0000, v{4+i}")
    for i in range(8): A(f"v_mul_f32 v{8+i}, v{8+i}, v49")
    for i in range(4): A(f"v_cvt_pk_bf16_f32 v{4+i}, v{8+2*i}, v{9+2*i}")
    A(f"buffer_store_dwordx4 v[4:7], v2, s[16:19], 0 offen\n{name}_end:\ns_endpgm")
    A.raw(kd(name, 64, 64, 32))

def stats_combine(A, P, D):
    A(f"v_add_f32 v{D}, v{P}, v{P+2}")
    for ct in range(2, 16): A(f"v_add_f32 v{D}, v{D}, v{P+2*ct}")
    A(f"v_mul_f32 v{D}, {fhex(1/1792)}, v{D}")
    A(f"v_add_f32 v{D+1}, v{P+1}, v{P+3}")
    for ct in range(2, 16): A(f"v_add_f32 v{D+1}, v{D+1}, v{P+2*ct+1}")
    A(f"v_mov_b32 v{D+2}, {fhex(1/112)}\nv_mov_b32 v{D+3}, 0")
    for ct in range(16): A(f"v_fma_f32 v{P+2*ct}, v{P+2*ct}, v{D+2}, -v{D}")
    for ct in range(16): A(f"v_fmac_f32 v{D+3}, v{P+2*ct}, v{P+2*ct}")
    A(f"v_fmac_f32 v{D+1}, {fhex(112.0)}, v{D+3}")
    A(f"v_mul_f32 v{D+1}, {fhex(1/1792)}, v{D+1}")
    bf16_round(A, D, D); bf16_round(A, D + 1, D + 1)
    A(f"v_add_f32 v{D+1}, {fhex(1e-5)}, v{D+1}")
    bf16_round(A, D + 1, D + 1)
    A(f"v_sqrt_f32 v{D+1}, v{D+1}\ns_nop 0")
    bf16_round(A, D + 1, D + 1)
    A(f"v_rcp_f32 v{D+1}, v{D+1}\ns_nop 0")
```

```python
from common import *

def gen_ln(A, name="ln_kernel"):
    kstart(A, name)
    A(f"""
    s_cmp_ge_u32 s2, 256
    s_cbranch_scc1 {name}_end
    s_load_dwordx2 s[4:5], s[0:1], {KARG['x']}
    s_load_dwordx2 s[6:7], s[0:1], {KARG['ws']}
    v_lshrrev_b32 v1, 6, v0
    v_and_b32 v2, 63, v0
    s_lshl_b32 s3, s2, 3
    v_add_u32 v1, s3, v1
    v_lshlrev_b32 v1, 11, v1
    v_lshl_add_u32 v1, v2, 4, v1
    s_waitcnt lgkmcnt(0)
    """)
    srd(A, 8, 4, 0, 4 * MB); srd(A, 12, 6, XN, 4 * MB)
    A("""
    buffer_load_dwordx4 v[4:7], v1, s[8:11], 0 offen
    buffer_load_dwordx4 v[8:11], v1, s[8:11], 0 offen offset:1024
    s_waitcnt vmcnt(0)
    """)
    for i in range(8):
        A(f"v_lshlrev_b32 v{16+2*i}, 16, v{4+i}")
        A(f"v_and_b32 v{17+2*i}, 0xffff0000, v{4+i}")
    for i in range(8): A(f"v_add_f32 v{32+i}, v{16+2*i}, v{17+2*i}")
    for i in range(4): A(f"v_add_f32 v{32+i}, v{32+i}, v{36+i}")
    A("v_add_f32 v32, v32, v34\nv_add_f32 v33, v33, v35\nv_add_f32 v32, v32, v33")
    wave_sum(A, 32, 33)
    A(f"v_mul_f32 v32, {fhex(1/1024)}, v32")
    for i in range(16): A(f"v_sub_f32 v{40+i}, v{16+i}, v32")
    A("v_mul_f32 v34, v40, v40\nv_mul_f32 v35, v41, v41")
    for i in range(2, 16): A(f"v_fmac_f32 v{34+(i&1)}, v{40+i}, v{40+i}")
    A("v_add_f32 v34, v34, v35")
    wave_sum(A, 34, 33)
    A(f"v_mul_f32 v34, {fhex(1/1024)}, v34")
    bf16_round(A, 32, 32)
    bf16_round(A, 34, 34)
    A(f"v_add_f32 v34, {fhex(1e-5)}, v34")
    bf16_round(A, 34, 34)
    A("v_sqrt_f32 v34, v34\ns_nop 0")
    bf16_round(A, 34, 34)
    A("v_rcp_f32 v34, v34")
    for i in range(16): A(f"v_sub_f32 v{40+i}, v{16+i}, v32")
    for i in range(8):
        A(f"v_cvt_pk_bf16_f32 v{56+i}, v{40+2*i}, v{41+2*i}")
    for i in range(8):
        A(f"v_lshlrev_b32 v{40+2*i}, 16, v{56+i}")
        A(f"v_and_b32 v{41+2*i}, 0xffff0000, v{56+i}")
    for i in range(16): A(f"v_mul_f32 v{40+i}, v{40+i}, v34")
    for i in range(8): A(f"v_cvt_pk_bf16_f32 v{56+i}, v{40+2*i}, v{41+2*i}")
    A(f"""
    buffer_store_dwordx4 v[56:59], v1, s[12:15], 0 offen
    buffer_store_dwordx4 v[60:63], v1, s[12:15], 0 offen offset:1024
    {name}_end:
    s_endpgm
    """)
    A.raw(kd(name, 64, 64, 32))
```

```python
from common import *
import common
from k_g1 import ids, OPT

AREG = 0; KV_SLOT = 16384
BREG = 49152; SP_SLOT = 36864; SPW = 28672
FLG = BREG + 3 * SP_SLOT
LDS = FLG + 2048

def arrive(R):
    return [f"v_add_u32 v{R['P']}, 1, v{R['P']}", f"ds_write_b32 v{R['F']}, v{R['P']}"]
def poll_issue(R): return [f"ds_read_b32 v{R['T']}, v{R['G']}"]
def poll_check(A, R):
    L, Lok = A.label("spin"), A.label("ok")
    return [f"s_waitcnt lgkmcnt(0)", f"v_cmp_lt_u32 vcc, v{R['T']}, v{R['P']}", f"s_cbranch_vccz {Lok}",
            f"s_mov_b32 s62, 0x100000", f"{L}:", f"ds_read_b32 v{R['T']}, v{R['G']}", "s_sub_u32 s62, s62, 1", "s_cmp_eq_u32 s62, 0", f"s_cbranch_scc1 {Lok}",
            "s_waitcnt lgkmcnt(0)", f"v_cmp_lt_u32 vcc, v{R['T']}, v{R['P']}", f"s_cbranch_vccnz {L}", f"{Lok}:"]
def sync_setup(A, R, flg):
    A(f"""
    s_lshl_b32 s3, s20, 8
    s_add_u32 s3, s3, {flg}
    v_lshlrev_b32 v{R['F']}, 2, v250
    v_and_b32 v{R['G']}, 3, v250
    v_lshlrev_b32 v{R['G']}, 8, v{R['G']}
    v_add_u32 v{R['G']}, v{R['G']}, v{R['F']}
    v_add_u32 v{R['F']}, s3, v{R['F']}
    s_and_b32 s3, s20, 4
    s_lshl_b32 s3, s3, 8
    s_add_u32 s3, s3, {flg}
    v_add_u32 v{R['G']}, s3, v{R['G']}
    v_mov_b32 v{R['P']}, 0
    ds_write_b32 v{R['F']}, v{R['P']}
    """)

RA = dict(O=0, S=32, Pk=64, Q=80, K=96, V=104, L=112, ONE=120, IDX=124, cur=125, nxt=126, dk=127, dv=128, l16=129, F=130, G=131, P=132, T=133, tmp=136)

def attn_slot(n, R, extra_mid=None, extra_end=None):
    qb = n & 1; b = n >> 1
    S = R["S"] + 16 * qb; Sn = R["S"] + 16 * (qb ^ 1)
    P = R["Pk"] + 8 * qb; Pp = R["Pk"] + 8 * (qb ^ 1)
    qn = qb ^ 1
    K, V, Q, O, L = R["K"], R["V"], R["Q"] + 8 * qn, R["O"] + 16 * qn, R["L"] + 4 * qn
    valu = []
    for i in range(16):
        valu.append(f"v_exp_f32 v{S+i}, v{S+i}")
        if i >= 2 and i % 2 == 0: valu.append(f"v_cvt_pk_bf16_f32 v{P+(i-2)//2}, v{S+i-2}, v{S+i-1}")
    valu.append("s_nop 0"); valu.append(f"v_cvt_pk_bf16_f32 v{P+7}, v{S+14}, v{S+15}")
    M = [f"v_mfma_f32_32x32x16_bf16 {vr(Sn,16)}, {vr(K,4)}, {vr(Q,4)}, 0",
         f"v_mfma_f32_32x32x16_bf16 {vr(Sn,16)}, {vr(K+4,4)}, {vr(Q+4,4)}, {vr(Sn,16)}",
         f"v_mfma_f32_32x32x16_bf16 {vr(O,16)}, {vr(V,4)}, {vr(Pp,4)}, {vr(O,16)}",
         f"v_mfma_f32_32x32x16_bf16 {vr(O,16)}, {vr(V+4,4)}, {vr(Pp+4,4)}, {vr(O,16)}",
         f"v_smfmac_f32_16x16x64_bf16 {vr(L,4)}, {vr(R['ONE'],4)}, {vr(Pp,8)}, v{R['IDX']}"]
    pre = [[] for _ in range(5)]; post = [[] for _ in range(5)]
    if qb == 1: pre[0].append("s_waitcnt lgkmcnt(0)")
    if qb == 0:
        ka, ko = (R["cur"], (b + 1) * 4096) if b < 3 else (R["nxt"], 0)
        post[1] += [f"ds_read_b128 {vr(K,4)}, v{ka} offset:{ko}", f"ds_read_b128 {vr(K+4,4)}, v{ka} offset:{ko+1024}"]
        post[3] += [f"ds_read_b128 {vr(V,4)}, v{R['cur']} offset:{b*4096+2048}", f"ds_read_b128 {vr(V+4,4)}, v{R['cur']} offset:{b*4096+3072}"]
    if extra_mid:
        for k, v in extra_mid.items(): post[k] += v
    out = []
    cuts = [0, 5, 10, 15, 20, len(valu)]
    for g in range(5):
        out += pre[g] + [M[g]] + post[g] + valu[cuts[g]:cuts[g + 1]]
    if extra_end: out += extra_end
    return out

def kv_dma(R):
    return ["s_add_u32 m0, s34, s28", "s_nop 0",
            f"buffer_load_dwordx4 v{R['dk']}, s[8:11], s26 offen lds", f"buffer_load_dwordx4 v{R['dk']}, s[8:11], s26 offen offset:1024 lds",
            f"buffer_load_dwordx4 v{R['dv']}, s[8:11], s26 offen offset:2048 lds", f"buffer_load_dwordx4 v{R['dv']}, s[8:11], s26 offen offset:3072 lds",
            "s_add_u32 s26, s26, 8192"]
def rot3(s, size, base=0):
    return [f"s_add_u32 s{s}, s{s}, {size}", f"s_cmp_eq_u32 s{s}, {base + 3 * size}", f"s_cmov_b32 s{s}, {base}"]

def attn_setup(A, R):
    srd(A, 8, 4, KF, 8 * MB); srd(A, 12, 4, QF, 4 * MB)
    A(f"""
    v_lshlrev_b32 v{R['l16']}, 4, v250
    s_lshl_b32 s3, s25, 17
    s_lshl_b32 s6, s21, 11
    s_add_u32 s6, s6, s3
    v_add_u32 v{R['dk']}, s6, v{R['l16']}
    v_add_u32 v{R['dv']}, {4*MB-2048}, v{R['dk']}
    s_mov_b32 s26, 0
    s_lshl_b32 s28, s21, 12
    s_mov_b32 s34, {AREG}
    """)
    for c in range(2):
        A.extend(kv_dma(R)); A.extend(rot3(34, KV_SLOT, AREG))
    A(f"""
    s_lshl_b32 s6, s22, 3
    s_lshl_b32 s7, s21, 1
    s_add_u32 s6, s6, s7
    s_lshl_b32 s6, s6, 11
    s_add_u32 s6, s6, s3
    """)
    for i in range(4): A(f"buffer_load_dwordx4 {vr(R['Q']+4*i,4)}, v{R['l16']}, s[12:15], s6 offen offset:{1024*i}")
    for i in range(32): A(f"v_mov_b32 v{R['O']+i}, 0")
    for i in range(16): A(f"v_mov_b32 v{R['Pk']+i}, 0")
    for i in range(8): A(f"v_mov_b32 v{R['V']+i}, 0\nv_mov_b32 v{R['L']+i}, 0")
    t = R["tmp"]
    A(f"""
    v_and_b32 v{t}, 15, v250
    v_mov_b32 v{t+1}, 0x3f803f80
    v_cmp_gt_u32 vcc, 2, v{t}
    s_nop 1
    v_cndmask_b32 v{R['ONE']}, 0, v{t+1}, vcc
    v_cndmask_b32 v{R['ONE']+1}, 0, v{t+1}, vcc
    v_lshrrev_b32 v{t+2}, 1, v{t}
    v_cmp_eq_u32 vcc, 1, v{t+2}
    s_nop 1
    v_cndmask_b32 v{R['ONE']+2}, 0, v{t+1}, vcc
    v_cndmask_b32 v{R['ONE']+3}, 0, v{t+1}, vcc
    v_and_b32 v{t}, 1, v{t}
    v_mul_u32_u24 v{t}, 0xaaaa, v{t}
    v_add_u32 v{R['IDX']}, 0x4444, v{t}
    v_add_u32 v{R['cur']}, {AREG}, v{R['l16']}
    v_add_u32 v{R['nxt']}, {AREG + KV_SLOT}, v{R['l16']}
    s_mov_b32 s35, {AREG + KV_SLOT}
    """)

def attn_main(A, R):
    A("s_waitcnt vmcnt(4)")
    A("s_waitcnt vmcnt(0)")
    A.extend(arrive(R)); A.extend(poll_issue(R)); A.extend(poll_check(A, R))
    K, Q, S = R["K"], R["Q"], R["S"]
    A(f"""
    ds_read_b128 {vr(K,4)}, v{R['cur']}
    ds_read_b128 {vr(K+4,4)}, v{R['cur']} offset:1024
    s_waitcnt lgkmcnt(0)
    v_mfma_f32_32x32x16_bf16 {vr(S,16)}, {vr(K,4)}, {vr(Q,4)}, 0
    v_mfma_f32_32x32x16_bf16 {vr(S,16)}, {vr(K+4,4)}, {vr(Q+4,4)}, {vr(S,16)}
    s_mov_b32 s29, 0
    s_nop 7
    s_nop 3
    """)
    L, Ls = A.label("att"), A.label("attnd")
    A(L + ":")
    for n in range(8):
        mid, end = None, None
        if n == 4: mid = {4: ["s_waitcnt vmcnt(0)"] + arrive(R)}
        if n == 5:
            mid = {2: poll_issue(R)}
            end = poll_check(A, R) + ["s_cmp_ge_u32 s29, 14", f"s_cbranch_scc1 {Ls}"] + kv_dma(R) + rot3(34, KV_SLOT, AREG) + [f"{Ls}:"]
        if n == 7:
            end = rot3(35, KV_SLOT, AREG) + [f"v_mov_b32 v{R['cur']}, v{R['nxt']}", f"v_add_u32 v{R['nxt']}, s35, v{R['l16']}",
                   "s_add_u32 s29, s29, 1", "s_cmp_lt_u32 s29, 16", f"s_cbranch_scc1 {L}"]
        A.extend(attn_slot(n, R, mid, end))
    V, Pp, O, Lq = R["V"], R["Pk"] + 8, R["O"] + 16, R["L"] + 4
    A(f"""
    s_nop 0
    v_mfma_f32_32x32x16_bf16 {vr(O,16)}, {vr(V,4)}, {vr(Pp,4)}, {vr(O,16)}
    v_mfma_f32_32x32x16_bf16 {vr(O,16)}, {vr(V+4,4)}, {vr(Pp+4,4)}, {vr(O,16)}
    v_smfmac_f32_16x16x64_bf16 {vr(Lq,4)}, {vr(R['ONE'],4)}, {vr(Pp,8)}, v{R['IDX']}
    s_nop 7
    s_nop 3
    """)

def attn_finish(A, R):
    t = R["tmp"]; O = R["O"]
    for qb in range(2):
        L = R["L"] + 4 * qb
        A(f"""
        v_add_f32 v{L}, v{L}, v{L+1}
        v_add_f32 v{L+2}, v{L+2}, v{L+3}
        s_nop 1
        v_permlane16_swap_b32 v{L}, v{L+2}
        v_mov_b32 v{t+qb}, v{L}
        s_nop 1
        v_permlane32_swap_b32 v{t+qb}, v{L}
        """)
    LS, LD = A.label("slow"), A.label("fin")
    A(f"v_mul_f32 v{t+2}, 0, v{O}")
    for i in range(1, 32): A(f"v_fmac_f32 v{t+2}, 0, v{O+i}")
    A(f"""
    v_min_f32 v{t+3}, v{t}, v{t+1}
    v_max_f32 v{t+4}, v{t}, v{t+1}
    v_add_f32 v{t+3}, v{t+3}, v{t+2}
    v_add_f32 v{t+4}, v{t+4}, v{t+2}
    v_cmp_nle_f32 vcc, {fhex(2.0**-60)}, v{t+3}
    s_mov_b32 s42, {fhex(2.0**60)}
    v_cmp_nge_f32 s[40:41], s42, v{t+4}
    """)
    A(f"""
    v_cmp_u_f32 s[42:43], v{t}, v{t+1}
    s_nop 1
    s_or_b64 vcc, vcc, s[40:41]
    s_or_b64 vcc, vcc, s[42:43]
    s_cbranch_vccz {LD}
    """)
    attn_slow(A, R)
    A(f"{LD}:")
    srd(A, 12, 4, OF, 4 * MB)
    A(f"""
    v_rcp_f32 v{t}, v{t}
    v_rcp_f32 v{t+1}, v{t+1}
    s_lshl_b32 s6, s22, 3
    s_lshl_b32 s7, s21, 1
    s_add_u32 s6, s6, s7
    s_lshl_b32 s6, s6, 5
    s_add_u32 s6, s6, s25
    s_lshl_b32 s6, s6, 11
    s_add_u32 s7, s6, {32*2048}
    """)
    for qb in range(2):
        for i in range(16): A(f"v_mul_f32 v{O+16*qb+i}, v{O+16*qb+i}, v{t+qb}")
        d = R["Pk"] + 8 * qb
        for i in range(8): A(f"v_cvt_pk_bf16_f32 v{d+i}, v{O+16*qb+2*i}, v{O+16*qb+2*i+1}")
        for f in range(2): A(f"buffer_store_dwordx4 {vr(d+4*f,4)}, v{R['l16']}, s[12:15], s{6+qb} offen offset:{1024*f}")

def attn_slow(A, R):
    t = R["tmp"]; O, S, P, K, V, Q = R["O"], R["S"], R["Pk"], R["K"], R["V"], R["Q"]
    m = t + 4; al = t + 6; u = t + 7
    L = A.label("sl")
    for i in range(32): A(f"v_mov_b32 v{O+i}, 0")
    A(f"""
    v_mov_b32 v{t}, 0
    v_mov_b32 v{t+1}, 0
    v_mov_b32 v{m}, {fhex(-3.0e38)}
    v_mov_b32 v{m+1}, {fhex(-3.0e38)}
    s_lshl_b32 s26, s25, 17
    s_add_u32 s27, s26, {4*MB}
    s_mov_b32 s29, 64
    {L}:
    buffer_load_dwordx4 {vr(K,4)}, v{R['l16']}, s[8:11], s26 offen
    buffer_load_dwordx4 {vr(K+4,4)}, v{R['l16']}, s[8:11], s26 offen offset:1024
    buffer_load_dwordx4 {vr(V,4)}, v{R['l16']}, s[8:11], s27 offen
    buffer_load_dwordx4 {vr(V+4,4)}, v{R['l16']}, s[8:11], s27 offen offset:1024
    s_add_u32 s26, s26, 2048
    s_add_u32 s27, s27, 2048
    s_waitcnt vmcnt(0)
    """)
    for qb in range(2):
        Oq = O + 16 * qb
        A(f"""
        v_mfma_f32_32x32x16_bf16 {vr(S,16)}, {vr(K,4)}, {vr(Q+8*qb,4)}, 0
        v_mfma_f32_32x32x16_bf16 {vr(S,16)}, {vr(K+4,4)}, {vr(Q+8*qb+4,4)}, {vr(S,16)}
        s_nop 7
        s_nop 3
        v_max3_f32 v{u}, v{S}, v{S+1}, v{m+qb}
        """)
        for i in range(2, 16, 2): A(f"v_max3_f32 v{u}, v{S+i}, v{S+i+1}, v{u}")
        A(f"""
        v_mov_b32 v{al}, v{u}
        s_nop 1
        v_permlane32_swap_b32 v{al}, v{u}
        v_max_f32 v{u}, v{u}, v{al}
        v_sub_f32 v{al}, v{m+qb}, v{u}
        v_exp_f32 v{al}, v{al}
        v_mov_b32 v{m+qb}, v{u}
        """)
        for i in range(16): A(f"v_sub_f32 v{S+i}, v{S+i}, v{u}")
        for i in range(16): A(f"v_exp_f32 v{S+i}, v{S+i}")
        A(f"v_mul_f32 v{t+qb}, v{t+qb}, v{al}")
        for i in range(16): A(f"v_mul_f32 v{Oq+i}, v{Oq+i}, v{al}")
        for i in range(16): A(f"v_add_f32 v{t+qb}, v{t+qb}, v{S+i}")
        for i in range(8): A(f"v_cvt_pk_bf16_f32 v{P+i}, v{S+2*i}, v{S+2*i+1}")
        A(f"""
        s_nop 1
        v_mfma_f32_32x32x16_bf16 {vr(Oq,16)}, {vr(V,4)}, {vr(P,4)}, {vr(Oq,16)}
        v_mfma_f32_32x32x16_bf16 {vr(Oq,16)}, {vr(V+4,4)}, {vr(P+4,4)}, {vr(Oq,16)}
        """)
    A(f"""
    s_sub_u32 s29, s29, 1
    s_cmp_lg_u32 s29, 0
    s_nop 7
    s_cbranch_scc1 {L}
    s_nop 3
    """)
    for qb in range(2):
        A(f"v_mov_b32 v{u}, v{t+qb}\ns_nop 1\nv_permlane32_swap_b32 v{u}, v{t+qb}\nv_add_f32 v{t+qb}, v{t+qb}, v{u}")

RB = dict(fr=112, za=176, wa=177, zb=179, wb=180, dz=182, dw=189, F=191, G=192, P=193, T=194, tmp=196)

def sp_dma(R):
    g = []
    for j in range(7):
        ins = []
        if j == 0: ins += ["s_add_u32 m0, s34, s28", "s_nop 0"]
        if j == 4: ins += ["s_add_u32 m0, m0, 4096", "s_nop 0"]
        ins.append(f"buffer_load_dwordx4 v{R['dz']+j}, s[8:11], s26 offen offset:{(j%4)*1024} lds")
        g.append(ins)
    g.append(["s_add_u32 m0, s34, s30", "s_add_u32 s26, s26, 14336", f"buffer_load_dwordx4 v{R['dw']}, s[12:15], s27 offen lds"])
    g.append([f"buffer_load_dwordx4 v{R['dw']+1}, s[12:15], s27 offen offset:1024 lds", "s_add_u32 s27, s27, 128"] + rot3(34, SP_SLOT, BREG))
    return g
def sp_reads(R, buf, ks):
    f = R["fr"] + 32 * buf
    rd = [f"ds_read_b128 {vr(f,4)}, v{R['wb']+ks}"]
    for fb in range(7):
        for hf in range(2):
            rd.append(f"ds_read_b64_tr_b16 {vr(f+4+4*fb+2*hf,2)}, v{R['zb']} offset:{(16*ks+4*hf)*448+64*fb}")
    return rd
def sp_mfma(R, buf):
    f = R["fr"] + 32 * buf
    return [f"v_mfma_f32_32x32x16_bf16 {vr(16*fb,16)}, {vr(f+4+4*fb,4)}, {vr(f,4)}, {vr(16*fb,16)}" for fb in range(7)]
def sp_addr(R):
    return rot3(35, SP_SLOT, BREG) + [f"v_add_u32 v{R['zb']}, s35, v{R['za']}", f"v_add_u32 v{R['wb']}, s35, v{R['wa']}", f"v_add_u32 v{R['wb']+1}, s35, v{R['wa']+1}"]

def sp_setup(A, R):
    m28, s28 = magic_div(28, 2047); t = R["tmp"]
    srd(A, 8, 4, Z2N - 4096, ZBYTES + 4096)
    A(f"""
    s_load_dwordx2 s[6:7], s[0:1], {KARG['wsp']}
    s_lshr_b32 s36, s2, 3
    s_mul_i32 s3, s21, 448
    s_mul_i32 s16, s23, {2*2048*224}
    s_add_u32 s16, s16, 4096
    """)
    for j in range(7):
        A(f"""
        v_add_u32 v{t}, s3, v250
        v_add_u32 v{t}, {64*j}, v{t}
        v_mul_u32_u24 v{t+1}, {m28}, v{t}
        v_lshrrev_b32 v{t+1}, {s28}, v{t+1}
        v_mul_u32_u24 v{t+2}, 28, v{t+1}
        v_sub_u32 v{t+2}, v{t}, v{t+2}
        v_mul_u32_u24 v{t+1}, 224, v{t+1}
        v_lshl_add_u32 v{t+1}, v{t+2}, 4, v{t+1}
        v_cmp_lt_u32 vcc, 13, v{t+2}
        v_mov_b32 v{t+2}, {2048*224-224}
        v_add_u32 v{t+1}, s16, v{t+1}
        v_cndmask_b32 v{t+2}, 0, v{t+2}, vcc
        v_add_u32 v{t+1}, v{t+1}, v{t+2}
        v_subrev_u32 v{R['dz']+j}, {1024*(j%4)}, v{t+1}
        """)
    A(f"""
    s_lshl_b32 s3, s36, 6
    s_lshl_b32 s16, s21, 4
    s_add_u32 s3, s3, s16
    v_lshrrev_b32 v{t}, 3, v250
    v_add_u32 v{t}, s3, v{t}
    v_lshlrev_b32 v{t}, 12, v{t}
    v_lshrrev_b32 v{t+1}, 4, v250
    v_and_b32 v{t+2}, 7, v250
    v_xor_b32 v{t+1}, v{t+1}, v{t+2}
    v_lshl_add_u32 v{R['dw']}, v{t+1}, 4, v{t}
    v_xor_b32 v{t+1}, 4, v{t+1}
    v_lshl_add_u32 v{R['dw']+1}, v{t+1}, 4, v{t}
    v_add_u32 v{R['dw']+1}, {8*4096-1024}, v{R['dw']+1}
    s_mul_i32 s28, s21, 7168
    s_lshl_b32 s30, s21, 11
    s_add_u32 s30, s30, {SPW}
    s_mov_b32 s26, 0
    s_mov_b32 s27, 0
    s_mov_b32 s34, {BREG}
    s_waitcnt lgkmcnt(0)
    """)
    srd(A, 12, 6, 0, 2048 * 4096)
    for c in range(3):
        for g in sp_dma(R): A.extend(g)
    A(f"""
    s_and_b32 s37, s21, 1
    s_lshr_b32 s38, s21, 1
    v_lshrrev_b32 v{t}, 5, v250
    v_bfe_u32 v{t+1}, v250, 2, 2
    v_lshl_add_u32 v{t+1}, v{t}, 3, v{t+1}
    s_lshl_b32 s3, s38, 5
    v_add_u32 v{t+1}, s3, v{t+1}
    v_mul_u32_u24 v{t+1}, 448, v{t+1}
    v_bfe_u32 v{t+2}, v250, 4, 1
    v_lshl_add_u32 v{t+1}, v{t+2}, 5, v{t+1}
    v_and_b32 v{t+2}, 3, v250
    v_lshl_add_u32 v{R['za']}, v{t+2}, 3, v{t+1}
    v_and_b32 v{t+1}, 31, v250
    v_bfe_u32 v{t+2}, v250, 1, 3
    s_lshl_b32 s3, s38, 2
    v_add_u32 v{t}, s3, v{t}
    v_xor_b32 v{t}, v{t}, v{t+2}
    s_lshl_b32 s3, s37, 5
    v_add_u32 v{t+1}, s3, v{t+1}
    v_lshlrev_b32 v{t+1}, 7, v{t+1}
    v_lshl_add_u32 v{t+1}, v{t}, 4, v{t+1}
    v_add_u32 v{R['wa']}, {SPW}, v{t+1}
    v_xor_b32 v{R['wa']+1}, 32, v{R['wa']}
    s_mov_b32 s35, {BREG + 2*SP_SLOT}
    """)
    A.extend(sp_addr(R))
    for i in range(112): A(f"v_mov_b32 v{i}, 0")

def sp_main(A, R):
    A("s_waitcnt vmcnt(18)")
    A.extend(arrive(R)); A.extend(poll_issue(R)); A.extend(poll_check(A, R))
    A.extend(sp_reads(R, 0, 0))
    A("s_mov_b32 s29, 0\ns_waitcnt lgkmcnt(0)")
    L = A.label("sp")
    def stage(dma, nxt, vm):
        a = interleave(sp_mfma(R, 0)[:6], sp_reads(R, 1, 1), per=3)
        a += ([f"s_waitcnt vmcnt({vm})"] + arrive(R) if nxt else []) + sp_mfma(R, 0)[6:]
        mb = sp_mfma(R, 1)
        if not nxt: return a + ["s_waitcnt lgkmcnt(0)"] + mb
        b = poll_issue(R) + ["s_waitcnt lgkmcnt(1)", mb[0]] + sp_addr(R) + poll_check(A, R) + [mb[1]]
        rd = sp_reads(R, 0, 0)
        fill = []
        dm = sp_dma(R) if dma else []
        for i, r_ in enumerate(rd):
            fill.append(r_)
        b += interleave(mb[2:6], fill) + interleave(mb[6:], dm) + ["s_waitcnt lgkmcnt(0)"]
        return a + b
    A(L + ":")
    A.extend(stage(True, True, 9))
    A(f"s_add_u32 s29, s29, 1\ns_cmp_lt_u32 s29, 29\ns_cbranch_scc1 {L}")
    A.extend(stage(False, True, 9)); A.extend(stage(False, True, 0)); A.extend(stage(False, False, 0))

def sp_epi(A, R):
    t = R["tmp"]; Z = 112
    LK, LE = A.label("kh1"), A.label("spe")
    srd(A, 8, 4, Z1F, ZBYTES); srd(A, 16, 4, UF, ZBYTES)
    A(f"""
    s_load_dwordx2 s[6:7], s[0:1], {KARG['bsp']}
    s_lshl_b32 s39, s36, 1
    s_add_u32 s39, s39, s37
    s_lshl_b32 s3, s23, 6
    s_add_u32 s3, s3, s39
    s_mul_i32 s40, s3, {7*2048}
    s_mul_i32 s41, s39, 56
    s_mul_i32 s3, s23, 7
    s_add_u32 s41, s41, s3
    s_lshl_b32 s41, s41, 11
    v_lshlrev_b32 v{t}, 5, v250
    v_lshlrev_b32 v{t+1}, 4, v250
    v_and_b32 v{t+2}, 31, v250
    s_lshl_b32 s3, s39, 5
    v_add_u32 v{t+2}, s3, v{t+2}
    v_lshlrev_b32 v{t+2}, 1, v{t+2}
    s_lshl_b32 s3, s21, 14
    s_add_u32 s3, s3, {BREG}
    v_add_u32 v{t+3}, s3, v{t+1}
    s_waitcnt lgkmcnt(0)
    """)
    srd(A, 12, 6, 0, 4096)
    A(f"buffer_load_ushort v{t+6}, v{t+2}, s[12:15], 0 offen")
    A(f"""
    s_xor_b32 s3, s21, 2
    s_lshl_b32 s3, s3, 14
    s_add_u32 s3, s3, {BREG}
    v_add_u32 v{t+4}, s3, v{t+1}
    """)
    A.extend(arrive(R)); A.extend(poll_issue(R)); A.extend(poll_check(A, R))
    A(f"s_cmp_eq_u32 s38, 1\ns_cbranch_scc1 {LK}")
    for kh in range(2):
        mine = range(0, 4) if kh == 0 else range(4, 7)
        other = range(4, 7) if kh == 0 else range(0, 4)
        for i, fb in enumerate(mine):
            A(f"s_add_u32 s3, s40, {fb*2048}")
            for q in range(2): A(f"buffer_load_dwordx4 {vr(Z+8*i+4*q,4)}, v{t}, s[8:11], s3 offen offset:{16*q}")
        for i, fb in enumerate(other):
            for q in range(4): A(f"ds_write_b128 v{t+3}, {vr(16*fb+4*q,4)} offset:{i*4096+q*1024}")
        A.extend(arrive(R)); A.extend(poll_issue(R)); A.extend(poll_check(A, R))
        rb = 16 * (4 if kh == 0 else 0)
        dst = lambda i: (64 + 16 * i if i < 3 else 144) if kh == 0 else 16 * i
        for i, fb in enumerate(mine):
            for q in range(4): A(f"ds_read_b128 {vr(dst(i)+4*q,4)}, v{t+4} offset:{i*4096+q*1024}")
        A(f"s_waitcnt vmcnt(0)\nv_lshlrev_b32 v{t+6}, 16, v{t+6}\nv_mov_b32 v{t+7}, v{t+6}")
        for i, fb in enumerate(mine):
            a = 16 * fb; d = dst(i)
            A(f"s_waitcnt lgkmcnt({min(15, 4*(len(mine)-1-i))})")
            for q in range(8): A(f"v_pk_add_f32 {vr(a+2*q,2)}, {vr(a+2*q,2)}, {vr(d+2*q,2)}")
            for q in range(8): A(f"v_pk_add_f32 {vr(a+2*q,2)}, {vr(a+2*q,2)}, {vr(t+6,2)}")
            for q in range(8):
                A(f"v_lshlrev_b32 v{d+2*q}, 16, v{Z+8*i+q}\nv_and_b32 v{d+2*q+1}, 0xffff0000, v{Z+8*i+q}")
            for q in range(8): A(f"v_pk_mul_f32 {vr(a+2*q,2)}, {vr(a+2*q,2)}, {vr(d+2*q,2)}")
            for q in range(8): A(f"v_cvt_pk_bf16_f32 v{Z+8*i+q}, v{a+2*q}, v{a+2*q+1}")
            A(f"s_add_u32 s3, s41, {fb*2048}")
            for f in range(2): A(f"buffer_store_dwordx4 {vr(Z+8*i+4*f,4)}, v{t+1}, s[16:19], s3 offen offset:{1024*f}")
        if kh == 0: A(f"s_branch {LE}\n{LK}:")
    A(f"{LE}:")

def gen_mid(A, name="mid_kernel"):
    kstart(A, name)
    LB = A.label("roleB")
    A(f"""
    s_cmp_ge_u32 s2, 256
    s_cbranch_scc1 {name}_end
    s_load_dwordx2 s[4:5], s[0:1], {KARG['ws']}
    """)
    ids(A)
    stamp(A, 0); stamp(A, 5, True)
    A(f"s_waitcnt lgkmcnt(0)\ns_cmp_ge_u32 s20, 4\ns_cbranch_scc1 {LB}")
    sync_setup(A, RA, FLG)
    A("s_waitcnt lgkmcnt(0)\ns_barrier")
    if OPT.get("aprio"): A(f"s_setprio {OPT['aprio']}")
    if not OPT.get("noattn"):
        attn_setup(A, RA); stamp(A, 1)
        attn_main(A, RA); stamp(A, 2)
        attn_finish(A, RA); stamp(A, 3)
    if common.PROFILE: A("s_waitcnt vmcnt(0)")
    stamp(A, 4); stamp(A, 6, True); prof_store(A, 7, 1)
    A(f"s_endpgm\n{LB}:")
    sync_setup(A, RB, FLG)
    A("s_waitcnt lgkmcnt(0)\ns_barrier")
    if OPT.get("bprio"): A(f"s_setprio {OPT['bprio']}")
    if not OPT.get("nosp"):
        sp_setup(A, RB); stamp(A, 1)
        sp_main(A, RB); stamp(A, 2)
        sp_epi(A, RB); stamp(A, 3)
    if common.PROFILE: A("s_waitcnt vmcnt(0)")
    stamp(A, 4); stamp(A, 6, True); prof_store(A, 7, 1)
    A(f"{name}_end:\ns_endpgm")
    A.raw(kd(name))
```

```python
import sys
from common import *
import k_ln, k_g1

HEADER = """; recurrent_scan__mha_block__mixer_gmlp__prompt: out = x + MHA(LN x) * silu(gMLP(LN x)); generated by gen/gen.py
"""
def build(launches, gens):
    A = Asm()
    A.raw(HEADER + "".join(f"; @launch kernel={k} grid=({g},1,1) block=({b},1,1) lds={l}\n" for k, g, b, l in launches) + '.amdgcn_target "amdgcn-amd-amdhsa--gfx950"\n.text')
    for gfn in gens: gfn(A)
    t = A.text()
    errs = check_hazards(t)
    for e in errs[:30]: print("HAZARD", e, file=sys.stderr)
    if errs: print(len(errs), "hazards", file=sys.stderr)
    return t

if __name__ == "__main__":
    out = sys.argv[1]
    import common
    common.PROFILE = "--prof" in sys.argv
    for a in sys.argv[2:]:
        if "=" in a:
            k, v = a.split("="); k_g1.OPT[k] = int(v)
    L = [("ln_kernel", 256, 512, 0), ("g1_kernel", 256, 512, 4 * k_g1.SLOT), ("norm_kernel", 1024, 448, 0)]
    G = [k_ln.gen_ln, k_g1.gen_g1, k_g1.gen_norm]
    try:
        import k_mid, k_fin
        L += [("mid_kernel", 256, 512, k_mid.LDS), ("fin_kernel", 256, 512, k_fin.LDS)]
        G += [k_mid.gen_mid, k_fin.gen_fin]
    except ImportError as e:
        print("partial build:", e, file=sys.stderr)
    open(out, "w").write(build(L, G))
```

```python
from common import *
import common

SLOT = 29696; WA_OFF = 16384; WB_OFF = 22528
NST = 32
QSCALE = 32 ** -0.5 * 1.4426950408889634
GC0 = -2.0 * 1.4426950408889634 * 0.7978845608028654
GC1 = GC0 * 0.044715

def ids(A):
    A("""
    v_lshrrev_b32 v1, 6, v0
    v_and_b32 v250, 63, v0
    v_readfirstlane_b32 s20, v1
    s_and_b32 s23, s2, 7
    s_lshr_b32 s24, s2, 3
    s_and_b32 s22, s24, 7
    s_lshr_b32 s24, s24, 3
    s_lshl_b32 s25, s23, 2
    s_add_u32 s25, s25, s24
    s_and_b32 s21, s20, 3
    """)

def g1_step(role, t_mod, dma, reads, R):
    cur = t_mod & 1; nxt = cur ^ 1
    rs = (t_mod + 1) & 3
    st_, so = rs >> 1, (rs & 1) * SLOT
    mf, rd = [], []
    if role == "A":
        fb = lambda buf: R["frag"] + 40 * buf
        xf = lambda buf, ks, rb: fb(buf) + 20 * ks + 4 * rb
        wf = lambda buf, ks, b: fb(buf) + 20 * ks + 8 + 4 * b
        for ks in range(2):
            for rb in range(2):
                for b in range(3):
                    acc = vr((rb * 3 + b) * 16, 16)
                    x_, w_ = vr(xf(cur, ks, rb), 4), vr(wf(cur, ks, b), 4)
                    mf.append(f"v_mfma_f32_32x32x16_bf16 {acc}, {w_}, {x_}, {acc}" if b < 2 else f"v_mfma_f32_32x32x16_bf16 {acc}, {x_}, {w_}, {acc}")
        for ks in range(2):
            for rb in range(2):
                rd.append(f"ds_read_b128 {vr(xf(nxt, ks, rb), 4)}, v{R['xa'] + 2 * st_ + ks} offset:{so + rb * 2048}")
            for b in range(3):
                for hf in range(2):
                    rd.append(f"ds_read_b64_tr_b16 {vr(wf(nxt, ks, b) + 2 * hf, 2)}, v{R['wa'] + st_} offset:{so + WA_OFF + (16 * ks + 4 * hf) * 192 + 64 * b}")
    else:
        fb = lambda buf: R["frag"] + 44 * buf
        xf = lambda buf, st: fb(buf) + 4 * st
        wf = lambda buf, ft: fb(buf) + 16 + 4 * ft
        for ft in range(7):
            for st in range(4):
                acc = vr((st * 7 + ft) * 4, 4)
                mf.append(f"v_mfma_f32_16x16x32_bf16 {acc}, {vr(wf(cur, ft), 4)}, {vr(xf(cur, st), 4)}, {acc}")
        for st in range(4):
            rd.append(f"ds_read_b128 {vr(xf(nxt, st), 4)}, v{R['xa'] + 2 * st_ + (st & 1)} offset:{so + (st >> 1) * 2048}")
        for ft in range(7):
            for hf in range(2):
                rd.append(f"ds_read_b64_tr_b16 {vr(wf(nxt, ft) + 2 * hf, 2)}, v{R['wa'] + st_} offset:{so + WB_OFF + hf * 8 * 224 + 32 * ft}")
    fill = []
    dm = dma_group(role, t_mod, R) if dma else []
    if not reads: rd = []
    if dm:
        k = 0; step = max(1, len(rd) // len(dm))
        for i, r_ in enumerate(rd):
            fill.append(r_)
            if (i + 1) % step == 0 and k < len(dm): fill.append(dm[k]); k += 1
        fill += dm[k:]
    else: fill = rd
    nlast = 2 if role == "A" else 5
    return interleave(mf[:-nlast], fill) + mf[-nlast:], rd

def dma_group(role, slot, R):
    g = []
    for j in range(4):
        ins = []
        if j == 0: ins += [f"s_add_u32 m0, s28, {slot * SLOT}", "s_nop 0"]
        if j == 3 and role == "B": ins.append("s_mov_b64 exec, s[30:31]")
        ins.append(f"buffer_load_dwordx4 v{R['dv'] + j}, s[8:11], s26 offen offset:{j * 1024} lds")
        if j == 3:
            if role == "B": ins.append("s_mov_b64 exec, -1")
            ins.append("s_add_u32 s26, s26, s27" if not OPT.get("same" + role) else "s_xor_b32 s26, s26, s27")
        g.append(ins)
    return g

OPT = {}
def touch_burst(A, role, half):
    if role == "B":
        A(f"""
        s_and_b32 s3, s21, 1
        s_lshl_b32 s3, s3, 6
        s_lshl_b32 s6, s22, 7
        s_add_u32 s3, s3, s6
        v_add_u32 v212, s3, v250
        s_lshr_b32 s3, s27, 5
        v_mul_lo_u32 v212, v212, s3
        s_cmp_ge_u32 s21, 2
        s_mov_b32 s6, 2048
        s_cmov_b32 s6, 128
        s_mov_b32 s7, 4096
        s_cmov_b32 s7, 220
        """)
        A("""
        s_lshr_b32 s40, s24, 1
        s_mul_i32 s40, s40, 3584
        s_mul_i32 s41, s23, 448
        s_add_u32 s40, s40, s41
        s_and_b32 s41, s24, 1
        s_mul_i32 s41, s41, 224
        s_add_u32 s40, s40, s41
        s_lshl_b32 s41, s25, 6
        s_cmp_ge_u32 s21, 2
        s_cselect_b32 s40, s40, s41
        s_add_u32 s6, s6, s40
        s_add_u32 s7, s7, s40
        buffer_load_dword v213, v212, s[8:11], s40 offen
        buffer_load_dword v213, v212, s[8:11], s6 offen
        buffer_load_dword v213, v212, s[8:11], s7 offen
        """)
        return 3
    else:
        if OPT.get("touch") < 2: return 0
        A(f"""
        s_lshl_b32 s3, s22, 8
        s_lshl_b32 s6, s24, 6
        s_add_u32 s3, s3, s6
        s_lshl_b32 s6, s21, 4
        s_add_u32 s3, s3, s6
        v_lshrrev_b32 v212, 3, v250
        v_add_u32 v212, s3, v212
        v_lshlrev_b32 v212, 11, v212
        v_and_b32 v213, 7, v250
        v_lshl_add_u32 v212, v213, 7, v212
        s_mov_b32 s3, {half * 1024}
        s_mov_b32 s6, {half * 1024 + 8 * 2048}
        buffer_load_dword v213, v212, s[8:11], s3 offen
        buffer_load_dword v213, v212, s[8:11], s6 offen
        """)
        if OPT.get("touch") == 3:
            A(f"s_mov_b32 s3, 1024\ns_mov_b32 s6, {1024 + 8 * 2048}\nbuffer_load_dword v213, v212, s[8:11], s3 offen\nbuffer_load_dword v213, v212, s[8:11], s6 offen")
            return 4
        return 2

def g1_main(A, role, R, nacc):
    if OPT.get("prio" + role): A(f"s_setprio {OPT['prio' + role]}")
    for s in range(4):
        for ins in dma_group(role, s, R): A.extend(ins)
    ntouch = touch_burst(A, role, 0) if OPT.get("touch") else 0
    for i in range(nacc): A(f"v_mov_b32 v{i}, 0")
    A(f"s_waitcnt vmcnt({12 + ntouch})\ns_barrier")
    stamp(A, 2)
    _, rd = g1_step(role, 3, False, True, R)
    A.extend(rd)
    A(f"s_waitcnt vmcnt({8 + ntouch}) lgkmcnt(0)")
    stamp(A, 3)
    L = A.label("g1" + role)
    A(f"s_mov_b32 s29, {NST // 4 - 1}")
    A(L + ":")
    for t in range(4):
        if not OPT.get("nobar"): A("s_barrier")
        A.extend(g1_step(role, t, not OPT.get("nodma") and not OPT.get("nodma" + role), not OPT.get("noread"), R)[0])
        if t == 3: A("s_sub_u32 s29, s29, 1\ns_cmp_lg_u32 s29, 0")
        A("s_waitcnt vmcnt(8) lgkmcnt(0)")
    A(f"s_cbranch_scc1 {L}")
    for t in range(4):
        A("s_barrier")
        A.extend(g1_step(role, t, False, t < 3, R)[0])
        if t == 0: A("s_waitcnt vmcnt(4) lgkmcnt(0)")
        elif t == 1: A("s_waitcnt vmcnt(0) lgkmcnt(0)")
        elif t == 2: A("s_waitcnt lgkmcnt(0)")

RA = dict(frag=96, xa=176, wa=180, dv=182)
RB = dict(frag=112, xa=200, wa=204, dv=206)

def g1_setup_A(A):
    R = RA
    srd(A, 8, 4, XN, 4 * MB)
    A(f"""
    s_mov_b32 s26, 0
    s_mov_b32 s27, 64
    s_lshl_b32 s28, s21, 12
    v_lshrrev_b32 v1, 2, v250
    s_lshl_b32 s3, s22, 8
    s_lshl_b32 s6, s21, 6
    s_add_u32 s3, s3, s6
    v_add_u32 v1, s3, v1
    v_lshlrev_b32 v1, 11, v1
    v_lshrrev_b32 v2, 5, v250
    v_and_b32 v3, 3, v250
    v_mul_u32_u24 v4, 3, v2
    v_xor_b32 v4, v4, v3
    v_add_u32 v5, 1, v2
    v_xor_b32 v5, v5, v3
    v_lshl_add_u32 v4, v4, 4, v1
    v_lshl_add_u32 v5, v5, 4, v1
    v_mov_b32 v{R['dv']}, v4
    v_add_u32 v{R['dv']+1}, {32768-1024}, v5
    v_add_u32 v{R['dv']+2}, {2*(32768-1024)}, v4
    v_add_u32 v{R['dv']+3}, {3*(32768-1024)}, v5
    v_and_b32 v1, 31, v250
    v_lshrrev_b32 v3, 3, v1
    v_lshlrev_b32 v3, 1, v3
    v_mov_b32 v4, 0x9c
    v_lshrrev_b32 v3, v3, v4
    v_and_b32 v3, 3, v3
    v_xor_b32 v3, v3, v2
    v_add_u32 v1, s6, v1
    v_lshlrev_b32 v1, 6, v1
    v_lshl_add_u32 v{R['xa']}, v3, 4, v1
    v_xor_b32 v{R['xa']+1}, 32, v{R['xa']}
    v_add_u32 v{R['xa']+2}, {2*SLOT}, v{R['xa']}
    v_add_u32 v{R['xa']+3}, {2*SLOT}, v{R['xa']+1}
    v_bfe_u32 v1, v250, 2, 2
    v_lshl_add_u32 v1, v2, 3, v1
    v_mul_u32_u24 v1, 192, v1
    v_bfe_u32 v3, v250, 4, 1
    v_lshl_add_u32 v1, v3, 5, v1
    v_and_b32 v3, 3, v250
    v_lshl_add_u32 v{R['wa']}, v3, 3, v1
    v_add_u32 v{R['wa']+1}, {2*SLOT}, v{R['wa']}
    """)

def g1_setup_B(A):
    R = RB
    m12, s12 = magic_div(12, 511); m14, s14 = magic_div(14, 511)
    LB, LE = A.label("sB"), A.label("sE")
    A(f"""
    s_load_dwordx2 s[6:7], s[0:1], {KARG['wqkv']}
    s_load_dwordx2 s[12:13], s[0:1], {KARG['win']}
    s_mov_b32 s26, 0
    s_cmp_eq_u32 s21, 2
    s_cselect_b32 s30, -1, 0
    s_mov_b32 s31, s30
    s_waitcnt lgkmcnt(0)
    s_cmp_ge_u32 s21, 2
    s_cselect_b32 s8, s12, s6
    s_cselect_b32 s9, s13, s7
    s_mov_b32 s10, {1024*6144}
    s_cmov_b32 s10, {1024*7168}
    s_mov_b32 s11, 0x00020000
    s_mov_b32 s27, {32*6144}
    s_cmov_b32 s27, {32*7168}
    s_cbranch_scc1 {LB}
    s_mul_i32 s3, s21, 3
    s_lshl_b32 s28, s3, 10
    s_add_u32 s28, s28, {WA_OFF}
    s_lshl_b32 s3, s3, 6
    s_lshl_b32 s6, s25, 6
    """)
    for j in range(4):
        A(f"""
        v_add_u32 v1, s3, v250
        v_add_u32 v1, {64*j}, v1
        v_mul_u32_u24 v2, {m12}, v1
        v_lshrrev_b32 v2, {s12}, v2
        v_mul_u32_u24 v3, 12, v2
        v_sub_u32 v3, v1, v3
        v_mul_u32_u24 v2, 6144, v2
        v_lshrrev_b32 v4, 2, v3
        v_lshl_add_u32 v2, v4, 11, v2
        v_and_b32 v3, 3, v3
        v_lshl_add_u32 v2, v3, 4, v2
        v_add_u32 v2, s6, v2
        v_subrev_u32 v{R['dv']+j}, {1024*j}, v2
        """)
    A(f"""
    s_branch {LE}
    {LB}:
    s_sub_u32 s3, s21, 2
    s_lshl_b32 s3, s3, 2
    s_lshl_b32 s28, s3, 10
    s_add_u32 s28, s28, {WB_OFF}
    s_lshl_b32 s3, s3, 6
    s_lshr_b32 s6, s24, 1
    s_mul_i32 s6, s6, 3584
    s_mul_i32 s7, s23, 448
    s_add_u32 s6, s6, s7
    s_and_b32 s7, s24, 1
    s_mul_i32 s7, s7, 224
    s_add_u32 s6, s6, s7
    """)
    for j in range(4):
        A(f"""
        v_add_u32 v1, s3, v250
        v_add_u32 v1, {64*j}, v1
        v_mul_u32_u24 v2, {m14}, v1
        v_lshrrev_b32 v2, {s14}, v2
        v_mul_u32_u24 v3, 14, v2
        v_sub_u32 v3, v1, v3
        v_and_b32 v4, 0x13, v2
        v_bfe_u32 v5, v2, 2, 1
        v_lshl_add_u32 v4, v5, 3, v4
        v_bfe_u32 v5, v2, 3, 1
        v_lshl_add_u32 v4, v5, 2, v4
        v_mul_u32_u24 v4, 7168, v4
        v_lshl_add_u32 v4, v3, 4, v4
        v_add_u32 v4, s6, v4
        v_subrev_u32 v{R['dv']+j}, {1024*j}, v4
        """)
    A(f"""
    {LE}:
    v_and_b32 v1, 15, v250
    v_lshrrev_b32 v2, 4, v250
    v_lshrrev_b32 v3, 3, v1
    v_mul_u32_u24 v4, 3, v3
    v_xor_b32 v4, v4, v2
    v_add_u32 v5, 1, v3
    v_xor_b32 v5, v5, v2
    s_lshl_b32 s6, s21, 6
    v_add_u32 v1, s6, v1
    v_lshlrev_b32 v1, 6, v1
    v_lshl_add_u32 v{R['xa']}, v4, 4, v1
    v_lshl_add_u32 v{R['xa']+1}, v5, 4, v1
    v_add_u32 v{R['xa']+1}, 1024, v{R['xa']+1}
    v_add_u32 v{R['xa']+2}, {2*SLOT}, v{R['xa']}
    v_add_u32 v{R['xa']+3}, {2*SLOT}, v{R['xa']+1}
    v_bfe_u32 v1, v250, 2, 2
    v_bfe_u32 v3, v250, 4, 1
    v_lshl_add_u32 v1, v3, 2, v1
    v_lshrrev_b32 v3, 5, v250
    v_lshl_add_u32 v1, v3, 4, v1
    v_mul_u32_u24 v1, 224, v1
    v_and_b32 v3, 3, v250
    v_lshl_add_u32 v{R['wa']}, v3, 3, v1
    v_add_u32 v{R['wa']+1}, {2*SLOT}, v{R['wa']}
    """)

def epi_A(A):
    srd(A, 12, 4, QF, 12 * MB)
    A(f"""
    s_lshl_b32 s3, s25, 6
    s_lshl_b32 s6, s22, 3
    s_add_u32 s3, s3, s6
    s_lshl_b32 s6, s21, 1
    s_add_u32 s3, s3, s6
    s_lshl_b32 s3, s3, 11
    v_lshlrev_b32 v200, 4, v250
    v_add_u32 v200, s3, v200
    s_mov_b32 s16, {fhex(QSCALE)}
    s_mov_b32 s17, {4*MB}
    s_mov_b32 s18, {8*MB}
    s_nop 4
    """)
    for b in (1, 2, 0):
        for rb in range(2):
            a0 = (rb * 3 + b) * 16
            if b == 0:
                for i in range(16): A(f"v_mul_f32 v{a0+i}, s16, v{a0+i}")
            d0 = 96 + (b * 2 + rb) * 8
            for i in range(8): A(f"v_cvt_pk_bf16_f32 v{d0+i}, v{a0+2*i}, v{a0+2*i+1}")
            so = ("0", "s17", "s18")[b]
            for f in range(2): A(f"buffer_store_dwordx4 {vr(d0+4*f,4)}, v200, s[12:15], {so} offen offset:{(rb*2+f)*1024}")

def gelu_pairs(A, regs, tmp, cst):
    c0, c1, one = vr(cst, 2), vr(cst + 2, 2), vr(cst + 4, 2)
    G = 4
    for i in range(0, len(regs), G):
        grp = regs[i:i + G]
        T = [tmp + 2 * k for k in range(len(grp))]
        for x, t in zip(grp, T): A(f"v_pk_mul_f32 {vr(t,2)}, {vr(x,2)}, {vr(x,2)}")
        for x, t in zip(grp, T): A(f"v_pk_fma_f32 {vr(t,2)}, {vr(t,2)}, {c1}, {c0}")
        for x, t in zip(grp, T): A(f"v_pk_mul_f32 {vr(t,2)}, {vr(t,2)}, {vr(x,2)}")
        for x, t in zip(grp, T): A(f"v_exp_f32 v{t}, v{t}\nv_exp_f32 v{t+1}, v{t+1}")
        for x, t in zip(grp, T): A(f"v_pk_add_f32 {vr(t,2)}, {vr(t,2)}, {one}")
        for x, t in zip(grp, T): A(f"v_rcp_f32 v{t}, v{t}\nv_rcp_f32 v{t+1}, v{t+1}")
        for x, t in zip(grp, T): A(f"v_pk_mul_f32 {vr(x,2)}, {vr(x,2)}, {vr(t,2)}")

def reduce4(A, S):
    A(f"""
    s_nop 1
    v_permlane16_swap_b32 v{S}, v{S+1}
    v_permlane16_swap_b32 v{S+2}, v{S+3}
    v_add_f32 v{S}, v{S}, v{S+1}
    v_add_f32 v{S+2}, v{S+2}, v{S+3}
    s_nop 1
    v_permlane32_swap_b32 v{S}, v{S+2}
    v_add_f32 v{S}, v{S}, v{S+2}
    """)

def bcast4(A, T, D):
    A(f"""
    v_mov_b32 v{D}, v{T}
    v_mov_b32 v{D+4}, v{T}
    s_nop 1
    v_permlane32_swap_b32 v{D}, v{D+4}
    v_mov_b32 v{D+2}, v{D}
    v_mov_b32 v{D+6}, v{D+4}
    s_nop 1
    v_permlane16_swap_b32 v{D}, v{D+2}
    v_permlane16_swap_b32 v{D+4}, v{D+6}
    v_mov_b32 v{D+1}, v{D}
    v_mov_b32 v{D+3}, v{D+2}
    v_mov_b32 v{D+5}, v{D+4}
    v_mov_b32 v{D+7}, v{D+6}
    """)

def z2_store(A, srdn, P):
    k = 0
    for st in range(4):
        so = "0" if st < 2 else "s17"
        for ft in (0, 2, 4):
            d = P + 4 * (k % 4); k += 1
            for u in range(2):
                a = (st * 7 + ft + u) * 4
                A(f"v_cvt_pk_bf16_f32 v{d+2*u}, v{a}, v{a+1}\nv_cvt_pk_bf16_f32 v{d+2*u+1}, v{a+2}, v{a+3}")
            A(f"s_nop 1\nv_permlane16_swap_b32 v{d}, v{d+2}\nv_permlane16_swap_b32 v{d+1}, v{d+3}")
            A(f"buffer_store_dwordx4 {vr(d,4)}, v208, {sr(srdn,4)}, {so} offen offset:{(st&1)*3584+32*ft}")
        if st & 1:
            d = P + 4 * (k % 4); k += 1
            for u in range(2):
                a = ((st - 1 + u) * 7 + 6) * 4
                A(f"v_cvt_pk_bf16_f32 v{d+2*u}, v{a}, v{a+1}\nv_cvt_pk_bf16_f32 v{d+2*u+1}, v{a+2}, v{a+3}")
            A(f"s_nop 1\nv_permlane16_swap_b32 v{d}, v{d+2}\nv_permlane16_swap_b32 v{d+1}, v{d+3}")
            A(f"buffer_store_dwordx4 {vr(d,4)}, v209, {sr(srdn,4)}, {so} offen")

def epi_B(A, name):
    LZ2, LEND = A.label("z2"), A.label("eB")
    CS, TM = 112, 120
    A(f"""
    v_mov_b32 v{CS}, {fhex(GC0)}
    v_mov_b32 v{CS+1}, {fhex(GC0)}
    v_mov_b32 v{CS+2}, {fhex(GC1)}
    v_mov_b32 v{CS+3}, {fhex(GC1)}
    v_mov_b32 v{CS+4}, 1.0
    v_mov_b32 v{CS+5}, 1.0
    s_nop 1
    """)
    gelu_pairs(A, list(range(0, 112, 2)), TM, CS)
    stamp(A, 5)
    A(f"s_cmp_ge_u32 s24, 2\ns_cbranch_scc1 {LZ2}")
    srd(A, 12, 4, Z1F, ZBYTES)
    A(f"""
    v_and_b32 v1_, 15, v250
    """.replace("v1_", "v130"))
    A(f"""
    v_lshrrev_b32 v131, 5, v250
    v_lshl_add_u32 v130, v131, 4, v130
    v_bfe_u32 v131, v250, 4, 1
    v_lshl_add_u32 v130, v131, 5, v130
    v_lshlrev_b32 v130, 5, v130
    s_lshl_b32 s3, s23, 6
    s_lshl_b32 s6, s22, 3
    s_add_u32 s3, s3, s6
    s_lshl_b32 s6, s21, 1
    s_add_u32 s3, s3, s6
    s_mul_i32 s3, s3, {7*2048}
    v_add_u32 v130, s3, v130
    v_add_u32 v131, {7*2048}, v130
    s_mul_i32 s3, s24, 7
    """)
    for ft in range(7):
        A(f"""
        s_add_u32 s6, s3, {ft}
        s_lshr_b32 s7, s6, 1
        s_lshl_b32 s7, s7, 11
        s_and_b32 s6, s6, 1
        s_lshl_b32 s6, s6, 4
        s_add_u32 s{40+ft}, s6, s7
        """)
    k = 0
    for sp in range(2):
        for ft in range(7):
            d = 136 + 4 * (k % 4); k += 1
            for u in range(2):
                a = ((2 * sp + u) * 7 + ft) * 4
                A(f"v_cvt_pk_bf16_f32 v{d+2*u}, v{a}, v{a+1}\nv_cvt_pk_bf16_f32 v{d+2*u+1}, v{a+2}, v{a+3}")
            A(f"s_nop 1\nv_permlane32_swap_b32 v{d}, v{d+2}\nv_permlane32_swap_b32 v{d+1}, v{d+3}")
            A(f"buffer_store_dwordx4 {vr(d,4)}, v{130+sp}, s[12:15], s{40+ft} offen")
    A(f"s_branch {LEND}\n{LZ2}:")
    S = 128
    for st in range(4):
        a = st * 28
        A(f"v_pk_add_f32 {vr(S+2*st,2)}, {vr(a,2)}, {vr(a+2,2)}")
    for i in range(2, 14):
        for st in range(4):
            A(f"v_pk_add_f32 {vr(S+2*st,2)}, {vr(S+2*st,2)}, {vr(st*28+2*i,2)}")
    for st in range(4): A(f"v_add_f32 v{136+st}, v{S+2*st}, v{S+2*st+1}")
    reduce4(A, 136)
    A(f"v_mul_f32 v137, {fhex(-1/112)}, v136")
    bcast4(A, 137, 140)
    for i in range(14):
        for st in range(4):
            A(f"v_pk_add_f32 {vr(148+2*st,2)}, {vr(st*28+2*i,2)}, {vr(140+2*st,2)}")
        for st in range(4):
            if i == 0: A(f"v_pk_mul_f32 {vr(S+2*st,2)}, {vr(148+2*st,2)}, {vr(148+2*st,2)}")
            else: A(f"v_pk_fma_f32 {vr(S+2*st,2)}, {vr(148+2*st,2)}, {vr(148+2*st,2)}, {vr(S+2*st,2)}")
    for st in range(4): A(f"v_add_f32 v{156+st}, v{S+2*st}, v{S+2*st+1}")
    reduce4(A, 156)
    A("v_mov_b32 v137, v156")
    srd(A, 12, 4, STAT, 16 * 2048 * 8)
    srd(A, 36, 4, Z2, ZBYTES)
    A(f"""
    s_lshl_b32 s3, s23, 1
    s_add_u32 s3, s3, s24
    s_sub_u32 s3, s3, 2
    s_lshl_b32 s3, s3, 11
    s_lshl_b32 s6, s22, 8
    s_add_u32 s3, s3, s6
    s_lshl_b32 s6, s21, 6
    s_add_u32 s3, s3, s6
    v_add_u32 v160, s3, v250
    v_lshlrev_b32 v160, 3, v160
    buffer_store_dwordx2 v[136:137], v160, s[12:15], 0 offen
    s_mul_i32 s3, s3, 224
    v_and_b32 v161, 15, v250
    v_bfe_u32 v162, v250, 4, 1
    v_lshrrev_b32 v163, 5, v250
    v_mul_u32_u24 v208, 224, v161
    v_lshl_add_u32 v208, v163, 4, v208
    v_add_u32 v208, s3, v208
    v_mul_u32_u24 v209, 3584, v162
    v_add_u32 v209, v209, v208
    v_add_u32 v209, 192, v209
    v_lshl_add_u32 v208, v162, 5, v208
    s_mov_b32 s17, 7168
    """)
    z2_store(A, 36, 164)
    A(f"{LEND}:")

def gen_g1(A, name="g1_kernel"):
    kstart(A, name)
    LB = A.label("roleB")
    A(f"""
    s_cmp_ge_u32 s2, 256
    s_cbranch_scc1 {name}_end
    s_load_dwordx2 s[4:5], s[0:1], {KARG['ws']}
    """)
    ids(A)
    stamp(A, 0); stamp(A, 8, True)
    A(f"s_waitcnt lgkmcnt(0)\ns_cmp_ge_u32 s20, 4\ns_cbranch_scc1 {LB}")
    g1_setup_A(A)
    stamp(A, 1)
    g1_main(A, "A", RA, 96)
    stamp(A, 4); stamp(A, 5)
    epi_A(A)
    stamp(A, 6)
    if common.PROFILE: A("s_waitcnt vmcnt(0)")
    stamp(A, 7); stamp(A, 9, True)
    prof_store(A, 10, 0)
    A(f"s_endpgm\n{LB}:")
    g1_setup_B(A)
    stamp(A, 1)
    g1_main(A, "B", RB, 112)
    stamp(A, 4)
    epi_B(A, name)
    stamp(A, 6)
    if common.PROFILE: A("s_waitcnt vmcnt(0)")
    stamp(A, 7); stamp(A, 9, True)
    prof_store(A, 10, 0)
    A(f"{name}_end:\ns_endpgm")
    A.raw(kd(name))

def gen_norm(A, name="norm_kernel"):
    kstart(A, name)
    m14, s14 = magic_div(14, 511)
    A(f"""
    s_cmp_ge_u32 s2, 1024
    s_cbranch_scc1 {name}_end
    s_load_dwordx2 s[4:5], s[0:1], {KARG['ws']}
    s_waitcnt lgkmcnt(0)
    """)
    srd(A, 8, 4, STAT, 16 * 2048 * 8); srd(A, 12, 4, Z2, ZBYTES); srd(A, 16, 4, Z2N, ZBYTES)
    A(f"""
    v_mul_u32_u24 v1, {m14}, v0
    v_lshrrev_b32 v1, {s14}, v1
    s_and_b32 s3, s2, 63
    s_lshl_b32 s3, s3, 5
    v_add_u32 v1, s3, v1
    v_lshlrev_b32 v1, 3, v1
    s_mul_i32 s3, s2, {32*224}
    v_lshlrev_b32 v2, 4, v0
    v_add_u32 v2, s3, v2
    buffer_load_dwordx4 v[4:7], v2, s[12:15], 0 offen
    """)
    for ct in range(16):
        A(f"s_mov_b32 s20, {ct*16384}\nbuffer_load_dwordx2 {vr(16+2*ct,2)}, v1, s[8:11], s20 offen")
    A("s_waitcnt vmcnt(0)")
    stats_combine(A, 16, 48)
    for i in range(4):
        A(f"v_lshlrev_b32 v{8+2*i}, 16, v{4+i}\nv_and_b32 v{9+2*i}, 0xffff0000, v{4+i}")
    for i in range(8): A(f"v_sub_f32 v{8+i}, v{8+i}, v48")
    for i in range(4): A(f"v_cvt_pk_bf16_f32 v{4+i}, v{8+2*i}, v{9+2*i}")
    for i in range(4):
        A(f"v_lshlrev_b32 v{8+2*i}, 16, v{4+i}\nv_and_b32 v{9+2*i}, 0xffff0000, v{4+i}")
    for i in range(8): A(f"v_mul_f32 v{8+i}, v{8+i}, v49")
    for i in range(4): A(f"v_cvt_pk_bf16_f32 v{4+i}, v{8+2*i}, v{9+2*i}")
    A(f"buffer_store_dwordx4 v[4:7], v2, s[16:19], 0 offen\n{name}_end:\ns_endpgm")
    A.raw(kd(name, 64, 64, 32))

def stats_combine(A, P, D):
    A(f"v_add_f32 v{D}, v{P}, v{P+2}")
    for ct in range(2, 16): A(f"v_add_f32 v{D}, v{D}, v{P+2*ct}")
    A(f"v_mul_f32 v{D}, {fhex(1/1792)}, v{D}")
    A(f"v_add_f32 v{D+1}, v{P+1}, v{P+3}")
    for ct in range(2, 16): A(f"v_add_f32 v{D+1}, v{D+1}, v{P+2*ct+1}")
    A(f"v_mov_b32 v{D+2}, {fhex(1/112)}\nv_mov_b32 v{D+3}, 0")
    for ct in range(16): A(f"v_fma_f32 v{P+2*ct}, v{P+2*ct}, v{D+2}, -v{D}")
    for ct in range(16): A(f"v_fmac_f32 v{D+3}, v{P+2*ct}, v{P+2*ct}")
    A(f"v_fmac_f32 v{D+1}, {fhex(112.0)}, v{D+3}")
    A(f"v_mul_f32 v{D+1}, {fhex(1/1792)}, v{D+1}")
    bf16_round(A, D, D); bf16_round(A, D + 1, D + 1)
    A(f"v_add_f32 v{D+1}, {fhex(1e-5)}, v{D+1}")
    bf16_round(A, D + 1, D + 1)
    A(f"v_sqrt_f32 v{D+1}, v{D+1}\ns_nop 0")
    bf16_round(A, D + 1, D + 1)
    A(f"v_rcp_f32 v{D+1}, v{D+1}\ns_nop 0")
```

```python
import sys
from common import *
import common
from k_g1 import gelu_pairs, reduce4, bcast4, stats_combine, QSCALE, GC0, GC1

OPT = {"pa1": 3, "pa1b": 1, "pb1": 2, "pb2": 2, "pb2e": 2, "pb3": 0, "pa2": 3, "mw": 5}
_stamp = stamp
def stamp(A, k, real=False, force=False):
    if OPT.get("hs") and k in (7, 8, 9) and not force: return
    _stamp(A, k, True)
NAME = "recurrent_scan__mha_block__mixer_gmlp__prompt_kernel"
XSLOT = 32768; WSLOT = 13312; WRING = 3 * XSLOT; WBO = 6144
AREG = 0; KV_SLOT = 16384
BREG = 49152; SP_SLOT = 36864; SPW = 28672
FREG = {"A": 0, "B": 49152}; SPX = 49152; XCH = {"A": 32768, "B": 114688}
FLG = BREG + 3 * SP_SLOT
NONCE = FLG + 2048
LDS = FLG + 2048 + 64
LANE, VF_, VG, VP, VT, L16 = 250, 246, 247, 248, 249, 245
PT = dict(x=48, wqkv=50, wo=52, win=56, wsp=58, bsp=60, wout=62, out=44, dbg=46, ws=4)
SC = "sc1"
LOG2E = 1.4426950408889634
COLD = []

def arrive(): return [f"v_add_u32 v{VP}, 1, v{VP}", f"ds_write_b32 v{VF_}, v{VP}"]
def poll_issue(): return [f"ds_read_b32 v{VT}, v{VG}"]
def poll_check(A, slp=0, G=None, P=None):
    G = VG if G is None else G; P = f"v{VP}" if P is None else P
    L, Lok = A.label("spin"), A.label("ok")
    cmpi = f"v_cmp_gt_u32 vcc, {P}, v{VT}"
    COLD.extend([f"{L}:", "s_mov_b32 s97, 0x40000", f"{L}b:"] + ([f"s_sleep {slp}"] if slp else []) +
                [f"ds_read_b32 v{VT}, v{G}", "s_sub_u32 s97, s97, 1", "s_cmp_eq_u32 s97, 0", f"s_cbranch_scc1 {Lok}",
                 "s_waitcnt lgkmcnt(0)", cmpi, f"s_cbranch_vccnz {L}b", f"s_branch {Lok}"])
    return ["s_waitcnt lgkmcnt(0)", cmpi, f"s_cbranch_vccnz {L}", f"{Lok}:"]
def poll_split(A):
    c = poll_check(A)
    return c[:2], c[2:]
def gsync(A, slp=0):
    A.extend(arrive()); A.extend(poll_issue()); A.extend(poll_check(A, slp))
def rot3(s, size, base=0, n=3):
    return [f"s_add_u32 s{s}, s{s}, {size}", f"s_cmp_eq_u32 s{s}, {base + n * size}", f"s_cmov_b32 s{s}, {base}"]

def flag_wait(A, soff, lanes, slp=4):
    L, Ld = A.label("gp"), A.label("gpd")
    A(f"v_and_b32 v244, {lanes-1}, v{LANE}\nv_lshlrev_b32 v244, 7, v244\ns_mov_b32 s97, 0x8000\n{L}:")
    A(f"buffer_load_dword v242, v244, s[32:35], s{soff} offen {SC}")
    A("s_waitcnt vmcnt(0)\nv_cmp_ne_u32 vcc, s31, v242")
    A(f"s_cbranch_vccz {Ld}\ns_sleep {slp}\ns_sub_u32 s97, s97, 1\ns_cmp_lg_u32 s97, 0\ns_cbranch_scc1 {L}\n{Ld}:")
def handoff(A, sset, swait, lanes, between=None, slp=2, tag="", after=None, presync=False):
    Ls = A.label("fw")
    if between: A("s_nop 1"); between(A)
    dbg = OPT.get("hs") and tag == "xkzou"[OPT["hs"] - 1]
    if dbg: stamp(A, 7, force=True)
    A("s_waitcnt vmcnt(0)")
    if dbg: stamp(A, 8, force=True)
    A.extend(arrive())
    if presync: A.extend(poll_issue()); A.extend(poll_check(A))
    A(f"s_cmp_lg_u32 s21, 0\ns_cbranch_scc1 {Ls}")
    if not presync: A.extend(poll_issue()); A.extend(poll_check(A))
    if dbg: stamp(A, 9, force=True)
    A(f"""
    v_mov_b32 v242, 0
    v_mov_b32 v243, s31
    s_mov_b64 exec, 1
    buffer_store_dword v243, v242, s[32:35], s{sset} offen {SC}
    s_mov_b64 exec, -1
    """)
    if after:
        L2 = A.label("fw")
        A(f"{Ls}:"); after(A); Ls = L2
        A(f"s_cmp_lg_u32 s21, 0\ns_cbranch_scc1 {Ls}")
    flag_wait(A, swait, lanes)
    A(f"{Ls}:")
    gsync(A, slp)

def get_nonce(A):
    L, Ld = A.label("nn"), A.label("nnd")
    srd(A, 16, PT["dbg"], 0, 256)
    A(f"""
    v_mov_b32 v242, 0
    s_mov_b32 s97, 0x8000
    {L}:
    buffer_load_dword v243, v242, s[16:19], 0 offen {SC}
    s_waitcnt vmcnt(0)
    v_readfirstlane_b32 s31, v243
    s_sub_u32 s97, s97, 1
    s_cmp_eq_u32 s97, 0
    s_cbranch_scc1 {Ld}
    s_cmp_lg_u32 s31, 0
    s_cbranch_scc1 {Ld}
    s_sleep 4
    s_branch {L}
    {Ld}:
    v_mov_b32 v242, {NONCE}
    ds_write_b32 v242, v243
    """)

def start(A):
    A(f"""
    s_cmp_ge_u32 s2, 256
    s_cbranch_scc1 L_end
    s_load_dwordx16 s[48:63], s[0:1], 0
    s_load_dwordx4 s[44:47], s[0:1], 64
    s_load_dwordx2 s[4:5], s[0:1], 80
    v_lshrrev_b32 v1, 6, v0
    v_and_b32 v{LANE}, 63, v0
    v_readfirstlane_b32 s20, v1
    s_and_b32 s23, s2, 7
    s_lshr_b32 s36, s2, 3
    s_and_b32 s22, s36, 7
    s_lshr_b32 s24, s36, 3
    s_lshl_b32 s25, s23, 2
    s_add_u32 s25, s25, s24
    s_and_b32 s21, s20, 3
    s_and_b32 s37, s21, 1
    s_lshr_b32 s38, s21, 1
    s_lshr_b32 s100, s23, 1
    s_lshl_b32 s100, s100, 2
    s_and_b32 s3, s36, 3
    s_add_u32 s100, s100, s3
    s_and_b32 s101, s23, 1
    s_lshl_b32 s101, s101, 3
    s_lshr_b32 s3, s36, 2
    s_add_u32 s101, s101, s3
    v_lshlrev_b32 v{L16}, 4, v{LANE}
    s_lshl_b32 s3, s20, 8
    s_add_u32 s3, s3, {FLG}
    v_lshlrev_b32 v{VF_}, 2, v{LANE}
    v_and_b32 v{VG}, 3, v{LANE}
    v_lshlrev_b32 v{VG}, 8, v{VG}
    v_add_u32 v{VG}, v{VG}, v{VF_}
    v_add_u32 v{VF_}, s3, v{VF_}
    s_and_b32 s3, s20, 4
    s_lshl_b32 s3, s3, 8
    s_add_u32 s3, s3, {FLG}
    v_add_u32 v{VG}, s3, v{VG}
    v_mov_b32 v{VP}, 0
    ds_write_b32 v{VF_}, v{VP}
    s_waitcnt lgkmcnt(0)
    s_barrier
    """)
    srd(A, 32, PT["ws"], FLAGS, FBYTES)
    Ln = A.label("non")
    A(f"s_lshl_b32 s3, s2, 3\ns_add_u32 s3, s3, s20\ns_cmp_lg_u32 s3, 4\ns_cbranch_scc1 {Ln}")
    srd(A, 16, PT["dbg"], 0, 256)
    A(f"""
    s_memrealtime s[6:7]
    s_waitcnt lgkmcnt(0)
    s_or_b32 s3, s6, 1
    v_mov_b32 v1, s3
    v_mov_b32 v2, 0
    s_mov_b64 exec, 1
    buffer_store_dword v1, v2, s[16:19], 0 offen {SC}
    s_mov_b64 exec, -1
    {Ln}:
    """)

def ln_rows(A):
    srd(A, 8, PT["x"], 0, 4 * MB); srd(A, 12, PT["ws"], XN, 4 * MB)
    A(f"""
    s_lshl_b32 s3, s22, 8
    s_lshl_b32 s6, s25, 3
    s_add_u32 s3, s3, s6
    s_lshl_b32 s6, s21, 1
    s_add_u32 s3, s3, s6
    s_lshl_b32 s3, s3, 11
    v_add_u32 v1, s3, v{L16}
    """)
    for rr in range(2):
        for q in range(2): A(f"buffer_load_dwordx4 {vr(4+64*rr+4*q,4)}, v1, s[8:11], 0 offen offset:{2048*rr+1024*q}")
    get_nonce(A)
    streams = []
    for rr in range(2):
        B = Asm(); o = 64 * rr
        for i in range(8): B(f"v_lshlrev_b32 v{o+16+2*i}, 16, v{o+4+i}\nv_and_b32 v{o+17+2*i}, 0xffff0000, v{o+4+i}")
        for i in range(8): B(f"v_add_f32 v{o+32+i}, v{o+16+2*i}, v{o+17+2*i}")
        for i in range(4): B(f"v_add_f32 v{o+32+i}, v{o+32+i}, v{o+36+i}")
        B(f"v_add_f32 v{o+32}, v{o+32}, v{o+34}\nv_add_f32 v{o+33}, v{o+33}, v{o+35}\nv_add_f32 v{o+32}, v{o+32}, v{o+33}")
        wave_sum(B, o + 32, o + 33)
        B(f"v_mul_f32 v{o+32}, {fhex(1/1024)}, v{o+32}")
        for i in range(16): B(f"v_sub_f32 v{o+40+i}, v{o+16+i}, v{o+32}")
        B(f"v_mul_f32 v{o+34}, v{o+40}, v{o+40}\nv_mul_f32 v{o+35}, v{o+41}, v{o+41}")
        for i in range(2, 16): B(f"v_fmac_f32 v{o+34+(i&1)}, v{o+40+i}, v{o+40+i}")
        B(f"v_add_f32 v{o+34}, v{o+34}, v{o+35}")
        wave_sum(B, o + 34, o + 33)
        B(f"v_mul_f32 v{o+34}, {fhex(1/1024)}, v{o+34}")
        bf16_round(B, o + 32, o + 32); bf16_round(B, o + 34, o + 34)
        B(f"v_add_f32 v{o+34}, {fhex(1e-5)}, v{o+34}")
        bf16_round(B, o + 34, o + 34)
        B(f"v_sqrt_f32 v{o+34}, v{o+34}\ns_nop 0")
        bf16_round(B, o + 34, o + 34)
        B(f"v_rcp_f32 v{o+34}, v{o+34}")
        for i in range(16): B(f"v_sub_f32 v{o+40+i}, v{o+16+i}, v{o+32}")
        for i in range(8): B(f"v_cvt_pk_bf16_f32 v{o+56+i}, v{o+40+2*i}, v{o+41+2*i}")
        for i in range(8): B(f"v_lshlrev_b32 v{o+40+2*i}, 16, v{o+56+i}\nv_and_b32 v{o+41+2*i}, 0xffff0000, v{o+56+i}")
        for i in range(16): B(f"v_mul_f32 v{o+40+i}, v{o+40+i}, v{o+34}")
        for i in range(8): B(f"v_cvt_pk_bf16_f32 v{o+56+i}, v{o+40+2*i}, v{o+41+2*i}")
        for q in range(2): B(f"buffer_store_dwordx4 {vr(o+56+4*q,4)}, v1, s[12:15], 0 offen offset:{2048*rr+1024*q} {SC}")
        streams.append([l.strip().replace("s_nop 1", "s_nop 0") for l in B.lines])
    for a, b in zip(*streams):
        A(a)
        if not (a.startswith("s_nop") and b.startswith("s_nop")): A(b)
    A(f"s_lshl_b32 s43, s22, 12\ns_add_u32 s43, s43, {FX}\ns_lshl_b32 s42, s25, 7\ns_add_u32 s42, s42, s43")

GA = dict(frag=96, xr=176, xa=180, wr=184, wa=185, dv=186)
GB = dict(frag=112, xr=200, xa=202, wr=204, wa=205, dv=206)

def g1_dma(role, par, R):
    g = []
    for j in range(4):
        ins = []
        if role == "A":
            if j == 0: ins += [f"s_add_u32 m0, s94, s28" if par else "s_add_u32 m0, s94, s30", "s_nop 0"]
            ins.append(f"buffer_load_dwordx4 v{R['dv']+j}, s[8:11], {'s26' if par else 's27'} offen offset:{j*1024} {SC} lds")
            if j == 3 and not par: ins += ["s_add_u32 s26, s26, 128", "s_add_u32 s27, s27, 128"] + rot3(94, XSLOT)
        else:
            if j == 0: ins += ["s_add_u32 m0, s94, s28", "s_nop 0"]
            if j == 3: ins.append("s_mov_b64 exec, s[98:99]")
            ins.append(f"buffer_load_dwordx4 v{R['dv']+j}, s[8:11], s26 offen offset:{j*1024} lds")
            if j == 3: ins += ["s_mov_b64 exec, -1", "s_add_u32 s26, s26, s27"] + rot3(94, WSLOT, WRING, 4)
        g.append(ins)
    return g

def g1_addr(role, par, R):
    o = rot3(95, WSLOT, WRING, 4) + [f"v_add_u32 v{R['wa']}, s95, v{R['wr']}"]
    if par:
        o += rot3(96, XSLOT)
        for i in range(4 if role == "A" else 2): o.append(f"v_add_u32 v{R['xa']+i}, s96, v{R['xr']+i}")
    return o

def g1_step(role, par, dma, reads, R):
    cur = par; nxt = par ^ 1
    mf, rd = [], []
    if role == "A":
        fb = lambda buf: R["frag"] + 40 * buf
        xf = lambda buf, ks, rb: fb(buf) + 20 * ks + 4 * rb
        wf = lambda buf, ks, b: fb(buf) + 20 * ks + 8 + 4 * b
        for ks in range(2):
            for rb in range(2):
                for b in range(3):
                    acc = vr((rb * 3 + b) * 16, 16)
                    x_, w_ = vr(xf(cur, ks, rb), 4), vr(wf(cur, ks, b), 4)
                    mf.append(f"v_mfma_f32_32x32x16_bf16 {acc}, {w_}, {x_}, {acc}" if b < 2 else f"v_mfma_f32_32x32x16_bf16 {acc}, {x_}, {w_}, {acc}")
        for ks in range(2):
            for rb in range(2):
                rd.append(f"ds_read_b128 {vr(xf(nxt, ks, rb), 4)}, v{R['xa'] + 2 * nxt + ks} offset:{rb * 4096}")
            for b in range(3):
                for hf in range(2):
                    rd.append(f"ds_read_b64_tr_b16 {vr(wf(nxt, ks, b) + 2 * hf, 2)}, v{R['wa']} offset:{(16 * ks + 4 * hf) * 192 + 64 * b}")
    else:
        fb = lambda buf: R["frag"] + 44 * buf
        xf = lambda buf, st: fb(buf) + 4 * st
        wf = lambda buf, ft: fb(buf) + 16 + 4 * ft
        for ft in range(7):
            for st in range(4):
                acc = vr((st * 7 + ft) * 4, 4)
                mf.append(f"v_mfma_f32_16x16x32_bf16 {acc}, {vr(wf(cur, ft), 4)}, {vr(xf(cur, st), 4)}, {acc}")
        for st in range(4):
            rd.append(f"ds_read_b128 {vr(xf(nxt, st), 4)}, v{R['xa'] + nxt} offset:{st * 2048}")
        for ft in range(7):
            for hf in range(2):
                rd.append(f"ds_read_b64_tr_b16 {vr(wf(nxt, ft) + 2 * hf, 2)}, v{R['wa']} offset:{WBO + hf * 8 * 224 + 32 * ft}")
    if not reads: return mf, []
    ad = g1_addr(role, par, R)
    dm = g1_dma(role, par, R) if dma else []
    fill = [ad]
    k = 0; step = max(1, len(rd) // max(1, len(dm)))
    for i, r_ in enumerate(rd):
        fill.append(r_)
        if (i + 1) % step == 0 and k < len(dm): fill.append(dm[k]); k += 1
    fill += dm[k:]
    nlast = 2 if role == "A" else 5
    return interleave(mf[:-nlast], fill) + mf[-nlast:], ad + rd

def g1_setup_A(A):
    R = GA
    srd(A, 8, PT["ws"], XN, 4 * MB)
    A(f"""
    s_mov_b32 s26, 0
    s_mov_b32 s27, 65536
    s_lshl_b32 s28, s21, 13
    s_add_u32 s30, s28, 4096
    s_mov_b32 s94, 0
    v_lshrrev_b32 v1, 3, v{LANE}
    s_lshl_b32 s3, s22, 8
    s_lshl_b32 s6, s21, 6
    s_add_u32 s3, s3, s6
    v_add_u32 v1, s3, v1
    v_lshlrev_b32 v1, 11, v1
    v_lshrrev_b32 v2, 4, v{LANE}
    v_and_b32 v3, 7, v{LANE}
    v_xor_b32 v4, v2, v3
    v_xor_b32 v5, 4, v4
    v_lshl_add_u32 v4, v4, 4, v1
    v_lshl_add_u32 v5, v5, 4, v1
    v_mov_b32 v{R['dv']}, v4
    v_add_u32 v{R['dv']+1}, {16384-1024}, v5
    v_add_u32 v{R['dv']+2}, {2*(16384-1024)}, v4
    v_add_u32 v{R['dv']+3}, {3*(16384-1024)}, v5
    v_lshrrev_b32 v2, 5, v{LANE}
    v_and_b32 v1, 31, v{LANE}
    v_bfe_u32 v3, v{LANE}, 1, 3
    v_xor_b32 v3, v3, v2
    v_add_u32 v1, s6, v1
    v_lshlrev_b32 v1, 7, v1
    v_lshl_add_u32 v{R['xr']}, v3, 4, v1
    v_xor_b32 v{R['xr']+1}, 32, v{R['xr']}
    v_xor_b32 v{R['xr']+2}, 64, v{R['xr']}
    v_xor_b32 v{R['xr']+3}, 96, v{R['xr']}
    v_bfe_u32 v1, v{LANE}, 2, 2
    v_lshl_add_u32 v1, v2, 3, v1
    v_mul_u32_u24 v1, 192, v1
    v_bfe_u32 v3, v{LANE}, 4, 1
    v_lshl_add_u32 v1, v3, 5, v1
    v_and_b32 v3, 3, v{LANE}
    v_lshl_add_u32 v{R['wr']}, v3, 3, v1
    """)

def g1_setup_B(A):
    R = GB
    m12, s12 = magic_div(12, 511); m14, s14 = magic_div(14, 511)
    LB, LE = A.label("sB"), A.label("sE")
    A(f"""
    s_mov_b32 s26, 0
    s_mov_b32 s94, {WRING}
    s_cmp_eq_u32 s21, 2
    s_cselect_b32 s98, -1, 0
    s_mov_b32 s99, s98
    s_cmp_ge_u32 s21, 2
    s_cselect_b32 s8, s{PT['win']}, s{PT['wqkv']}
    s_cselect_b32 s9, s{PT['win']+1}, s{PT['wqkv']+1}
    s_mov_b32 s10, {1024*6144}
    s_cmov_b32 s10, {1024*7168}
    s_mov_b32 s11, 0x00020000
    s_mov_b32 s27, {32*6144}
    s_cmov_b32 s27, {32*7168}
    s_cbranch_scc1 {LB}
    s_mul_i32 s3, s21, 3
    s_lshl_b32 s28, s3, 10
    s_lshl_b32 s3, s3, 6
    s_lshl_b32 s39, s25, 6
    """)
    for j in range(4):
        A(f"""
        v_add_u32 v1, s3, v{LANE}
        v_add_u32 v1, {64*j}, v1
        v_mul_u32_u24 v2, {m12}, v1
        v_lshrrev_b32 v2, {s12}, v2
        v_mul_u32_u24 v3, 12, v2
        v_sub_u32 v3, v1, v3
        v_mul_u32_u24 v2, 6144, v2
        v_lshrrev_b32 v4, 2, v3
        v_lshl_add_u32 v2, v4, 11, v2
        v_and_b32 v3, 3, v3
        v_lshl_add_u32 v2, v3, 4, v2
        v_add_u32 v2, s39, v2
        v_subrev_u32 v{R['dv']+j}, {1024*j}, v2
        """)
    A(f"""
    s_add_u32 s40, s39, 2048
    s_add_u32 s41, s39, 4096
    s_branch {LE}
    {LB}:
    s_sub_u32 s3, s21, 2
    s_lshl_b32 s3, s3, 2
    s_lshl_b32 s28, s3, 10
    s_add_u32 s28, s28, {WBO}
    s_lshl_b32 s3, s3, 6
    s_lshr_b32 s39, s24, 1
    s_mul_i32 s39, s39, 3584
    s_mul_i32 s7, s23, 448
    s_add_u32 s39, s39, s7
    s_and_b32 s7, s24, 1
    s_mul_i32 s7, s7, 224
    s_add_u32 s39, s39, s7
    """)
    for j in range(4):
        A(f"""
        v_add_u32 v1, s3, v{LANE}
        v_add_u32 v1, {64*j}, v1
        v_mul_u32_u24 v2, {m14}, v1
        v_lshrrev_b32 v2, {s14}, v2
        v_mul_u32_u24 v3, 14, v2
        v_sub_u32 v3, v1, v3
        v_and_b32 v4, 0x13, v2
        v_bfe_u32 v5, v2, 2, 1
        v_lshl_add_u32 v4, v5, 3, v4
        v_bfe_u32 v5, v2, 3, 1
        v_lshl_add_u32 v4, v5, 2, v4
        v_mul_u32_u24 v4, 7168, v4
        v_lshl_add_u32 v4, v3, 4, v4
        v_add_u32 v4, s39, v4
        v_subrev_u32 v{R['dv']+j}, {1024*j}, v4
        """)
    A(f"s_add_u32 s40, s39, 128\ns_add_u32 s41, s39, 220\n{LE}:")

def g1_setup_B2(A):
    R = GB
    A(f"""
    v_and_b32 v1, 15, v{LANE}
    v_lshrrev_b32 v2, 4, v{LANE}
    v_lshrrev_b32 v3, 1, v1
    v_xor_b32 v4, v3, v2
    s_lshl_b32 s6, s21, 6
    v_add_u32 v1, s6, v1
    v_lshlrev_b32 v1, 7, v1
    v_lshl_add_u32 v{R['xr']}, v4, 4, v1
    v_xor_b32 v{R['xr']+1}, 64, v{R['xr']}
    v_bfe_u32 v1, v{LANE}, 2, 2
    v_bfe_u32 v3, v{LANE}, 4, 1
    v_lshl_add_u32 v1, v3, 2, v1
    v_lshrrev_b32 v3, 5, v{LANE}
    v_lshl_add_u32 v1, v3, 4, v1
    v_mul_u32_u24 v1, 224, v1
    v_and_b32 v3, 3, v{LANE}
    v_lshl_add_u32 v{R['wr']}, v3, 3, v1
    """)

def w_touch(A):
    A(f"""
    s_lshl_b32 s3, s37, 6
    s_lshl_b32 s6, s22, 7
    s_add_u32 s3, s3, s6
    v_add_u32 v212, s3, v{LANE}
    s_lshr_b32 s3, s27, 5
    v_mul_lo_u32 v212, v212, s3
    buffer_load_dword v213, v212, s[8:11], s39 offen
    buffer_load_dword v213, v212, s[8:11], s40 offen
    buffer_load_dword v213, v212, s[8:11], s41 offen
    """)
    return 3

def g1_main(A, role, R, nacc, extra):
    A(f"s_mov_b32 s95, {WRING + 3*WSLOT}\ns_mov_b32 s96, {2*XSLOT}")
    for i in range(nacc): A(f"v_mov_b32 v{i}, 0")
    A(f"s_waitcnt vmcnt({12 + extra})\ns_barrier")
    if role == "B": stamp(A, 1)
    A.extend(g1_step(role, 1, False, True, R)[1])
    A(f"s_waitcnt vmcnt({8 + extra}) lgkmcnt(0)" if role == "B" else "s_waitcnt lgkmcnt(0)")
    def pair(dma, vm, reads=(1, 1), tail=None):
        for par in range(2):
            A("s_barrier")
            A.extend(g1_step(role, par, dma[par], reads[par], R)[0])
            if par == 1 and tail: A(tail)
            w = ([f"vmcnt({vm[par]})"] if vm[par] is not None else []) + (["lgkmcnt(0)"] if reads[par] else [])
            if w: A("s_waitcnt " + " ".join(w))
    L = A.label("g1" + role)
    A(f"s_mov_b32 s29, 13\n{L}:")
    if role == "B" and OPT.get("mw"):
        Lw = A.label("mw")
        A(f"s_cmp_eq_u32 s29, {13 - OPT['mw']}\ns_cbranch_scc1 {Lw}\n{Lw}r:")
        B = Asm(); B(Lw + ":"); mall_warm(B); B(f"s_branch {Lw}r")
        COLD.extend(l.strip() for l in B.lines)
    pair((1, 1), (8, None) if role == "A" else (8, 8), tail="s_sub_u32 s29, s29, 1\ns_cmp_lg_u32 s29, 0")
    A(f"s_cbranch_scc1 {L}")
    if role == "A":
        pair((1, 0), (8, None)); pair((0, 0), (0, None)); pair((0, 0), (None, None), (1, 0))
    else:
        pair((1, 1), (8, 8)); pair((0, 0), (4, 0))
        pair((0, 0), (None, None), (1, 0))

RA = dict(O=0, S=32, Pk=64, Q=96, K=112, V=120, L=128, ONE=136, IDX=140, cur=141, nxt=142, dk=143, dv=144, tmp=148)

def epi_A(A):
    R = RA
    srd(A, 8, PT["ws"], KF, 8 * MB)
    A(f"""
    s_lshl_b32 s3, s25, 6
    s_lshl_b32 s6, s22, 3
    s_add_u32 s3, s3, s6
    s_lshl_b32 s6, s21, 1
    s_add_u32 s3, s3, s6
    s_lshl_b32 s6, s3, 11
    s_add_u32 s7, s6, {4*MB}
    s_mov_b32 s16, {fhex(QSCALE)}
    s_nop 1
    """)
    for b in (1, 2):
        for rb in range(2):
            a0 = (rb * 3 + b) * 16; d0 = 112 + ((b - 1) * 2 + rb) * 8
            for i in range(8): A(f"v_cvt_pk_bf16_f32 v{d0+i}, v{a0+2*i}, v{a0+2*i+1}")
            for f in range(2): A(f"buffer_store_dwordx4 {vr(d0+4*f,4)}, v{L16}, s[8:11], s{5+b} offen offset:{(rb*2+f)*1024} {SC}")
    for rb in range(2):
        a0 = rb * 48
        for i in range(16): A(f"v_mul_f32 v{a0+i}, s16, v{a0+i}")
        for i in range(8): A(f"v_cvt_pk_bf16_f32 v{R['Q']+8*rb+i}, v{a0+2*i}, v{a0+2*i+1}")
    A(f"s_lshl_b32 s43, s25, 10\ns_add_u32 s43, s43, {FKV}\ns_lshl_b32 s42, s22, 7\ns_add_u32 s42, s42, s43")

def attn_slot(n, extra_mid=None, extra_end=None):
    R = RA
    qb = n & 1; b = n >> 1
    S = R["S"] + 16 * qb; Sn = R["S"] + 16 * (qb ^ 1)
    P = R["Pk"] + 8 * qb; Pp = R["Pk"] + 8 * (qb ^ 1)
    qn = qb ^ 1
    K, V, Q, O, L = R["K"], R["V"], R["Q"] + 8 * qn, R["O"] + 16 * qn, R["L"] + 4 * qn
    valu = []
    head = [f"v_cvt_pk_bf16_f32 v{Pp+7}, v{Sn+14}, v{Sn+15}"]
    for i in range(16):
        valu.append(f"v_exp_f32 v{S+i}, v{S+i}")
        p2 = i - 3
        if p2 >= 0 and p2 % 2 == 0: valu.append(f"v_cvt_pk_bf16_f32 v{P+p2//2}, v{S+p2}, v{S+p2+1}")
    M = [f"v_mfma_f32_32x32x16_bf16 {vr(Sn,16)}, {vr(K,4)}, {vr(Q,4)}, 0",
         f"v_mfma_f32_32x32x16_bf16 {vr(Sn,16)}, {vr(K+4,4)}, {vr(Q+4,4)}, {vr(Sn,16)}",
         f"v_mfma_f32_32x32x16_bf16 {vr(O,16)}, {vr(V,4)}, {vr(Pp,4)}, {vr(O,16)}",
         f"v_mfma_f32_32x32x16_bf16 {vr(O,16)}, {vr(V+4,4)}, {vr(Pp+4,4)}, {vr(O,16)}",
         f"v_smfmac_f32_16x16x64_bf16 {vr(L,4)}, {vr(R['ONE'],4)}, {vr(Pp,8)}, v{R['IDX']}"]
    pre = [[] for _ in range(5)]; post = [[] for _ in range(5)]
    if qb == 1: pre[0].append("s_waitcnt lgkmcnt(0)")
    if qb == 0:
        ka, ko = (R["cur"], (b + 1) * 4096) if b < 3 else (R["nxt"], 0)
        post[1] += [f"ds_read_b128 {vr(K,4)}, v{ka} offset:{ko}", f"ds_read_b128 {vr(K+4,4)}, v{ka} offset:{ko+1024}"]
        post[3] += [f"ds_read_b128 {vr(V,4)}, v{R['cur']} offset:{b*4096+2048}", f"ds_read_b128 {vr(V+4,4)}, v{R['cur']} offset:{b*4096+3072}"]
    if extra_mid:
        for k, v in extra_mid.items(): post[k] += v
    out = list(head)
    cuts = [0, 4, 9, 14, 19, len(valu)]
    for g in range(5): out += pre[g] + [M[g]] + post[g] + valu[cuts[g]:cuts[g + 1]]
    return out + (extra_end or [])

def kv_dma():
    R = RA
    return [["s_add_u32 m0, s94, s28", "s_nop 0", f"buffer_load_dwordx4 v{R['dk']}, s[8:11], s26 offen {SC} lds"],
            [f"buffer_load_dwordx4 v{R['dk']}, s[8:11], s26 offen offset:1024 {SC} lds"],
            [f"buffer_load_dwordx4 v{R['dv']}, s[8:11], s26 offen offset:2048 {SC} lds"],
            [f"buffer_load_dwordx4 v{R['dv']}, s[8:11], s26 offen offset:3072 {SC} lds", "s_add_u32 s26, s26, 8192"] + rot3(94, KV_SLOT, AREG)]

def attn_setup(A):
    R = RA; t = R["tmp"]
    for i in range(32): A(f"v_mov_b32 v{R['O']+i}, 0")
    for i in range(16): A(f"v_mov_b32 v{R['Pk']+i}, 0\nv_mov_b32 v{R['S']+16+i}, 0")
    for i in range(8): A(f"v_mov_b32 v{R['V']+i}, 0\nv_mov_b32 v{R['L']+i}, 0")
    A(f"""
    v_and_b32 v{t}, 15, v{LANE}
    v_mov_b32 v{t+1}, 0x3f803f80
    v_cmp_gt_u32 vcc, 2, v{t}
    v_lshrrev_b32 v{t+2}, 1, v{t}
    s_nop 0
    v_cndmask_b32 v{R['ONE']}, 0, v{t+1}, vcc
    v_cndmask_b32 v{R['ONE']+1}, 0, v{t+1}, vcc
    v_cmp_eq_u32 vcc, 1, v{t+2}
    v_and_b32 v{t}, 1, v{t}
    v_mul_u32_u24 v{t}, 0xaaaa, v{t}
    v_cndmask_b32 v{R['ONE']+2}, 0, v{t+1}, vcc
    v_cndmask_b32 v{R['ONE']+3}, 0, v{t+1}, vcc
    v_add_u32 v{R['IDX']}, 0x4444, v{t}
    v_add_u32 v{R['cur']}, {AREG}, v{L16}
    v_add_u32 v{R['nxt']}, {AREG + KV_SLOT}, v{L16}
    s_mov_b32 s95, {AREG + KV_SLOT}
    s_lshl_b32 s3, s25, 17
    s_lshl_b32 s6, s21, 11
    s_add_u32 s6, s6, s3
    v_add_u32 v{R['dk']}, s6, v{L16}
    v_add_u32 v{R['dv']}, {4*MB-2048}, v{R['dk']}
    s_mov_b32 s26, 0
    s_lshl_b32 s28, s21, 12
    s_mov_b32 s94, {AREG}
    """)

def attn_main(A):
    R = RA
    for c in range(2):
        for g in kv_dma(): A.extend(g)
    A("s_waitcnt vmcnt(4)")
    gsync(A)
    K, Q, S = R["K"], R["Q"], R["S"]
    A(f"""
    ds_read_b128 {vr(K,4)}, v{R['cur']}
    ds_read_b128 {vr(K+4,4)}, v{R['cur']} offset:1024
    s_waitcnt lgkmcnt(0)
    v_mfma_f32_32x32x16_bf16 {vr(S,16)}, {vr(K,4)}, {vr(Q,4)}, 0
    v_mfma_f32_32x32x16_bf16 {vr(S,16)}, {vr(K+4,4)}, {vr(Q+4,4)}, {vr(S,16)}
    s_mov_b32 s29, 14
    s_nop 7
    s_nop 2
    """)
    stamp(A, 5)
    def chunk(dma, more, end7):
        for n in range(8):
            mid, end = None, None
            if n == 4 and more: mid = {4: ["s_waitcnt vmcnt(0)"] + arrive()}
            if n == 5 and more:
                c1, c2 = poll_split(A)
                mid = {1: poll_issue(), 4: c1}; end = c2
            if n == 6 and dma: d = kv_dma(); mid = {0: d[0], 2: d[1], 4: d[2]}
            if n == 7:
                if dma: mid = {1: kv_dma()[3]}
                end = end7
            A.extend(attn_slot(n, mid, end))
    adv = rot3(95, KV_SLOT, AREG) + [f"v_mov_b32 v{R['cur']}, v{R['nxt']}", f"v_add_u32 v{R['nxt']}, s95, v{L16}"]
    L = A.label("att")
    A(L + ":")
    chunk(True, True, adv + ["s_sub_u32 s29, s29, 1", "s_cmp_lg_u32 s29, 0", f"s_cbranch_scc1 {L}"])
    L2 = A.label("att")
    A(f"s_mov_b32 s29, 2\n{L2}:")
    chunk(False, True, adv + ["s_sub_u32 s29, s29, 1", "s_cmp_lg_u32 s29, 0", f"s_cbranch_scc1 {L2}"])
    V, Pp, O, Lq = R["V"], R["Pk"] + 8, R["O"] + 16, R["L"] + 4
    A(f"""
    v_cvt_pk_bf16_f32 v{Pp+7}, v{S+30}, v{S+31}
    s_nop 1
    v_mfma_f32_32x32x16_bf16 {vr(O,16)}, {vr(V,4)}, {vr(Pp,4)}, {vr(O,16)}
    v_mfma_f32_32x32x16_bf16 {vr(O,16)}, {vr(V+4,4)}, {vr(Pp+4,4)}, {vr(O,16)}
    v_smfmac_f32_16x16x64_bf16 {vr(Lq,4)}, {vr(R['ONE'],4)}, {vr(Pp,8)}, v{R['IDX']}
    s_nop 7
    s_nop 3
    """)

def attn_finish(A):
    R = RA; t = R["tmp"]; O = R["O"]
    for qb in range(2):
        L = R["L"] + 4 * qb
        A(f"""
        v_add_f32 v{L}, v{L}, v{L+1}
        v_add_f32 v{L+2}, v{L+2}, v{L+3}
        s_nop 1
        v_permlane16_swap_b32 v{L}, v{L+2}
        v_mov_b32 v{t+qb}, v{L}
        s_nop 1
        v_permlane32_swap_b32 v{t+qb}, v{L}
        """)
    LS, LD = A.label("slow"), A.label("fin")
    A(f"v_mul_f32 v{t+2}, 0, v{O}")
    for i in range(1, 32): A(f"v_fmac_f32 v{t+2}, 0, v{O+i}")
    A(f"""
    v_min_f32 v{t+3}, v{t}, v{t+1}
    v_max_f32 v{t+4}, v{t}, v{t+1}
    v_add_f32 v{t+3}, v{t+3}, v{t+2}
    v_add_f32 v{t+4}, v{t+4}, v{t+2}
    v_cmp_nle_f32 vcc, {fhex(2.0**-60)}, v{t+3}
    s_mov_b32 s42, {fhex(2.0**60)}
    v_cmp_nge_f32 s[40:41], s42, v{t+4}
    v_cmp_u_f32 s[42:43], v{t}, v{t+1}
    s_nop 1
    s_or_b64 vcc, vcc, s[40:41]
    s_or_b64 vcc, vcc, s[42:43]
    s_cbranch_vccnz {LS}
    {LD}:
    """)
    B = Asm(); B._lab = 9000
    B(LS + ":"); attn_slow(B); B(f"s_branch {LD}")
    COLD.extend(l.strip() for l in B.lines)
    srd(A, 12, PT["ws"], OF, 4 * MB)
    A(f"""
    v_rcp_f32 v{t}, v{t}
    v_rcp_f32 v{t+1}, v{t+1}
    s_lshl_b32 s6, s22, 3
    s_lshl_b32 s7, s21, 1
    s_add_u32 s6, s6, s7
    s_lshl_b32 s6, s6, 5
    s_add_u32 s6, s6, s25
    s_lshl_b32 s6, s6, 11
    s_add_u32 s7, s6, {32*2048}
    """)
    for qb in range(2):
        for i in range(16): A(f"v_mul_f32 v{O+16*qb+i}, v{O+16*qb+i}, v{t+qb}")
        d = R["Pk"] + 8 * qb
        for i in range(8): A(f"v_cvt_pk_bf16_f32 v{d+i}, v{O+16*qb+2*i}, v{O+16*qb+2*i+1}")
        for f in range(2): A(f"buffer_store_dwordx4 {vr(d+4*f,4)}, v{L16}, s[12:15], s{6+qb} offen offset:{1024*f} {SC}")
    A(f"""
    s_lshl_b32 s42, s22, 5
    s_add_u32 s42, s42, s25
    s_lshl_b32 s42, s42, 7
    s_add_u32 s42, s42, {FO}
    s_lshr_b32 s43, s100, 1
    s_lshl_b32 s43, s43, 12
    s_add_u32 s43, s43, {FO}
    """)

def attn_slow(A):
    R = RA; t = R["tmp"]; O, S, P, K, V, Q = R["O"], R["S"], R["Pk"], R["K"], R["V"], R["Q"]
    m = t + 4; al = t + 6; u = t + 7
    L = A.label("sl")
    for i in range(32): A(f"v_mov_b32 v{O+i}, 0")
    A(f"""
    v_mov_b32 v{t}, 0
    v_mov_b32 v{t+1}, 0
    v_mov_b32 v{m}, {fhex(-3.0e38)}
    v_mov_b32 v{m+1}, {fhex(-3.0e38)}
    s_lshl_b32 s26, s25, 17
    s_add_u32 s27, s26, {4*MB}
    s_mov_b32 s29, 64
    {L}:
    buffer_load_dwordx4 {vr(K,4)}, v{L16}, s[8:11], s26 offen {SC}
    buffer_load_dwordx4 {vr(K+4,4)}, v{L16}, s[8:11], s26 offen offset:1024 {SC}
    buffer_load_dwordx4 {vr(V,4)}, v{L16}, s[8:11], s27 offen {SC}
    buffer_load_dwordx4 {vr(V+4,4)}, v{L16}, s[8:11], s27 offen offset:1024 {SC}
    s_add_u32 s26, s26, 2048
    s_add_u32 s27, s27, 2048
    s_waitcnt vmcnt(0)
    """)
    for qb in range(2):
        Oq = O + 16 * qb
        A(f"""
        v_mfma_f32_32x32x16_bf16 {vr(S,16)}, {vr(K,4)}, {vr(Q+8*qb,4)}, 0
        v_mfma_f32_32x32x16_bf16 {vr(S,16)}, {vr(K+4,4)}, {vr(Q+8*qb+4,4)}, {vr(S,16)}
        s_nop 7
        s_nop 3
        v_max3_f32 v{u}, v{S}, v{S+1}, v{m+qb}
        """)
        for i in range(2, 16, 2): A(f"v_max3_f32 v{u}, v{S+i}, v{S+i+1}, v{u}")
        A(f"""
        v_mov_b32 v{al}, v{u}
        s_nop 1
        v_permlane32_swap_b32 v{al}, v{u}
        v_max_f32 v{u}, v{u}, v{al}
        v_sub_f32 v{al}, v{m+qb}, v{u}
        v_exp_f32 v{al}, v{al}
        v_mov_b32 v{m+qb}, v{u}
        """)
        for i in range(16): A(f"v_sub_f32 v{S+i}, v{S+i}, v{u}")
        for i in range(16): A(f"v_exp_f32 v{S+i}, v{S+i}")
        A(f"v_mul_f32 v{t+qb}, v{t+qb}, v{al}")
        for i in range(16): A(f"v_mul_f32 v{Oq+i}, v{Oq+i}, v{al}")
        for i in range(16): A(f"v_add_f32 v{t+qb}, v{t+qb}, v{S+i}")
        for i in range(8): A(f"v_cvt_pk_bf16_f32 v{P+i}, v{S+2*i}, v{S+2*i+1}")
        A(f"""
        s_nop 1
        v_mfma_f32_32x32x16_bf16 {vr(Oq,16)}, {vr(V,4)}, {vr(P,4)}, {vr(Oq,16)}
        v_mfma_f32_32x32x16_bf16 {vr(Oq,16)}, {vr(V+4,4)}, {vr(P+4,4)}, {vr(Oq,16)}
        """)
    A(f"s_sub_u32 s29, s29, 1\ns_cmp_lg_u32 s29, 0\ns_nop 7\ns_cbranch_scc1 {L}\ns_nop 3")
    for qb in range(2):
        A(f"v_mov_b32 v{u}, v{t+qb}\ns_nop 1\nv_permlane32_swap_b32 v{u}, v{t+qb}\nv_add_f32 v{t+qb}, v{t+qb}, v{u}")

def pack2(A, d, a, b, swap):
    A(f"v_cvt_pk_bf16_f32 v{d}, v{a}, v{a+1}\nv_cvt_pk_bf16_f32 v{d+1}, v{a+2}, v{a+3}")
    A(f"v_cvt_pk_bf16_f32 v{d+2}, v{b}, v{b+1}\nv_cvt_pk_bf16_f32 v{d+3}, v{b+2}, v{b+3}")
    A(f"s_nop 1\n{swap} v{d}, v{d+2}\n{swap} v{d+1}, v{d+3}")

def epi_B(A):
    LZ2, LH1, LEND = A.label("z2"), A.label("h1"), A.label("eB")
    CS, TM = 112, 120
    for i, c in enumerate((GC0, GC0, GC1, GC1)): A(f"v_mov_b32 v{CS+i}, {fhex(c)}")
    A(f"v_mov_b32 v{CS+4}, 1.0\nv_mov_b32 v{CS+5}, 1.0\ns_nop 1")
    gelu_pairs(A, list(range(0, 112, 2)), TM, CS)
    stamp(A, 3)
    A(f"s_mov_b32 s16, 4096\ns_mov_b32 s17, 8192\ns_mov_b32 s18, 12288\ns_cmp_ge_u32 s24, 2\ns_cbranch_scc1 {LZ2}")
    so = lambda k: ("0", "s16", "s17", "s18")[k >> 2]
    srd(A, 12, PT["ws"], Z1F, ZBYTES)
    A(f"""
    v_and_b32 v130, 15, v{LANE}
    v_lshrrev_b32 v131, 5, v{LANE}
    v_lshl_add_u32 v130, v131, 4, v130
    v_bfe_u32 v131, v{LANE}, 4, 1
    v_lshl_add_u32 v130, v131, 5, v130
    v_lshlrev_b32 v130, 4, v130
    s_lshl_b32 s3, s23, 6
    s_lshl_b32 s6, s22, 3
    s_add_u32 s3, s3, s6
    s_lshl_b32 s6, s21, 1
    s_add_u32 s3, s3, s6
    s_lshl_b32 s3, s3, 1
    s_add_u32 s3, s3, s24
    s_mul_i32 s3, s3, 7168
    v_add_u32 v130, s3, v130
    v_add_u32 v131, {7*2048}, v130
    """)
    k = 0
    for sp in range(2):
        for ft in range(7):
            d = 136 + 4 * (k % 4); k += 1
            pack2(A, d, ((2 * sp) * 7 + ft) * 4, ((2 * sp + 1) * 7 + ft) * 4, "v_permlane32_swap_b32")
            A(f"buffer_store_dwordx4 {vr(d,4)}, v{130+sp}, s[12:15], {so(ft)} offen offset:{(ft&3)*1024} {SC}")
    A(f"s_branch {LEND}\n{LZ2}:")
    S = 128
    for st in range(4): A(f"v_pk_add_f32 {vr(S+2*st,2)}, {vr(st*28,2)}, {vr(st*28+2,2)}")
    for i in range(2, 14):
        for st in range(4): A(f"v_pk_add_f32 {vr(S+2*st,2)}, {vr(S+2*st,2)}, {vr(st*28+2*i,2)}")
    for st in range(4): A(f"v_add_f32 v{136+st}, v{S+2*st}, v{S+2*st+1}")
    reduce4(A, 136)
    A(f"v_mul_f32 v137, {fhex(-1/112)}, v136")
    bcast4(A, 137, 140)
    for i in range(14):
        for st in range(4): A(f"v_pk_add_f32 {vr(148+2*st,2)}, {vr(st*28+2*i,2)}, {vr(140+2*st,2)}")
        for st in range(4):
            if i == 0: A(f"v_pk_mul_f32 {vr(S+2*st,2)}, {vr(148+2*st,2)}, {vr(148+2*st,2)}")
            else: A(f"v_pk_fma_f32 {vr(S+2*st,2)}, {vr(148+2*st,2)}, {vr(148+2*st,2)}, {vr(S+2*st,2)}")
    for st in range(4): A(f"v_add_f32 v{156+st}, v{S+2*st}, v{S+2*st+1}")
    reduce4(A, 156)
    srd(A, 12, PT["ws"], STAT, 16 * 2048 * 16)
    Lp, Lpd = A.label("stp"), A.label("std")
    A(f"""
    v_mov_b32 v137, s31
    v_mov_b32 v138, v156
    v_mov_b32 v139, s31
    s_lshl_b32 s6, s22, 8
    s_lshl_b32 s7, s21, 6
    s_add_u32 s6, s6, s7
    s_lshl_b32 s6, s6, 4
    v_add_u32 v160, s6, v{L16}
    s_lshl_b32 s3, s23, 1
    s_add_u32 s3, s3, s24
    s_sub_u32 s3, s3, 2
    s_lshl_b32 s3, s3, 15
    buffer_store_dwordx4 v[136:139], v160, s[12:15], s3 offen {SC}
    s_mov_b32 s97, 0x8000
    v_and_b32 v161, 15, v{LANE}
    v_lshlrev_b32 v161, 15, v161
    s_add_u32 s6, s6, {63*16+12}
    {Lp}:
    buffer_load_dword v162, v161, s[12:15], s6 offen {SC}
    s_sub_u32 s97, s97, 1
    s_cmp_eq_u32 s97, 0
    s_cbranch_scc1 {Lpd}
    s_waitcnt vmcnt(0)
    v_cmp_ne_u32 vcc, s31, v162
    s_cbranch_vccz {Lp}f
    s_sleep 4
    s_branch {Lp}
    {Lp}f:
    """)
    G = 164
    for ct in range(16): A(f"s_mov_b32 s3, {ct*32768}\nbuffer_load_dwordx4 {vr(G+4*ct,4)}, v160, s[12:15], s3 offen {SC}")
    A("s_waitcnt vmcnt(0)")
    A(f"v_xor_b32 v163, s31, v{G+1}")
    for ct in range(16):
        for u in (1, 3):
            if ct or u == 3: A(f"v_xor_b32 v162, s31, v{G+4*ct+u}\nv_or_b32 v163, v163, v162")
    A(f"""
    v_cmp_ne_u32 vcc, 0, v163
    s_cbranch_vccnz {Lp}
    {Lpd}:
    s_waitcnt vmcnt(0)
    """)
    for ct in range(16): A(f"v_mov_b32 v{128+2*ct}, v{G+4*ct}\nv_mov_b32 v{129+2*ct}, v{G+4*ct+2}")
    stats_combine(A, 128, 160)
    A("v_mul_f32 v160, v160, v161\nv_sub_f32 v160, 0, v160")
    bcast4(A, 161, 128); bcast4(A, 160, 136)
    for i in range(14):
        for st in range(4): A(f"v_pk_fma_f32 {vr(st*28+2*i,2)}, {vr(st*28+2*i,2)}, {vr(128+2*st,2)}, {vr(136+2*st,2)}")
    srd(A, 12, PT["ws"], Z2N, ZBYTES)
    A(f"""
    s_lshl_b32 s3, s23, 5
    s_lshl_b32 s6, s22, 2
    s_add_u32 s3, s3, s6
    s_add_u32 s3, s3, s21
    s_lshl_b32 s3, s3, 1
    s_and_b32 s6, s24, 1
    s_add_u32 s3, s3, s6
    s_mul_i32 s3, s3, 14336
    v_lshrrev_b32 v146, 4, v{LANE}
    v_lshlrev_b32 v146, 6, v146
    v_xor_b32 v146, v146, v{L16}
    v_add_u32 v146, s3, v146
    s_lshl_b32 s6, s6, 6
    v_xor_b32 v147, s6, v146
    s_cmp_eq_u32 s24, 3
    s_cbranch_scc1 {LH1}
    """)
    for half in range(2):
        n = 0
        for st in range(4):
            for p in range(3):
                ft = 2 * p + half; k = st * 3 + p; d = 148 + 4 * (n % 4); n += 1
                pack2(A, d, (st * 7 + ft) * 4, (st * 7 + ft + 1) * 4, "v_permlane16_swap_b32")
                A(f"buffer_store_dwordx4 {vr(d,4)}, v146, s[12:15], {so(k)} offen offset:{(k&3)*1024} {SC}")
            if st & 1:
                ft = 6 if half == 0 else 0; k = 12 + st // 2; d = 148 + 4 * (n % 4); n += 1
                pack2(A, d, ((st - 1) * 7 + ft) * 4, (st * 7 + ft) * 4, "v_permlane16_swap_b32")
                A(f"buffer_store_dwordx4 {vr(d,4)}, v147, s[12:15], {so(k)} offen offset:{(k&3)*1024} {SC}")
        if half == 0: A(f"s_branch {LEND}\n{LH1}:")
    A(f"""
    {LEND}:
    s_lshl_b32 s43, s23, 12
    s_add_u32 s43, s43, {FZ}
    s_lshl_b32 s42, s36, 7
    s_add_u32 s42, s42, s43
    """)

RB = dict(fr=112, rel=208, ab=214, dz=220, dw=222, tmp=224)

def sp_dma():
    R = RB; g = []
    g.append(["s_add_u32 m0, s94, s30", "s_nop 0", f"buffer_load_dwordx4 v{R['dw']}, s[12:15], s27 offen lds"])
    g.append([f"buffer_load_dwordx4 v{R['dw']+1}, s[12:15], s27 offen offset:1024 lds", "s_add_u32 s27, s27, 128"])
    for j in range(7):
        ins = []
        if j == 0: ins += ["s_add_u32 m0, s94, s28", "s_nop 0"]
        if j == 4: ins += ["s_add_u32 m0, m0, 4096", "s_nop 0"]
        ins.append(f"buffer_load_dwordx4 v{R['dz']+(j>>2)}, s[8:11], s26 offen offset:{(j%4)*1024} {SC} lds")
        if j == 6: ins += ["s_add_u32 s26, s26, 28672"] + rot3(94, SP_SLOT, BREG)
        g.append(ins)
    return g
def sp_reads(buf, ks):
    R = RB; f = R["fr"] + 32 * buf; ab = R["ab"]
    rd = [f"ds_read_b128 {vr(f,4)}, v{ab+4+ks}"]
    for fb in range(7):
        for hf in range(2):
            if fb == 3: a, o = ab + 2 + (ks ^ hf), 256 * ks
            else: a, o = ab + hf, (fb >> 2) * 14336 + (3 * ks + (fb & 3)) * 1024
            rd.append(f"ds_read_b64_tr_b16 {vr(f+4+4*fb+2*hf,2)}, v{a} offset:{o}")
    return rd
def sp_mfma(buf):
    f = RB["fr"] + 32 * buf
    return [f"v_mfma_f32_32x32x16_bf16 {vr(16*fb,16)}, {vr(f+4+4*fb,4)}, {vr(f,4)}, {vr(16*fb,16)}" for fb in range(7)]
def sp_addr():
    return rot3(95, SP_SLOT, BREG) + [f"v_add_u32 v{RB['ab']+i}, s95, v{RB['rel']+i}" for i in range(6)]

def sp_setup(A):
    R = RB; t = R["tmp"]; rel = R["rel"]
    srd(A, 8, PT["ws"], Z2N, ZBYTES); srd(A, 12, PT["wsp"], 0, 2048 * 4096)
    A(f"""
    s_mul_i32 s28, s21, 7168
    s_mul_i32 s3, s23, {32*28672}
    s_add_u32 s3, s3, s28
    v_add_u32 v{R['dz']}, s3, v{L16}
    v_add_u32 v{R['dz']+1}, 4096, v{R['dz']}
    s_lshl_b32 s3, s36, 6
    s_lshl_b32 s6, s21, 4
    s_add_u32 s3, s3, s6
    v_lshrrev_b32 v{t}, 3, v{LANE}
    v_add_u32 v{t}, s3, v{t}
    v_lshlrev_b32 v{t}, 12, v{t}
    v_lshrrev_b32 v{t+1}, 4, v{LANE}
    v_and_b32 v{t+2}, 7, v{LANE}
    v_xor_b32 v{t+1}, v{t+1}, v{t+2}
    v_lshl_add_u32 v{R['dw']}, v{t+1}, 4, v{t}
    v_xor_b32 v{t+1}, 4, v{t+1}
    v_lshl_add_u32 v{R['dw']+1}, v{t+1}, 4, v{t}
    v_add_u32 v{R['dw']+1}, {8*4096-1024}, v{R['dw']+1}
    s_lshl_b32 s30, s21, 11
    s_add_u32 s30, s30, {SPW}
    s_mov_b32 s26, 0
    s_mov_b32 s27, 0
    s_mov_b32 s94, {BREG}
    ; s = 8h + rr
    v_lshrrev_b32 v{t}, 5, v{LANE}
    v_bfe_u32 v{t+1}, v{LANE}, 2, 2
    v_lshl_add_u32 v{t+1}, v{t}, 3, v{t+1}
    v_bfe_u32 v{t+2}, v{LANE}, 4, 1
    v_bfe_u32 v{t+3}, v{LANE}, 1, 1
    v_lshl_add_u32 v{t+4}, v{t+3}, 1, v{t+2}
    v_lshlrev_b32 v{t+5}, 2, v{t+4}
    v_xor_b32 v{t+5}, v{t+5}, v{t+1}
    v_lshlrev_b32 v{t+5}, 4, v{t+5}
    v_and_b32 v{t+6}, 1, v{LANE}
    v_lshl_add_u32 v{t+5}, v{t+6}, 3, v{t+5}
    v_lshl_add_u32 v{rel}, v{t+4}, 8, v{t+5}
    s_mul_i32 s3, s38, 6144
    v_add_u32 v{rel}, s3, v{rel}
    v_xor_b32 v{rel+1}, 64, v{rel}
    v_lshl_add_u32 v{t+5}, v{t+3}, 9, v{t+5}
    v_mul_u32_u24 v{t+2}, 14336, v{t+2}
    v_add_u32 v{t+5}, v{t+5}, v{t+2}
    s_lshl_b32 s3, s38, 10
    s_add_u32 s3, s3, 12288
    v_add_u32 v{rel+2}, s3, v{t+5}
    v_xor_b32 v{rel+3}, 64, v{rel+2}
    v_and_b32 v{t+1}, 31, v{LANE}
    v_bfe_u32 v{t+2}, v{LANE}, 1, 3
    s_lshl_b32 s3, s38, 2
    v_add_u32 v{t}, s3, v{t}
    v_xor_b32 v{t}, v{t}, v{t+2}
    s_lshl_b32 s3, s37, 5
    v_add_u32 v{t+1}, s3, v{t+1}
    v_lshlrev_b32 v{t+1}, 7, v{t+1}
    v_lshl_add_u32 v{t+1}, v{t}, 4, v{t+1}
    v_add_u32 v{rel+4}, {SPW}, v{t+1}
    v_xor_b32 v{rel+5}, 32, v{rel+4}
    s_mov_b32 s95, {BREG + 2*SP_SLOT}
    s_lshl_b32 s3, s36, 6
    s_lshl_b32 s6, s21, 4
    s_add_u32 s3, s3, s6
    v_and_b32 v{t+8}, 15, v{LANE}
    v_add_u32 v{t+8}, s3, v{t+8}
    v_lshlrev_b32 v{t+8}, 12, v{t+8}
    """)
    A.extend(sp_addr())
    for i in range(112): A(f"v_mov_b32 v{i}, 0")

def mix(rd, dm, every):
    fill = []; dm = list(dm)
    for i, r_ in enumerate(rd):
        fill.append(r_)
        if i % every == every - 1 and dm: fill.append(dm.pop(0))
    return fill + dm

def sp_wpre(A):
    for c in range(3):
        for g in sp_dma()[:2]: A.extend(g)
        A.extend(rot3(94, SP_SLOT, BREG))
def sp_main(A):
    for c in range(3):
        for g in sp_dma()[2:]: A.extend(g)
    n = e = 0
    A(f"s_waitcnt vmcnt(14)")
    gsync(A)
    A.extend(sp_reads(0, 0)); A.extend(sp_reads(1, 1))
    A(f"s_waitcnt vmcnt(7)")
    A.extend(arrive()); A.extend(poll_issue())
    stamp(A, 6)
    def stage(i0, dma, nxt, vm):
        ma, mb = sp_mfma(i0 % 3), sp_mfma((i0 + 1) % 3)
        if not nxt: return ["s_waitcnt lgkmcnt(0)"] + ma + mb
        dm = sp_dma() if dma and not OPT.get('snodma') else []
        if OPT.get("spv", 1) == 0:
            o = ["s_waitcnt lgkmcnt(15)", ma[0], ma[1]] + sp_addr() + poll_check(A)
            o += interleave(ma[2:], mix(sp_reads((i0 + 2) % 3, 0), dm[:4], 4))
            o += interleave(mb[:6], mix(sp_reads((i0 + 3) % 3, 1), dm[4:], 3))
            if vm is not None: o += [f"s_waitcnt vmcnt({vm})"] + arrive()
            o += mb[6:]
            if vm is not None: o += poll_issue()
            return o
        ne = OPT.get("spe", 4)
        o = poll_check(A) + [ma[0]] + sp_addr()
        o += interleave(ma[1:], mix(sp_reads((i0 + 2) % 3, 0), dm[:ne], 4))
        o += interleave(mb[:3], sp_reads((i0 + 3) % 3, 1))
        if vm is not None: o += [f"s_waitcnt vmcnt({max(0, vm - 9 + ne) if dma else vm})"] + arrive()
        o += interleave(mb[3:6], dm[ne:])
        if vm is not None: o += poll_issue()
        o += mb[6:]
        return o
    L = A.label("sp")
    A(f"s_mov_b32 s29, 9\n{L}:")
    for s in range(3): A.extend(stage(2 * s, True, True, 9 + 2 * e))
    A(f"s_sub_u32 s29, s29, 1\ns_cmp_lg_u32 s29, 0\ns_cbranch_scc1 {L}")
    A.extend(stage(0, True, True, 9 + 2 * e)); A.extend(stage(2, True, True, 9 + 2 * e)); A.extend(stage(4, False, True, e))
    A.extend(stage(0, False, True, None)); A.extend(stage(2, False, False, None))

def sp_epi(A):
    R = RB; t = R["tmp"]; Z = 112
    LK, LE = A.label("kh1"), A.label("spe")
    srd(A, 8, PT["ws"], Z1F, ZBYTES); srd(A, 16, PT["ws"], UF, ZBYTES); srd(A, 12, PT["bsp"], 0, 4096)
    A(f"""
    s_lshl_b32 s39, s36, 1
    s_add_u32 s39, s39, s37
    s_lshl_b32 s3, s23, 6
    s_add_u32 s3, s3, s39
    s_mul_i32 s40, s3, {7*2048}
    s_mul_i32 s41, s39, 56
    s_mul_i32 s3, s23, 7
    s_add_u32 s41, s41, s3
    s_lshl_b32 s41, s41, 11
    v_and_b32 v{t+2}, 31, v{LANE}
    s_lshl_b32 s3, s39, 5
    v_add_u32 v{t+2}, s3, v{t+2}
    v_lshlrev_b32 v{t+2}, 1, v{t+2}
    buffer_load_ushort v{t+6}, v{t+2}, s[12:15], 0 offen
    s_lshl_b32 s3, s21, 14
    s_add_u32 s3, s3, {SPX}
    v_add_u32 v{t+3}, s3, v{L16}
    s_xor_b32 s3, s21, 2
    s_lshl_b32 s3, s3, 14
    s_add_u32 s3, s3, {SPX}
    v_add_u32 v{t+4}, s3, v{L16}
    """)
    A(f"s_cmp_eq_u32 s38, 1\ns_cbranch_scc1 {LK}")
    for kh in range(2):
        mine = range(0, 4) if kh == 0 else range(4, 7)
        other = range(4, 7) if kh == 0 else range(0, 4)
        for i, fb in enumerate(mine):
            A(f"s_add_u32 s3, s40, {fb*2048}")
            for q in range(2): A(f"buffer_load_dwordx4 {vr(Z+8*i+4*q,4)}, v{L16}, s[8:11], s3 offen offset:{1024*q} {SC}")
        gsync(A)
        for i, fb in enumerate(other):
            for q in range(4): A(f"ds_write_b128 v{t+3}, {vr(16*fb+4*q,4)} offset:{i*4096+q*1024}")
        gsync(A)
        dst = lambda i: (64 + 16 * i if i < 3 else 144) if kh == 0 else 16 * i
        for i, fb in enumerate(mine):
            for q in range(4): A(f"ds_read_b128 {vr(dst(i)+4*q,4)}, v{t+4} offset:{i*4096+q*1024}")
        A(f"s_waitcnt vmcnt(0)\nv_lshlrev_b32 v{t+6}, 16, v{t+6}\nv_mov_b32 v{t+7}, v{t+6}")
        for i, fb in enumerate(mine):
            a = 16 * fb; d = dst(i)
            A(f"s_waitcnt lgkmcnt({min(15, 4*(len(mine)-1-i))})")
            for q in range(8): A(f"v_pk_add_f32 {vr(a+2*q,2)}, {vr(a+2*q,2)}, {vr(d+2*q,2)}")
            for q in range(8): A(f"v_pk_add_f32 {vr(a+2*q,2)}, {vr(a+2*q,2)}, {vr(t+6,2)}")
            for q in range(8): A(f"v_lshlrev_b32 v{d+2*q}, 16, v{Z+8*i+q}\nv_and_b32 v{d+2*q+1}, 0xffff0000, v{Z+8*i+q}")
            for q in range(8): A(f"v_pk_mul_f32 {vr(a+2*q,2)}, {vr(a+2*q,2)}, {vr(d+2*q,2)}")
            for q in range(8): A(f"v_cvt_pk_bf16_f32 v{Z+8*i+q}, v{a+2*q}, v{a+2*q+1}")
            A(f"s_add_u32 s3, s41, {fb*2048}")
            for f in range(2): A(f"buffer_store_dwordx4 {vr(Z+8*i+4*f,4)}, v{L16}, s[16:19], s3 offen offset:{1024*f} {SC}")
        if kh == 0: A(f"s_branch {LE}\n{LK}:")
    A(f"""
    {LE}:
    s_lshl_b32 s42, s36, 3
    s_add_u32 s42, s42, s23
    s_lshl_b32 s42, s42, 7
    s_add_u32 s42, s42, {FU}
    s_lshl_b32 s43, s100, 11
    s_add_u32 s43, s43, {FU}
    """)

FWS = 8192; FNS = 6; DA = 3; DW = 5
RF = dict(wf=32, af=96, wa=160, wb=162, da=164, dw=165, tmp=168)
def f_loads(base, t4, w=True, a=True):
    R = RF; g = []
    if w:
        g.append(["s_add_u32 m0, s94, s30", "s_nop 0", f"buffer_load_dwordx4 v{R['dw']}, s[12:15], s27 offen lds"])
        g.append([f"buffer_load_dwordx4 v{R['dw']+1}, s[12:15], s27 offen offset:1024 lds", "s_add_u32 s27, s27, 131072"] + rot3(94, FWS, base, FNS))
    if a:
        f = R["af"] + 16 * ((t4 + DA) % 4)
        for ks in range(4):
            g.append([f"buffer_load_dwordx4 {vr(f+4*ks,4)}, v{R['da']}, s[8:11], s26 offen offset:{ks*1024} {SC}"] + (["s_add_u32 s26, s26, 4096"] if ks == 3 else []))
    return g
def f_reads(buf):
    R = RF; f = R["wf"] + 32 * buf
    return [f"ds_read_b64_tr_b16 {vr(f+8*ks+4*nb+2*hf,2)}, v{R['wb']+nb} offset:{(16*ks+8*hf)*128}" for ks in range(4) for nb in range(2) for hf in range(2)]
def f_mfma(t4):
    R = RF; f = R["wf"] + 32 * (t4 & 1); af = R["af"] + 16 * t4
    return [f"v_mfma_f32_32x32x16_bf16 {vr(16*nb,16)}, {vr(f+8*ks+4*nb,4)}, {vr(af+4*ks,4)}, {vr(16*nb,16)}" for ks in range(4) for nb in range(2)]
def f_addr(base):
    R = RF
    return rot3(95, FWS, base, FNS) + [f"v_add_u32 v{R['wb']}, s95, v{R['wa']}", f"v_add_u32 v{R['wb']+1}, s95, v{R['wa']+1}"]

def f_setup(A, role):
    R = RF; t = R["tmp"]; base = FREG[role]
    nkb = 32 if role == "A" else 56
    srd(A, 8, PT["ws"], OF if role == "A" else UF, 64 * nkb * 2048)
    srd(A, 12, PT["wo" if role == "A" else "wout"], 0, nkb * 32 * 2048)
    A(f"""
    s_lshl_b32 s3, s100, 2
    s_add_u32 s3, s3, s21
    s_mul_i32 s3, s3, {nkb*2048}
    v_add_u32 v{R['da']}, s3, v{L16}
    v_lshrrev_b32 v{t+1}, 3, v{LANE}
    s_lshl_b32 s3, s21, 4
    v_add_u32 v{t+1}, s3, v{t+1}
    v_lshlrev_b32 v{t+1}, 11, v{t+1}
    v_bfe_u32 v{t+2}, v{LANE}, 4, 1
    v_lshlrev_b32 v{t+2}, 2, v{t+2}
    v_and_b32 v{t+3}, 7, v{LANE}
    v_xor_b32 v{t+2}, v{t+2}, v{t+3}
    v_lshl_add_u32 v{t+1}, v{t+2}, 4, v{t+1}
    s_lshl_b32 s3, s101, 7
    v_add_u32 v{R['dw']}, s3, v{t+1}
    v_add_u32 v{R['dw']+1}, {8*2048-1024}, v{R['dw']}
    s_lshl_b32 s30, s21, 11
    s_mov_b32 s26, 0
    s_mov_b32 s27, 0
    s_mov_b32 s94, {base}
    v_lshrrev_b32 v{t+1}, 5, v{LANE}
    v_bfe_u32 v{t+2}, v{LANE}, 2, 2
    v_lshl_add_u32 v{t+1}, v{t+1}, 2, v{t+2}
    v_lshlrev_b32 v{t+1}, 7, v{t+1}
    v_lshrrev_b32 v{t+2}, 1, v{t+2}
    v_lshl_add_u32 v{t+1}, v{t+2}, 6, v{t+1}
    v_bfe_u32 v{t+2}, v{LANE}, 4, 1
    v_lshl_add_u32 v{t+1}, v{t+2}, 5, v{t+1}
    v_and_b32 v{t+2}, 3, v{LANE}
    v_lshl_add_u32 v{R['wa']}, v{t+2}, 3, v{t+1}
    v_xor_b32 v{R['wa']+1}, 64, v{R['wa']}
    s_mov_b32 s95, {base + (FNS-1)*FWS}
    """)
    A.extend(f_addr(base))
    for i in range(32): A(f"v_mov_b32 v{i}, 0")

def f_wpre(A, role):
    t = RF["tmp"]; X = 176
    srd(A, 16, PT["x"], 0, 4 * MB)
    A(f"""
    s_lshl_b32 s3, s100, 2
    s_add_u32 s3, s3, s21
    s_lshl_b32 s3, s3, 5
    v_and_b32 v{t+5}, 31, v{LANE}
    v_add_u32 v{t+5}, s3, v{t+5}
    v_lshlrev_b32 v{t+5}, 11, v{t+5}
    v_lshrrev_b32 v{t+2}, 5, v{LANE}
    v_lshl_add_u32 v{t+5}, v{t+2}, 4, v{t+5}
    s_lshl_b32 s3, s101, 7
    s_add_u32 s3, s3, {0 if role == 'A' else 64}
    v_add_u32 v{t+5}, s3, v{t+5}
    buffer_load_dwordx4 {vr(X,4)}, v{t+5}, s[16:19], 0 offen
    buffer_load_dwordx4 {vr(X+4,4)}, v{t+5}, s[16:19], 0 offen offset:32
    """)
    for c in range(DW):
        for g in f_loads(FREG[role], 0, True, False): A.extend(g)

def f_main(A, role):
    base = FREG[role]; nst = 16 if role == "A" else 28
    for c in range(DA):
        for g in f_loads(base, c - DA, False, True): A.extend(g)
    A(f"s_waitcnt vmcnt({4*DA})")
    gsync(A)
    A.extend(f_reads(0))
    A.extend(arrive()); A.extend(poll_issue())
    stamp(A, 8)
    def stage(t):
        m = f_mfma(t % 4)
        def cnt(u): return (2 if u + DW < nst else 0) + (4 if u + DA < nst else 0)
        vm = sum(cnt(u) if u >= 0 else 4 for u in range(t - DA + 1, t))
        if t == nst - 1: return [f"s_waitcnt vmcnt(0) lgkmcnt(0)"] + m
        o = [f"s_waitcnt vmcnt({vm})"] + poll_check(A) + arrive() + [m[0]] + f_addr(base)
        o += interleave(m[1:6], mix(f_reads((t + 1) & 1), f_loads(base, t % 4, t + DW < nst, t + DA < nst), 3))
        o += [m[6]] + poll_issue() + [m[7]]
        return o
    for t in range(4): A.extend(stage(t))
    L = A.label("fin" + role)
    nl = (nst - 12) // 4
    A(f"s_mov_b32 s29, {nl}\n{L}:")
    for t in range(4, 8): A.extend(stage(t))
    A(f"s_sub_u32 s29, s29, 1\ns_cmp_lg_u32 s29, 0\ns_cbranch_scc1 {L}")
    for t in range(nst - 8, nst): A.extend(stage(t))

def f_epi(A, role):
    t = RF["tmp"]; keep = 0 if role == "A" else 16; give = 16 - keep
    X = 176; Y = 32
    srd(A, 12, PT["out"], 0, 4 * MB)
    A(f"""
    s_lshl_b32 s3, s21, 12
    v_add_u32 v{t+3}, s3, v{L16}
    v_add_u32 v{t+2}, {XCH[role]}, v{t+3}
    v_add_u32 v{t+3}, {XCH["B" if role == "A" else "A"]}, v{t+3}
    """)
    A("s_nop 3")
    for q in range(4): A(f"ds_write_b128 v{t+2}, {vr(give+4*q,4)} offset:{q*1024}")
    A("s_waitcnt lgkmcnt(0)\ns_barrier")
    for q in range(4): A(f"ds_read_b128 {vr(Y+4*q,4)}, v{t+3} offset:{q*1024}")
    A("s_waitcnt vmcnt(0)")
    for p in range(2): A(f"v_permlane32_swap_b32 v{X+4*p}, v{X+4*p+2}\nv_permlane32_swap_b32 v{X+4*p+1}, v{X+4*p+3}")
    A("s_waitcnt lgkmcnt(0)")
    S, T = (keep, Y) if role == "A" else (Y, keep)
    U = 64; E = 80
    def rnd(b):
        for i in range(8): A(f"v_cvt_pk_bf16_f32 v{U+i}, v{b+2*i}, v{b+2*i+1}")
        for i in range(8): A(f"v_lshlrev_b32 v{b+2*i}, 16, v{U+i}\nv_and_b32 v{b+2*i+1}, 0xffff0000, v{U+i}")
    rnd(T)
    for i in range(16): A(f"v_mul_f32 v{E+i}, {fhex(-LOG2E)}, v{T+i}")
    for i in range(16): A(f"v_exp_f32 v{E+i}, v{E+i}")
    rnd(S)
    for i in range(16): A(f"v_add_f32 v{E+i}, 1.0, v{E+i}")
    for i in range(16): A(f"v_rcp_f32 v{E+i}, v{E+i}")
    for i in range(16): A(f"v_mul_f32 v{T+i}, v{T+i}, v{E+i}")
    rnd(T)
    for i in range(16): A(f"v_mul_f32 v{S+i}, v{S+i}, v{T+i}")
    rnd(S)
    for i in range(8): A(f"v_lshlrev_b32 v{E+2*i}, 16, v{X+i}\nv_and_b32 v{E+2*i+1}, 0xffff0000, v{X+i}")
    for i in range(16): A(f"v_add_f32 v{S+i}, v{S+i}, v{E+i}")
    for i in range(8): A(f"v_cvt_pk_bf16_f32 v{X+i}, v{S+2*i}, v{S+2*i+1}")
    A("s_nop 1")
    for p in range(2): A(f"v_permlane32_swap_b32 v{X+4*p}, v{X+4*p+2}\nv_permlane32_swap_b32 v{X+4*p+1}, v{X+4*p+3}")
    A(f"buffer_store_dwordx4 {vr(X,4)}, v{t+5}, s[12:15], 0 offen\nbuffer_store_dwordx4 {vr(X+4,4)}, v{t+5}, s[12:15], 0 offen offset:32")

def mall_warm(A):
    A(f"s_lshl_b32 s3, s2, 2\ns_add_u32 s3, s3, s21\nv_lshlrev_b32 v212, 7, v{LANE}")
    srd(A, 12, PT["wsp"], 0, 2048 * 4096)
    A("s_lshl_b32 s6, s3, 13\nbuffer_load_dword v213, v212, s[12:15], s6 offen")
    srd(A, 12, PT["wout"], 0, 1792 * 2048)
    A(f"v_min_u32 v214, {27*128}, v212\ns_mul_i32 s6, s3, {28*128}\nbuffer_load_dword v213, v214, s[12:15], s6 offen")
    srd(A, 12, PT["wo"], 0, 1024 * 2048)
    A(f"v_min_u32 v214, {15*128}, v212\ns_lshl_b32 s6, s3, 11\nbuffer_load_dword v213, v214, s[12:15], s6 offen")

def z_touch(A):
    t = RB["tmp"]
    A(f"""
    v_min_u32 v{t}, 55, v{LANE}
    v_lshlrev_b32 v{t}, 7, v{t}
    s_lshl_b32 s3, s23, 5
    s_add_u32 s3, s3, s36
    s_mul_i32 s3, s3, 28672
    s_add_u32 s3, s3, s28
    buffer_load_dword v{t+1}, v{t}, s[8:11], s3 offen {SC}
    """)
    return 1

def f_touch_w(A, role):
    t = RF["tmp"]; n = 64 if role == "A" else 56; rows = 256 if role == "A" else 448
    A(f"""
    v_min_u32 v{t}, {n-1}, v{LANE}
    v_lshlrev_b32 v{t}, 11, v{t}
    s_and_b32 s3, s100, 3
    s_mul_i32 s3, s3, {rows}
    s_mul_i32 s6, s21, {rows//4}
    s_add_u32 s3, s3, s6
    s_lshl_b32 s3, s3, 11
    s_lshl_b32 s6, s101, 7
    s_add_u32 s3, s3, s6
    buffer_load_dword v{t+1}, v{t}, s[12:15], s3 offen
    """)
    if role == "B": A(f"s_add_u32 s3, s3, {56*2048}\nbuffer_load_dword v{t+1}, v{t}, s[12:15], s3 offen")

def f_touch_a(A, role):
    t = RF["tmp"]; n = 64 if role == "A" else 56; blk = 8192 if role == "A" else 14336
    A(f"""
    v_min_u32 v{t}, {n-1}, v{LANE}
    v_lshlrev_b32 v{t}, 7, v{t}
    s_lshl_b32 s3, s100, 2
    s_add_u32 s3, s3, s21
    s_lshl_b32 s3, s3, 3
    s_and_b32 s6, s101, 7
    s_add_u32 s3, s3, s6
    s_mul_i32 s3, s3, {blk}
    buffer_load_dword v{t+1}, v{t}, s[8:11], s3 offen {SC}
    """)
    if role == "B": A(f"s_add_u32 s3, s3, 7168\nbuffer_load_dword v{t+1}, v{t}, s[8:11], s3 offen {SC}")
    return 1 if role == "A" else 2

def prio(A, key):
    if key in OPT: A(f"s_setprio {OPT[key]}")

P_SP_DONE = 2 + 1 + 1 + 30 + 1

def gen(A):
    kstart(A, NAME)
    start(A)
    stamp(A, 0)
    if common.PROFILE: A("s_memtime s[86:87]\ns_waitcnt lgkmcnt(0)\ns_mov_b32 s84, s86")
    A("s_cmp_ge_u32 s20, 4\ns_cbranch_scc1 L_roleB")
    ln_rows(A)
    handoff(A, 42, 43, 32, g1_setup_A, tag='x')
    stamp(A, 1)
    for par in (1, 0, 1, 0, 1):
        for g in g1_dma("A", par, GA): A.extend(g)
    g1_main(A, "A", GA, 96, 0)
    stamp(A, 2)
    prio(A, "pa1")
    epi_A(A)
    stamp(A, 3)
    handoff(A, 42, 43, 8, attn_setup, tag='k')
    stamp(A, 4)
    prio(A, "pa1b")
    attn_main(A)
    stamp(A, 6)
    attn_finish(A)
    prio(A, "pa2")
    handoff(A, 42, 43, 32, lambda A: f_setup(A, "A"), tag='o', after=lambda A: f_wpre(A, "A"), presync=True)
    stamp(A, 7)
    f_main(A, "A")
    stamp(A, 9)
    f_epi(A, "A")
    fin_prof(A)
    A("s_endpgm\nL_roleB:")
    g1_setup_B(A)
    for s in range(4):
        for g in g1_dma("B", 0, GB): A.extend(g)
    n = w_touch(A)
    g1_setup_B2(A)
    g1_main(A, "B", GB, 112, n)
    A(f"v_mov_b32 v242, {NONCE}\nds_read_b32 v243, v242\ns_waitcnt lgkmcnt(0)\nv_readfirstlane_b32 s31, v243")
    stamp(A, 2)
    prio(A, "pb1")
    epi_B(A)
    stamp(A, 4)
    handoff(A, 42, 43, 32, sp_setup, tag='z', after=sp_wpre)
    stamp(A, 5)
    prio(A, "pb2")
    sp_main(A)
    stamp(A, 7)
    prio(A, "pb2e")
    sp_epi(A)
    handoff(A, 42, 43, 16, lambda A: f_setup(A, "B"), tag='u', after=lambda A: f_wpre(A, "B"), presync=True)
    prio(A, "pb3")
    f_main(A, "B")
    stamp(A, 9)
    f_epi(A, "B")
    fin_prof(A)
    A("L_end:\ns_endpgm")
    A.extend(COLD)
    A.raw(kd(NAME, 256, 256, 102))

def fin_prof(A):
    if not common.PROFILE: return
    A("s_mov_b32 s43, s84\ns_waitcnt vmcnt(0)")
    stamp(A, 10)
    A("s_mov_b32 s86, s43\ns_memtime s[42:43]\ns_waitcnt lgkmcnt(0)")
    srd(A, 88, 4, PROF, 256 * 8 * 64)
    A("s_lshl_b32 s92, s2, 3\ns_add_u32 s92, s92, s20\ns_lshl_b32 s92, s92, 6\nv_mov_b32 v251, s92")
    for k in range(12): A(f"v_mov_b32 v252, s{64+2*k}\nbuffer_store_dword v252, v251, s[88:91], 0 offen offset:{4*k}")
    A("v_mov_b32 v252, s42\nbuffer_store_dword v252, v251, s[88:91], 0 offen offset:48")

if __name__ == "__main__":
    out = sys.argv[1]
    common.PROFILE = "--prof" in sys.argv
    for a in sys.argv[2:]:
        if "=" in a:
            k, v = a.split("="); OPT[k] = int(v)
    A = Asm()
    A.raw("; out = x + MHA(LN x) * silu(gMLP(LN x)) as one persistent dataflow kernel (one 8-wave workgroup per CU); generated by gen/fused.py\n"
          f"; @launch grid=(256,1,1) block=(512,1,1) lds={LDS}\n" '.amdgcn_target "amdgcn-amd-amdhsa--gfx950"\n.text')
    gen(A)
    t = A.text()
    errs = check_hazards(t)
    for e in errs[:30]: print("HAZARD", e, file=sys.stderr)
    open(out, "w").write(t)
```

```python
import sys
from common import *
import common
from k_g1 import gelu_pairs, reduce4, bcast4, stats_combine, QSCALE, GC0, GC1

OPT = {"pa1": 3, "pa1b": 1, "pb1": 2, "pb2": 2, "pb2e": 2, "pb3": 0, "pa2": 3, "mw": 0, "pgB": 1, "me": 1, "mz": 0}
_stamp = stamp
def stamp(A, k, real=False, force=False):
    if OPT.get("hs") and k in (7, 8, 9) and not force: return
    _stamp(A, k, not OPT.get('cyc'))
NAME = "recurrent_scan__mha_block__mixer_gmlp__prompt_kernel"
XSLOT = 32768; WSLOT = 13312; WRING = 3 * XSLOT; WBO = 6144
AREG = 0; KV_SLOT = 16384
BREG = 49152; SP_SLOT = 36864; SPW = 28672
FREG = {"A": 0, "B": 49152}; SPX = 49152; XCH = {"A": 32768, "B": 114688}
FLG = BREG + 3 * SP_SLOT
NONCE = FLG + 2048
LDS = FLG + 2048 + 64
LANE, VF_, VG, VP, VT, L16 = 250, 246, 247, 248, 249, 245
PT = dict(x=48, wqkv=50, wo=52, win=56, wsp=58, bsp=60, wout=62, out=44, dbg=46, ws=4)
SC = "sc1"
LOG2E = 1.4426950408889634
COLD = []
def FL(k): return ("", "sc1 ", "nt ", "sc0 ")[OPT.get(k, 0)]

def align(A, key):
    v = OPT.get("al" + key, OPT.get("al"))
    if v is None: return
    A.raw(".p2align 6, 0xbf800000" if False else ".p2align 6")
    for i in range(v): A("s_nop 0")
def itr0(A, key):
    if OPT.get("itr") == key or (key == 3 and OPT.get("itr") == 2): A("s_memtime s[92:93]\ns_waitcnt lgkmcnt(0)\ns_mov_b32 s90, 0\nv_writelane_b32 v253, s92, 0")
def itr(key):
    if OPT.get("itr") == key or (key == 3 and OPT.get("itr") == 2):
        return ["s_memtime s[92:93]", "s_waitcnt lgkmcnt(0)", "s_add_u32 s90, s90, 1", "s_mov_b32 s91, m0", "s_mov_b32 m0, s90", "v_writelane_b32 v253, s92, m0", "s_mov_b32 m0, s91"]
    return []
def arrive(): return [f"v_add_u32 v{VP}, 1, v{VP}", f"ds_write_b32 v{VF_}, v{VP}"]
def poll_issue(): return [f"ds_read_b32 v{VT}, v{VG}"]
def poll_check(A, slp=0, G=None, P=None):
    G = VG if G is None else G; P = f"v{VP}" if P is None else P
    L, Lok = A.label("spin"), A.label("ok")
    cmpi = f"v_cmp_gt_u32 vcc, {P}, v{VT}"
    COLD.extend([f"{L}:", "s_mov_b32 s97, 0x40000", f"{L}b:"] + ([f"s_sleep {slp}"] if slp else []) +
                [f"ds_read_b32 v{VT}, v{G}", "s_sub_u32 s97, s97, 1", "s_cmp_eq_u32 s97, 0", f"s_cbranch_scc1 {Lok}",
                 "s_waitcnt lgkmcnt(0)", cmpi, f"s_cbranch_vccnz {L}b", f"s_branch {Lok}"])
    return ["s_waitcnt lgkmcnt(0)", cmpi, f"s_cbranch_vccnz {L}", f"{Lok}:"]
def poll_split(A):
    c = poll_check(A)
    return c[:2], c[2:]
def gsync(A, slp=0):
    A.extend(arrive()); A.extend(poll_issue()); A.extend(poll_check(A, slp))
def rot3(s, size, base=0, n=3):
    return [f"s_add_u32 s{s}, s{s}, {size}", f"s_cmp_eq_u32 s{s}, {base + n * size}", f"s_cmov_b32 s{s}, {base}"]

def flag_wait(A, soff, lanes, slp=4):
    L, Ld = A.label("gp"), A.label("gpd")
    A(f"v_and_b32 v244, {lanes-1}, v{LANE}\nv_lshlrev_b32 v244, 7, v244\ns_mov_b32 s97, 0x8000\n{L}:")
    A(f"buffer_load_dword v242, v244, s[32:35], s{soff} offen {SC}")
    A("s_waitcnt vmcnt(0)\nv_cmp_ne_u32 vcc, s31, v242")
    A(f"s_cbranch_vccz {Ld}\ns_sleep {slp}\ns_sub_u32 s97, s97, 1\ns_cmp_lg_u32 s97, 0\ns_cbranch_scc1 {L}\n{Ld}:")
def handoff(A, sset, swait, lanes, between=None, slp=2, tag="", after=None, presync=False):
    Ls = A.label("fw")
    if between: A("s_nop 1"); between(A)
    dbg = OPT.get("hs") and tag == "xkzou......"[OPT["hs"] - 1]
    if dbg: stamp(A, 7, force=True)
    A("s_waitcnt vmcnt(0)")
    if dbg: stamp(A, 8, force=True)
    A.extend(arrive())
    if presync: A.extend(poll_issue()); A.extend(poll_check(A))
    A(f"s_cmp_lg_u32 s21, 0\ns_cbranch_scc1 {Ls}")
    if not presync: A.extend(poll_issue()); A.extend(poll_check(A))
    if dbg: stamp(A, 9, force=True)
    A(f"""
    v_mov_b32 v242, 0
    v_mov_b32 v243, s31
    s_mov_b64 exec, 1
    buffer_store_dword v243, v242, s[32:35], s{sset} offen {SC}
    s_mov_b64 exec, -1
    """)
    if after:
        L2 = A.label("fw")
        A(f"{Ls}:"); after(A); Ls = L2
        A(f"s_cmp_lg_u32 s21, 0\ns_cbranch_scc1 {Ls}")
    flag_wait(A, swait, lanes)
    A(f"{Ls}:")
    gsync(A, slp)

def start(A):
    A(f"""
    s_cmp_ge_u32 s2, 256
    s_cbranch_scc1 L_end
    s_load_dwordx16 s[48:63], s[0:1], 0
    s_load_dwordx4 s[44:47], s[0:1], 64
    s_load_dwordx2 s[4:5], s[0:1], 80
    v_lshrrev_b32 v1, 6, v0
    v_and_b32 v{LANE}, 63, v0
    v_readfirstlane_b32 s20, v1
    s_and_b32 s23, s2, 7
    s_lshr_b32 s36, s2, 3
    s_and_b32 s22, s36, 7
    s_lshr_b32 s24, s36, 3
    s_lshl_b32 s25, s23, 2
    s_add_u32 s25, s25, s24
    s_and_b32 s21, s20, 3
    s_and_b32 s37, s21, 1
    s_lshr_b32 s38, s21, 1
    s_lshr_b32 s100, s23, 1
    s_lshl_b32 s100, s100, 2
    s_and_b32 s3, s36, 3
    s_add_u32 s100, s100, s3
    s_and_b32 s101, s23, 1
    s_lshl_b32 s101, s101, 3
    s_lshr_b32 s3, s36, 2
    s_add_u32 s101, s101, s3
    v_lshlrev_b32 v{L16}, 4, v{LANE}
    s_lshl_b32 s3, s20, 8
    s_add_u32 s3, s3, {FLG}
    v_lshlrev_b32 v{VF_}, 2, v{LANE}
    v_and_b32 v{VG}, 3, v{LANE}
    v_lshlrev_b32 v{VG}, 8, v{VG}
    v_add_u32 v{VG}, v{VG}, v{VF_}
    v_add_u32 v{VF_}, s3, v{VF_}
    s_and_b32 s3, s20, 4
    s_lshl_b32 s3, s3, 8
    s_add_u32 s3, s3, {FLG}
    v_add_u32 v{VG}, s3, v{VG}
    v_mov_b32 v{VP}, 0
    ds_write_b32 v{VF_}, v{VP}
    s_waitcnt lgkmcnt(0)
    s_barrier
    """)
    if OPT.get("wso"): A(f"s_add_u32 s4, s4, {OPT['wso'] << 20}\ns_addc_u32 s5, s5, 0")
    srd(A, 32, PT["ws"], FLAGS, FBYTES)
    Ln = A.label("non")
    A(f"s_lshl_b32 s3, s2, 3\ns_add_u32 s3, s3, s20\ns_cmp_lg_u32 s3, 4\ns_cbranch_scc1 {Ln}")
    srd(A, 16, PT["dbg"], 0, 256)
    A(f"""
    s_memrealtime s[6:7]
    s_waitcnt lgkmcnt(0)
    s_or_b32 s3, s6, 1
    v_mov_b32 v1, s3
    v_mov_b32 v2, 0
    s_mov_b64 exec, 1
    buffer_store_dword v1, v2, s[16:19], 0 offen {SC}
    s_mov_b64 exec, -1
    {Ln}:
    """)

def ln_loads(A):
    srd(A, 8, PT["x"], 0, 4 * MB); srd(A, 16, PT["dbg"], 0, 256)
    A(f"""
    s_lshl_b32 s3, s22, 8
    s_lshl_b32 s6, s25, 3
    s_add_u32 s3, s3, s6
    s_lshl_b32 s6, s21, 1
    s_add_u32 s39, s3, s6
    s_lshl_b32 s3, s39, 11
    v_mov_b32 v242, 0
    """)
    for rr in range(2):
        for q in range(2): A(f"buffer_load_dwordx4 {vr(8+40*rr+4*q,4)}, v{L16}, s[8:11], s3 offen offset:{2048*rr+1024*q}")
    A(f"buffer_load_dword v243, v242, s[16:19], 0 offen {SC}")

def ln_stats(A, younger):
    A(f"s_waitcnt vmcnt({younger})")
    streams = []
    for rr in range(2):
        B = Asm(); o = 40 * rr
        for i in range(8): B(f"v_lshlrev_b32 v{o+16+2*i}, 16, v{o+8+i}\nv_and_b32 v{o+17+2*i}, 0xffff0000, v{o+8+i}")
        for i in range(8): B(f"v_add_f32 v{o+32+i}, v{o+16+2*i}, v{o+17+2*i}")
        for i in range(4): B(f"v_add_f32 v{o+32+i}, v{o+32+i}, v{o+36+i}")
        B(f"v_add_f32 v{o+32}, v{o+32}, v{o+34}\nv_add_f32 v{o+33}, v{o+33}, v{o+35}\nv_add_f32 v{o+32}, v{o+32}, v{o+33}")
        wave_sum(B, o + 32, o + 33)
        B(f"v_mul_f32 v{o+32}, {fhex(1/1024)}, v{o+32}")
        for i in range(16): B(f"v_sub_f32 v{o+16+i}, v{o+16+i}, v{o+32}")
        B(f"v_mul_f32 v{o+34}, v{o+16}, v{o+16}\nv_mul_f32 v{o+35}, v{o+17}, v{o+17}")
        for i in range(2, 16): B(f"v_fmac_f32 v{o+34+(i&1)}, v{o+16+i}, v{o+16+i}")
        B(f"v_add_f32 v{o+34}, v{o+34}, v{o+35}")
        wave_sum(B, o + 34, o + 33)
        B(f"v_mul_f32 v{o+34}, {fhex(1/1024)}, v{o+34}")
        bf16_round(B, o + 32, o + 32); bf16_round(B, o + 34, o + 34)
        B(f"v_add_f32 v{o+34}, {fhex(1e-5)}, v{o+34}")
        bf16_round(B, o + 34, o + 34)
        B(f"v_sqrt_f32 v{o+34}, v{o+34}\ns_nop 0")
        bf16_round(B, o + 34, o + 34)
        B(f"v_rcp_f32 v{o+34}, v{o+34}\ns_nop 0")
        B(f"v_mul_f32 v{o+32}, v{o+32}, v{o+34}")
        streams.append([l.strip().replace("s_nop 1", "s_nop 0") for l in B.lines])
    for a_, b_ in zip(*streams):
        A(a_)
        if not (a_.startswith("s_nop") and b_.startswith("s_nop")): A(b_)
    L, Ld = A.label("nn"), A.label("nnd")
    COLD.extend([f"{L}:", "s_mov_b32 s97, 0x8000", f"{L}b:", "s_sleep 4", f"buffer_load_dword v243, v242, s[16:19], 0 offen {SC}", "s_waitcnt vmcnt(0)",
                 "v_readfirstlane_b32 s31, v243", "s_sub_u32 s97, s97, 1", "s_cmp_eq_u32 s97, 0", f"s_cbranch_scc1 {Ld}",
                 "s_cmp_eq_u32 s31, 0", f"s_cbranch_scc1 {L}b", f"s_branch {Ld}"])
    A(f"""
    v_readfirstlane_b32 s31, v243
    v_cmp_eq_u32 vcc, 0, v{LANE}
    s_cmp_eq_u32 s31, 0
    s_cbranch_scc1 {L}
    {Ld}:
    v_mov_b32 v242, {NONCE}
    ds_write_b32 v242, v243
    v_cndmask_b32 v4, v74, v34, vcc
    v_cndmask_b32 v6, v72, v32, vcc
    v_mov_b32 v5, s31
    v_sub_f32 v6, 0, v6
    v_mov_b32 v7, s31
    s_lshl_b32 s3, s39, 4
    """)
    srd(A, 12, PT["ws"], RS, 2048 * 16)
    A(f"s_mov_b64 exec, 3\nbuffer_store_dwordx4 v[4:7], v{L16}, s[12:15], s3 offen {SC}\ns_mov_b64 exec, -1\ns_nop 0")

GA = dict(frag=96, xr=176, xa=180, wr=184, wa=185, dv=186, cs=192, one=204, idx=208, ns=3, sel=0, tab=36864, rs=176)
GB = dict(frag=112, xr=200, xa=202, wr=204, wa=205, dv=206, cs=216, one=232, idx=236, ns=4, sel=1, tab=49152, rs=212)
ROWT = 37888

def g1_dma(role, par, R, touch=False, pro=False):
    g = []
    for j in range(4):
        ins = []
        if role == "A":
            if j == 0 and pro: ins += [f"s_add_u32 m0, s94, s28" if par else "s_add_u32 m0, s94, s30", "s_nop 0"]
            ins.append(f"buffer_load_dwordx4 v{R['dv']+j}, s[8:11], {'s26' if par else 's27'} offen offset:{j*1024} lds")
            if j == 3: ins += ["s_add_u32 s26, s26, 128"] if par else ["s_add_u32 s27, s27, 128"] + (rot3(94, XSLOT) if pro else [])
        else:
            if j == 0 and pro: ins += ["s_add_u32 m0, s94, s28", "s_nop 0"]
            if j == 3: ins.append("s_mov_b64 exec, s[98:99]")
            ins.append(f"buffer_load_dwordx4 v{R['dv']+j}, s[8:11], s26 offen offset:{j*1024} lds")
            if j == 3:
                ins += ["s_mov_b64 exec, -1", "s_add_u32 s26, s26, s27"] + (rot3(94, WSLOT, WRING, 4) if pro else [])
                if touch: ins += ["buffer_load_dword v211, v210, s[16:19], s30 offen", "s_add_u32 s30, s30, 1024"]
        g.append(ins)
    return g

def g1_addr(role, par, R, dma=False):
    o = []
    if dma and role == "B": o.append("s_add_u32 m0, s95, s28")
    if dma and role == "A": o.append("s_add_u32 m0, s96, s28" if par else "s_add_u32 m0, m0, 4096")
    w = rot3(95, WSLOT, WRING, 4) + [f"v_add_u32 v{R['wa']}, s95, v{R['wr']}"]
    x = []
    if par:
        x = rot3(96, XSLOT)
        for i in range(4 if role == "A" else 2): x.append(f"v_add_u32 v{R['xa']+i}, s96, v{R['xr']+i}")
    return o, x, w

def g1_step(role, par, dma, reads, R):
    cur = par; nxt = par ^ 1
    mf, rd = [], []
    if role == "A":
        fb = lambda buf: R["frag"] + 40 * buf
        xf = lambda buf, ks, rb: fb(buf) + 8 * ks + 4 * rb
        wf = lambda buf, ks, b: fb(buf) + 16 + 8 * b + 4 * ks
        for ks in range(2):
            for rb in range(2):
                for b in range(3):
                    acc = vr((rb * 3 + b) * 16, 16)
                    x_, w_ = vr(xf(cur, ks, rb), 4), vr(wf(cur, ks, b), 4)
                    mf.append(f"v_mfma_f32_32x32x16_bf16 {acc}, {w_}, {x_}, {acc}" if b < 2 else f"v_mfma_f32_32x32x16_bf16 {acc}, {x_}, {w_}, {acc}")
        for ks in range(2):
            for rb in range(2):
                rd.append(f"ds_read_b128 {vr(xf(nxt, ks, rb), 4)}, v{R['xa'] + 2 * nxt + ks} offset:{rb * 4096}")
            for b in range(3):
                for hf in range(2):
                    rd.append(f"ds_read_b64_tr_b16 {vr(wf(nxt, ks, b) + 2 * hf, 2)}, v{R['wa']} offset:{(16 * ks + 4 * hf) * 192 + 64 * b}")
    else:
        fb = lambda buf: R["frag"] + 44 * buf
        xf = lambda buf, st: fb(buf) + 4 * st
        wf = lambda buf, ft: fb(buf) + 16 + 4 * ft
        for ft in range(7):
            for st in range(4):
                acc = vr((st * 7 + ft) * 4, 4)
                mf.append(f"v_mfma_f32_16x16x32_bf16 {acc}, {vr(wf(cur, ft), 4)}, {vr(xf(cur, st), 4)}, {acc}")
        for st in range(4):
            rd.append(f"ds_read_b128 {vr(xf(nxt, st), 4)}, v{R['xa'] + nxt} offset:{st * 2048}")
        for ft in range(7):
            for hf in range(2):
                rd.append(f"ds_read_b64_tr_b16 {vr(wf(nxt, ft) + 2 * hf, 2)}, v{R['wa']} offset:{WBO + hf * 8 * 224 + 32 * ft}")
    if not reads: return mf, []
    o, x, w = g1_addr(role, par, R, dma)
    dm = g1_dma(role, par, R, OPT.get('mw')) if dma else []
    nx = 2 if role == "A" else 4
    xs = [[i] for i in o + x[:3]] + ([x[3:]] if x else [])
    rds = rd[:nx] + [None] + rd[nx:]
    fill = list(xs)
    k = 0; step = max(1, len(rd) // max(1, len(dm))); i = 0
    wq = [[q] for q in w]
    for r_ in rd[:nx]:
        fill.append(r_); fill += wq[:2] if role == "A" else wq[:1]; wq = wq[2:] if role == "A" else wq[1:]
    fill += wq
    for i, r_ in enumerate(rd[nx:]):
        fill.append(r_)
        if (i + 1) % step == 0 and k < len(dm): fill.append(dm[k]); k += 1
    fill += dm[k:]
    nlast = OPT.get("nl" + role, 2 if role == "A" else 5)
    return interleave(mf[:-nlast], fill) + mf[-nlast:], x + w + rd

def g1_setup_A(A):
    R = GA
    A(f"""
    s_mov_b32 s26, 0
    s_mov_b32 s27, 65536
    s_lshl_b32 s28, s21, 13
    s_add_u32 s30, s28, 4096
    s_mov_b32 s94, 0
    v_lshrrev_b32 v1, 3, v{LANE}
    s_lshl_b32 s3, s22, 8
    s_lshl_b32 s6, s21, 6
    s_add_u32 s3, s3, s6
    v_add_u32 v1, s3, v1
    v_lshlrev_b32 v1, 11, v1
    v_lshrrev_b32 v2, 4, v{LANE}
    v_and_b32 v3, 7, v{LANE}
    v_xor_b32 v4, v2, v3
    v_xor_b32 v5, 4, v4
    v_lshl_add_u32 v4, v4, 4, v1
    v_lshl_add_u32 v5, v5, 4, v1
    v_mov_b32 v{R['dv']}, v4
    v_add_u32 v{R['dv']+1}, {16384-1024}, v5
    v_add_u32 v{R['dv']+2}, {2*(16384-1024)}, v4
    v_add_u32 v{R['dv']+3}, {3*(16384-1024)}, v5
    v_lshrrev_b32 v2, 5, v{LANE}
    v_and_b32 v1, 31, v{LANE}
    v_bfe_u32 v3, v{LANE}, 1, 3
    v_xor_b32 v3, v3, v2
    v_add_u32 v1, s6, v1
    v_lshlrev_b32 v1, 7, v1
    v_lshl_add_u32 v{R['xr']}, v3, 4, v1
    v_xor_b32 v{R['xr']+1}, 32, v{R['xr']}
    v_xor_b32 v{R['xr']+2}, 64, v{R['xr']}
    v_xor_b32 v{R['xr']+3}, 96, v{R['xr']}
    v_bfe_u32 v1, v{LANE}, 2, 2
    v_lshl_add_u32 v1, v2, 3, v1
    v_mul_u32_u24 v1, 192, v1
    v_bfe_u32 v3, v{LANE}, 4, 1
    v_lshl_add_u32 v1, v3, 5, v1
    v_and_b32 v3, 3, v{LANE}
    v_lshl_add_u32 v{R['wr']}, v3, 3, v1
    """)

def g1_setup_B(A):
    R = GB
    m12, s12 = magic_div(12, 511); m14, s14 = magic_div(14, 511)
    LB, LE = A.label("sB"), A.label("sE")
    A(f"""
    s_mov_b32 s26, 0
    s_mov_b32 s94, {WRING}
    s_cmp_eq_u32 s21, 2
    s_cselect_b32 s98, -1, 0
    s_mov_b32 s99, s98
    s_cmp_ge_u32 s21, 2
    s_cselect_b32 s8, s{PT['win']}, s{PT['wqkv']}
    s_cselect_b32 s9, s{PT['win']+1}, s{PT['wqkv']+1}
    s_mov_b32 s10, {1024*6144}
    s_cmov_b32 s10, {1024*7168}
    s_mov_b32 s11, 0x00020000
    s_mov_b32 s27, {32*6144}
    s_cmov_b32 s27, {32*7168}
    s_cbranch_scc1 {LB}
    s_mul_i32 s3, s21, 3
    s_lshl_b32 s28, s3, 10
    s_lshl_b32 s3, s3, 6
    s_lshl_b32 s39, s25, 6
    """)
    for j in range(4):
        A(f"""
        v_add_u32 v1, s3, v{LANE}
        v_add_u32 v1, {64*j}, v1
        v_mul_u32_u24 v2, {m12}, v1
        v_lshrrev_b32 v2, {s12}, v2
        v_mul_u32_u24 v3, 12, v2
        v_sub_u32 v3, v1, v3
        v_mul_u32_u24 v2, 6144, v2
        v_lshrrev_b32 v4, 2, v3
        v_lshl_add_u32 v2, v4, 11, v2
        v_and_b32 v3, 3, v3
        v_lshl_add_u32 v2, v3, 4, v2
        v_add_u32 v2, s39, v2
        v_subrev_u32 v{R['dv']+j}, {1024*j}, v2
        """)
    A(f"""
    s_add_u32 s40, s39, 2048
    s_add_u32 s41, s39, 4096
    s_branch {LE}
    {LB}:
    s_sub_u32 s3, s21, 2
    s_lshl_b32 s3, s3, 2
    s_lshl_b32 s28, s3, 10
    s_add_u32 s28, s28, {WBO}
    s_lshl_b32 s3, s3, 6
    s_lshr_b32 s39, s24, 1
    s_mul_i32 s39, s39, 3584
    s_mul_i32 s7, s23, 448
    s_add_u32 s39, s39, s7
    s_and_b32 s7, s24, 1
    s_mul_i32 s7, s7, 224
    s_add_u32 s39, s39, s7
    """)
    for j in range(4):
        A(f"""
        v_add_u32 v1, s3, v{LANE}
        v_add_u32 v1, {64*j}, v1
        v_mul_u32_u24 v2, {m14}, v1
        v_lshrrev_b32 v2, {s14}, v2
        v_mul_u32_u24 v3, 14, v2
        v_sub_u32 v3, v1, v3
        v_and_b32 v4, 0x13, v2
        v_bfe_u32 v5, v2, 2, 1
        v_lshl_add_u32 v4, v5, 3, v4
        v_bfe_u32 v5, v2, 3, 1
        v_lshl_add_u32 v4, v5, 2, v4
        v_mul_u32_u24 v4, 7168, v4
        v_lshl_add_u32 v4, v3, 4, v4
        v_add_u32 v4, s39, v4
        v_subrev_u32 v{R['dv']+j}, {1024*j}, v4
        """)
    A(f"s_add_u32 s40, s39, 128\ns_add_u32 s41, s39, 220\n{LE}:")

def g1_setup_B2(A):
    R = GB
    A(f"""
    v_and_b32 v1, 15, v{LANE}
    v_lshrrev_b32 v2, 4, v{LANE}
    v_lshrrev_b32 v3, 1, v1
    v_xor_b32 v4, v3, v2
    s_lshl_b32 s6, s21, 6
    v_add_u32 v1, s6, v1
    v_lshlrev_b32 v1, 7, v1
    v_lshl_add_u32 v{R['xr']}, v4, 4, v1
    v_xor_b32 v{R['xr']+1}, 64, v{R['xr']}
    v_bfe_u32 v1, v{LANE}, 2, 2
    v_bfe_u32 v3, v{LANE}, 4, 1
    v_lshl_add_u32 v1, v3, 2, v1
    v_lshrrev_b32 v3, 5, v{LANE}
    v_lshl_add_u32 v1, v3, 4, v1
    v_mul_u32_u24 v1, 224, v1
    v_and_b32 v3, 3, v{LANE}
    v_lshl_add_u32 v{R['wr']}, v3, 3, v1
    """)

def w_touch(A):
    A(f"""
    s_lshl_b32 s3, s37, 6
    s_lshl_b32 s6, s22, 7
    s_add_u32 s3, s3, s6
    v_add_u32 v212, s3, v{LANE}
    s_lshr_b32 s3, s27, 5
    v_mul_lo_u32 v212, v212, s3
    buffer_load_dword v213, v212, s[8:11], s39 offen
    buffer_load_dword v213, v212, s[8:11], s40 offen
    buffer_load_dword v213, v212, s[8:11], s41 offen
    """)
    return 3

def ones_setup(A, R, role):
    t = 1
    sel = "v_lshrrev_b32 v3, 1, v1" if role == "A" else f"v_lshrrev_b32 v3, 5, v{LANE}\nv_lshrrev_b32 v4, 1, v1\nv_xor_b32 v3, v3, v4"
    A(f"""
    v_and_b32 v1, 15, v{LANE}
    v_mov_b32 v2, 0x3f803f80
    {sel}
    v_cmp_eq_u32 vcc, 0, v3
    v_and_b32 v5, 1, v1
    v_mul_u32_u24 v5, 0xaaaa, v5
    v_cndmask_b32 v{R['one']}, 0, v2, vcc
    v_cndmask_b32 v{R['one']+1}, 0, v2, vcc
    """)
    if role == "A": A("v_cmp_eq_u32 vcc, 1, v3\ns_nop 1")
    A(f"v_cndmask_b32 v{R['one']+2}, 0, v2, vcc\nv_cndmask_b32 v{R['one']+3}, 0, v2, vcc\nv_add_u32 v{R['idx']}, 0x4444, v5")
    for i in range(4 * R["ns"]): A(f"v_mov_b32 v{R['cs']+i}, 0")
    A(f"s_cmp_eq_u32 s21, {R['sel']}\ns_cselect_b32 s42, s22, 99\ns_mov_b32 s41, 0\ns_mov_b32 s40, 0\nv_mov_b32 v240, 0\nv_mov_b32 v241, 0")
    srd(A, 12, PT["ws"], CSP, 32 * 8 * 2048)

def cs_sums(role, R):
    c = R["cs"]; ins = []; regs = []
    for i in range(R["ns"]):
        if role == "B" and i == 3: ins.append(f"v_add_f32 v{c+12}, v{c+12}, v{c+14}"); regs.append(c + 12)
        else: ins += [f"v_add_f32 v{c+4*i}, v{c+4*i}, v{c+4*i+1}", f"v_add_f32 v{c+4*i+2}, v{c+4*i+2}, v{c+4*i+3}"]; regs += [c + 4 * i, c + 4 * i + 2]
    return regs, ins

GTAB = 40960
def cs_hook(A, role, R, par, kind):
    L = A.label("cs")
    B = Asm(); B._lab = A._lab * 100
    B(L + ":")
    w0 = R["frag"] + (40 if role == "A" else 44) * par + 16
    for i in range(3): B(f"v_smfmac_f32_16x16x64_bf16 {vr(R['cs']+4*i,4)}, {vr(R['one'],4)}, {vr(w0+8*i,8)}, v{R['idx']}")
    if role == "B": B(f"v_mfma_f32_16x16x32_bf16 {vr(R['cs']+12,4)}, {vr(R['one'],4)}, {vr(w0+24,4)}, {vr(R['cs']+12,4)}")
    so = 0 if role == "A" else 1024
    if kind == "share" and par == 1:
        B(f"s_bitcmp1_b32 s41, 0\ns_cbranch_scc0 {L}r\ns_nop 7")
        B.extend(cs_sums(role, R)[1])
        B("s_lshl_b32 s3, s25, 3\ns_add_u32 s3, s3, s22\ns_lshl_b32 s3, s3, 11")
        for i in range(R["ns"]): B(f"v_mov_b32 v{R['cs']+4*i+1}, s31\nv_mov_b32 v{R['cs']+4*i+3}, s31")
        B("s_mov_b64 exec, 0xffff")
        for i in range(R["ns"]): B(f"buffer_store_dwordx4 {vr(R['cs']+4*i,4)}, v{L16}, s[12:15], s3 offen offset:{so+256*i} {SC}")
        B("s_mov_b64 exec, -1\ns_nop 0")
        for i in range(4 * R["ns"]): B(f"v_mov_b32 v{R['cs']+i}, 0")
    if kind == "last":
        regs, ins = cs_sums(role, R)
        G = R["frag"]
        B(f"v_lshlrev_b32 v238, 2, v{LANE}\nv_and_b32 v238, 63, v238\nv_add_u32 v237, {GTAB + (0 if role == 'A' else 512)}, v238\nv_add_u32 v238, {R['tab']}, v238")
        for k in range(len(regs)): B(f"ds_read_b32 v{G+k}, v237 offset:{64*k}")
        B.extend(ins)
        B("s_waitcnt lgkmcnt(0)")
        for k, r_ in enumerate(regs): B(f"v_add_f32 v{G+k}, v{G+k}, v{r_}")
        B("s_mov_b64 exec, 0xffff")
        for k in range(len(regs)): B(f"ds_write_b32 v238, v{G+k} offset:{64*k}")
        B("s_mov_b64 exec, -1\ns_waitcnt lgkmcnt(0)")
    B(f"s_branch {L}r")
    COLD.extend(l.strip() for l in B.lines)
    return [f"s_cbranch_vccnz {L}", f"{L}r:"]

GG = 210
def gather_regs(): return [210 + 4 * i for i in range(7)] + [186]
def gather_issue(A):
    L = A.label("ga"); B = Asm()
    B(f"""
    {L}:
    s_lshl_b32 s40, s25, 14
    s_lshl_b32 s3, s37, 10
    s_add_u32 s40, s40, s3
    v_lshrrev_b32 v241, 4, v{LANE}
    v_and_b32 v240, 15, v{LANE}
    v_lshlrev_b32 v240, 4, v240
    v_lshl_add_u32 v240, v241, 11, v240
    v_cmp_lt_u32 vcc, 1, v241
    v_add_u32 v241, 8192, v240
    v_mov_b32 v239, 1.0
    v_cndmask_b32 v241, v241, v240, vcc
    v_cndmask_b32_e64 v239, v239, 0, vcc
    """)
    B.extend(gather_loads()); B(f"s_mov_b64 vcc, 0\ns_branch {L}r")
    COLD.extend(l.strip() for l in B.lines)
    return ["s_cmp_ge_u32 s21, 2", f"s_cbranch_scc1 {L}", f"{L}r:"]
def gather_loads():
    g = gather_regs()
    return [f"buffer_load_dwordx4 {vr(g[4*u+i],4)}, v{240+u}, s[12:15], s40 offen offset:{256*i} {SC}" for u in range(2) for i in range(4)]
def gather_finish(A):
    L = A.label("gf"); B = Asm(); g = gather_regs()
    B(f"{L}:\ns_mov_b32 s97, 0x8000\n{L}p:\ns_waitcnt vmcnt(0)\nv_xor_b32 v238, s31, v{g[0]+1}")
    for i in range(8):
        for u in (1, 3):
            if i & 3 == 3: continue
            if i or u == 3: B(f"v_xor_b32 v209, s31, v{g[i]+u}\nv_or_b32 v238, v238, v209")
    B(f"v_xor_b32 v209, s31, v{g[3]+1}\nv_xor_b32 v{g[3]+3}, s31, v{g[7]+1}\nv_or_b32 v209, v209, v{g[3]+3}\nv_mul_lo_u32 v209, v209, s37\nv_or_b32 v238, v238, v209")
    B(f"v_cmp_ne_u32 vcc, 0, v238\ns_sub_u32 s97, s97, 1\ns_cbranch_vccz {L}q\ns_cmp_eq_u32 s97, 0\ns_cbranch_scc1 {L}q\ns_sleep 2")
    B.extend(gather_loads())
    B(f"s_branch {L}p\n{L}q:")
    vals = [g[k // 2] + 2 * (k & 1) for k in range(7)]
    for k, v in enumerate(vals): B(f"v_fmac_f32 v{v}, v239, v{g[4 + k // 2] + 2 * (k & 1)}")
    for sw in ("v_permlane16_swap_b32", "v_permlane32_swap_b32"):
        for v in vals: B(f"v_mov_b32 v{v+1}, v{v}")
        B("s_nop 0")
        for v in vals: B(f"{sw} v{v}, v{v+1}")
        for v in vals: B(f"v_add_f32 v{v}, v{v}, v{v+1}")
    B(f"s_lshl_b32 s3, s37, 9\ns_add_u32 s3, s3, {GTAB}\nv_lshlrev_b32 v238, 2, v{LANE}\nv_add_u32 v238, s3, v238\ns_mov_b64 exec, 0xffff")
    for k, v in enumerate(vals): B(f"ds_write_b32 v238, v{v} offset:{64*k}")
    B(f"s_mov_b64 exec, -1\ns_mov_b64 vcc, 0\ns_branch {L}r")
    COLD.extend(l.strip() for l in B.lines)
    return ["s_cmp_ge_u32 s21, 2", f"s_cbranch_scc1 {L}", f"{L}r:"]

def rs_load(role, R):
    return [f"buffer_load_dwordx4 {vr(R['rs'],4)}, v{L16}, s[16:19], s39 offen {SC}"]
def rs_wait(A, role, R):
    L = A.label("rs"); g = R["rs"]
    chk = ["s_waitcnt vmcnt(0)", f"v_cmp_ne_u32 vcc, s31, v{g+1}", f"v_cmp_ne_u32 s[40:41], s31, v{g+3}", "s_nop 0", "s_or_b64 vcc, vcc, s[40:41]"]
    COLD.extend([f"{L}:", "s_mov_b32 s97, 0x8000", f"{L}b:", "s_sleep 2"] + rs_load(role, R) + ["s_sub_u32 s97, s97, 1", "s_cmp_eq_u32 s97, 0", f"s_cbranch_scc1 {L}t"] + chk +
                [f"s_cbranch_vccnz {L}b", f"{L}t:", "s_waitcnt vmcnt(0)", f"s_branch {L}r"])
    A.extend(chk + [f"s_cbranch_vccnz {L}", f"{L}r:"])

def g1_main(A, role, R, nacc, extra):
    A(f"s_mov_b32 s95, {WRING + 3*WSLOT}\ns_mov_b32 s96, {2*XSLOT}")
    prio(A, "pg" + role)
    ones_setup(A, R, role)
    for i in range(nacc): A(f"v_mov_b32 v{i}, 0")
    A(f"s_waitcnt vmcnt({12 + extra}) lgkmcnt(0)\ns_barrier")
    stamp(A, 1)
    if role == "B": A(f"v_mov_b32 v242, {NONCE}\nds_read_b32 v243, v242")
    A.extend(g1_step(role, 1, False, True, R)[1])
    A(f"s_waitcnt vmcnt({8 + extra}) lgkmcnt(0)" if role == "B" else "s_waitcnt lgkmcnt(0)")
    if role == "B": A("v_readfirstlane_b32 s31, v243")
    def pair(dma, vm, kinds, reads=(1, 1), tail=None, pre=((), ()), post=((), ())):
        if kinds[0] == "share": A("s_lshr_b32 s3, s41, 1\ns_cmp_eq_u32 s3, s42\ns_cselect_b64 vcc, -1, 0")
        else: A(f"s_cmp_eq_u32 s21, {R['sel']}\ns_cselect_b64 vcc, -1, 0")
        for par in range(2):
            A("s_barrier")
            A.extend(cs_hook(A, role, R, par, kinds[par]))
            A.extend(pre[par])
            A.extend(g1_step(role, par, dma[par], reads[par], R)[0])
            A.extend(post[par])
            if par == 1 and role == "A": A.extend(itr(1))
            if par == 1 and kinds[0] == "share": A("s_add_u32 s41, s41, 1")
            if par == 1 and tail: A(tail)
            w = ([f"vmcnt({vm[par]})"] if vm[par] is not None else []) + (["lgkmcnt(0)"] if reads[par] else [])
            if w: A("s_waitcnt " + " ".join(w))
    if role == "A": itr0(A, 1)
    L = A.label("g1" + role)
    A("s_mov_b32 s29, 12"); align(A, "g" + role); A(L + ":")
    if role == "B" and OPT.get("me"):
        Lw = A.label("mw")
        A(f"s_cmp_eq_u32 s41, s43\ns_cbranch_scc1 {Lw}\n{Lw}r:")
        COLD.extend([f"{Lw}:", "buffer_load_dword v211, v210, s[16:19], s30 offen", "s_add_u32 s30, s30, 8192", f"s_add_u32 s43, s43, {OPT.get('mp', 5)}", f"s_branch {Lw}r"])
    sh = ("share", "share")
    vb = 11 if OPT.get("mw") else 8
    pair((1, 1), (8, None) if role == "A" else (vb, vb), sh, tail="s_sub_u32 s29, s29, 1\ns_cmp_lg_u32 s29, 0")
    A(f"s_cbranch_scc1 {L}")
    if OPT.get("hs") == 9: stamp(A, 7, force=True)
    B = Asm(); srd(B, 16, PT["ws"], RS, 2048 * 16); B("s_lshl_b32 s39, s22, 2\ns_add_u32 s39, s39, s21\ns_lshl_b32 s39, s39, 10")
    rsl = [l.strip() for l in B.lines] + rs_load(role, R)
    ow = ("own", "own")
    if role == "A":
        pair((1, 1), (8, None), ow); pair((1, 0), (8, None), ow, pre=((), gather_issue(A)))
        pair((0, 0), (0, None), ow, pre=((), gather_finish(A)))
        pair((0, 0), (None, None), ("own", "last"), (1, 0), pre=(rsl, ()))
    else:
        pair((1, 1), (vb, vb), ow); pair((1, 1), (vb, vb), ow)
        pair((0, 0), (6 if OPT.get("mw") else 4, 1 if OPT.get("mw") else 0), ow)
        pair((0, 0), (None, None), ("own", "last"), (1, 0), pre=(rsl, ()))
    if OPT.get("hs") == 9: stamp(A, 8, force=True)
    rs_wait(A, role, R)
    if OPT.get("hs") == 9: stamp(A, 9, force=True)
    A("s_barrier")

RA = dict(O=0, S=32, Pk=64, Q=96, K=112, V=120, L=128, ONE=136, IDX=140, cur=141, nxt=142, dk=143, dv=144, tmp=148)

def epi_A(A):
    R = RA; g = 198
    CS, RW, T = 144, 160, 176
    A("v_mov_b32 v198, v176\nv_mov_b32 v199, v178")
    srd(A, 8, PT["ws"], KF, 8 * MB)
    A(f"""
    s_lshl_b32 s3, s21, 9
    s_add_u32 s3, s3, {ROWT}
    v_lshlrev_b32 v192, 2, v{LANE}
    v_add_u32 v193, s3, v192
    ds_write_b32 v193, v{g}
    ds_write_b32 v193, v{g+1} offset:256
    v_lshrrev_b32 v194, 5, v{LANE}
    v_lshlrev_b32 v194, 4, v194
    v_add_u32 v195, s3, v194
    v_add_u32 v194, {GA['tab']}, v194
    v_and_b32 v192, 127, v192
    v_add_u32 v192, {GA['tab']+256}, v192
    ds_read_b32 v196, v192
    """)
    for q in range(4): A(f"ds_read_b128 {vr(CS+4*q,4)}, v194 offset:{128+32*q}")
    A(f"""
    v_mov_b32 v200, v{g}
    v_mov_b32 v202, v{g}
    v_mov_b32 v204, v{g+1}
    v_mov_b32 v206, v{g+1}
    s_lshl_b32 s3, s25, 6
    s_lshl_b32 s6, s22, 3
    v_permlane32_swap_b32 v200, v202
    v_permlane32_swap_b32 v204, v206
    s_add_u32 s3, s3, s6
    s_lshl_b32 s6, s21, 1
    s_add_u32 s3, s3, s6
    s_lshl_b32 s6, s3, 11
    s_add_u32 s7, s6, {4*MB}
    v_mov_b32 v201, v200
    v_mov_b32 v203, v202
    v_mov_b32 v205, v204
    v_mov_b32 v207, v206
    """)
    def fix_rowlane(a0, rb):
        for q in range(8): A(f"v_pk_mul_f32 {vr(T+2*q,2)}, {vr(CS+2*q,2)}, {vr(204+2*rb,2)}")
        for q in range(8): A(f"v_pk_fma_f32 {vr(a0+2*q,2)}, {vr(a0+2*q,2)}, {vr(200+2*rb,2)}, {vr(T+2*q,2)}")
    def pack_store(a0, d0, so, rb):
        for i in range(8): A(f"v_cvt_pk_bf16_f32 v{d0+i}, v{a0+2*i}, v{a0+2*i+1}")
        for f in range(2): A(f"buffer_store_dwordx4 {vr(d0+4*f,4)}, v{L16}, s[8:11], {so} offen offset:{(rb*2+f)*1024} {SC}")
    def rowreads(rb):
        for q in range(4): A(f"ds_read_b128 {vr(RW+4*q,4)}, v195 offset:{128*rb+32*q}")
        for q in range(4): A(f"ds_read_b128 {vr(208+4*q,4)}, v195 offset:{256+128*rb+32*q}")
    rowreads(0)
    A("s_waitcnt lgkmcnt(8)\nv_mov_b32 v197, v196")
    for rb in range(2): fix_rowlane((rb * 3 + 1) * 16, rb); pack_store((rb * 3 + 1) * 16, 112 + 8 * rb, "s6", rb)
    for q in range(4): A(f"ds_read_b128 {vr(CS+4*q,4)}, v194 offset:{32*q}")
    for rb in range(2):
        a0 = (rb * 3 + 2) * 16
        A(f"s_waitcnt lgkmcnt({4 if rb == 0 else 0})")
        for q in range(8): A(f"v_pk_mul_f32 {vr(T+2*q,2)}, {vr(208+2*q,2)}, v[196:197]")
        for q in range(8): A(f"v_pk_fma_f32 {vr(a0+2*q,2)}, {vr(a0+2*q,2)}, {vr(RW+2*q,2)}, {vr(T+2*q,2)}")
        if rb == 0: rowreads(1)
        pack_store(a0, 128 + 8 * rb, "s7", rb)
    for i in range(8): A(f"v_mul_f32 v{200+i}, {fhex(QSCALE)}, v{200+i}")
    for rb in range(2):
        fix_rowlane(rb * 48, rb)
        for i in range(8): A(f"v_cvt_pk_bf16_f32 v{R['Q']+8*rb+i}, v{rb*48+2*i}, v{rb*48+2*i+1}")
    A(f"s_lshl_b32 s43, s25, 10\ns_add_u32 s43, s43, {FKV}\ns_lshl_b32 s42, s22, 7\ns_add_u32 s42, s42, s43")

def attn_slot(n, extra_mid=None, extra_end=None):
    R = RA
    qb = n & 1; b = n >> 1
    S = R["S"] + 16 * qb; Sn = R["S"] + 16 * (qb ^ 1)
    P = R["Pk"] + 8 * qb; Pp = R["Pk"] + 8 * (qb ^ 1)
    qn = qb ^ 1
    K, V, Q, O, L = R["K"], R["V"], R["Q"] + 8 * qn, R["O"] + 16 * qn, R["L"] + 4 * qn
    valu = []
    head = [f"v_cvt_pk_bf16_f32 v{Pp+7}, v{Sn+14}, v{Sn+15}"]
    for i in range(16):
        valu.append(f"v_exp_f32 v{S+i}, v{S+i}")
        p2 = i - 3
        if p2 >= 0 and p2 % 2 == 0: valu.append(f"v_cvt_pk_bf16_f32 v{P+p2//2}, v{S+p2}, v{S+p2+1}")
    M = [f"v_mfma_f32_32x32x16_bf16 {vr(Sn,16)}, {vr(K,4)}, {vr(Q,4)}, 0",
         f"v_mfma_f32_32x32x16_bf16 {vr(Sn,16)}, {vr(K+4,4)}, {vr(Q+4,4)}, {vr(Sn,16)}",
         f"v_mfma_f32_32x32x16_bf16 {vr(O,16)}, {vr(V,4)}, {vr(Pp,4)}, {vr(O,16)}",
         f"v_mfma_f32_32x32x16_bf16 {vr(O,16)}, {vr(V+4,4)}, {vr(Pp+4,4)}, {vr(O,16)}",
         f"v_smfmac_f32_16x16x64_bf16 {vr(L,4)}, {vr(R['ONE'],4)}, {vr(Pp,8)}, v{R['IDX']}"]
    pre = [[] for _ in range(5)]; post = [[] for _ in range(5)]
    if qb == 1: pre[0].append("s_waitcnt lgkmcnt(0)")
    if qb == 0:
        ka, ko = (R["cur"], (b + 1) * 4096) if b < 3 else (R["nxt"], 0)
        post[1] += [f"ds_read_b128 {vr(K,4)}, v{ka} offset:{ko}", f"ds_read_b128 {vr(K+4,4)}, v{ka} offset:{ko+1024}"]
        post[3] += [f"ds_read_b128 {vr(V,4)}, v{R['cur']} offset:{b*4096+2048}", f"ds_read_b128 {vr(V+4,4)}, v{R['cur']} offset:{b*4096+3072}"]
    if extra_mid:
        for k, v in extra_mid.items(): post[k] += v
    out = list(head)
    cuts = {0: [0, 4, 9, 14, 19], 1: [0, 0, 10, 10, 19], 2: [0, 0, 9, 9, 9], 3: [0, 7, 7, 14, 14], 4: [0, 0, 8, 8, 16]}[OPT.get("av", 0)] + [len(valu)]
    for g in range(5): out += pre[g] + [M[g]] + post[g] + valu[cuts[g]:cuts[g + 1]]
    return out + (extra_end or [])

def kv_dma():
    R = RA
    return [["s_add_u32 m0, s94, s28", "s_nop 0", f"buffer_load_dwordx4 v{R['dk']}, s[8:11], s26 offen {SC} lds"],
            [f"buffer_load_dwordx4 v{R['dk']}, s[8:11], s26 offen offset:1024 {SC} lds"],
            [f"buffer_load_dwordx4 v{R['dv']}, s[8:11], s26 offen offset:2048 {SC} lds"],
            [f"buffer_load_dwordx4 v{R['dv']}, s[8:11], s26 offen offset:3072 {SC} lds", "s_add_u32 s26, s26, 8192"] + rot3(94, KV_SLOT, AREG)]

def attn_setup(A):
    R = RA; t = R["tmp"]
    for i in range(32): A(f"v_mov_b32 v{R['O']+i}, 0")
    for i in range(16): A(f"v_mov_b32 v{R['Pk']+i}, 0\nv_mov_b32 v{R['S']+16+i}, 0")
    for i in range(8): A(f"v_mov_b32 v{R['V']+i}, 0\nv_mov_b32 v{R['L']+i}, 0")
    A(f"""
    v_and_b32 v{t}, 15, v{LANE}
    v_mov_b32 v{t+1}, 0x3f803f80
    v_cmp_gt_u32 vcc, 2, v{t}
    v_lshrrev_b32 v{t+2}, 1, v{t}
    s_nop 0
    v_cndmask_b32 v{R['ONE']}, 0, v{t+1}, vcc
    v_cndmask_b32 v{R['ONE']+1}, 0, v{t+1}, vcc
    v_cmp_eq_u32 vcc, 1, v{t+2}
    v_and_b32 v{t}, 1, v{t}
    v_mul_u32_u24 v{t}, 0xaaaa, v{t}
    v_cndmask_b32 v{R['ONE']+2}, 0, v{t+1}, vcc
    v_cndmask_b32 v{R['ONE']+3}, 0, v{t+1}, vcc
    v_add_u32 v{R['IDX']}, 0x4444, v{t}
    v_add_u32 v{R['cur']}, {AREG}, v{L16}
    v_add_u32 v{R['nxt']}, {AREG + KV_SLOT}, v{L16}
    s_mov_b32 s95, {AREG + KV_SLOT}
    s_lshl_b32 s3, s25, 17
    s_lshl_b32 s6, s21, 11
    s_add_u32 s6, s6, s3
    v_add_u32 v{R['dk']}, s6, v{L16}
    v_add_u32 v{R['dv']}, {4*MB-2048}, v{R['dk']}
    s_mov_b32 s26, 0
    s_lshl_b32 s28, s21, 12
    s_mov_b32 s94, {AREG}
    """)

def attn_main(A):
    R = RA
    for c in range(2):
        for g in kv_dma(): A.extend(g)
    A("s_waitcnt vmcnt(4)")
    gsync(A)
    K, Q, S = R["K"], R["Q"], R["S"]
    A(f"""
    ds_read_b128 {vr(K,4)}, v{R['cur']}
    ds_read_b128 {vr(K+4,4)}, v{R['cur']} offset:1024
    s_waitcnt lgkmcnt(0)
    v_mfma_f32_32x32x16_bf16 {vr(S,16)}, {vr(K,4)}, {vr(Q,4)}, 0
    v_mfma_f32_32x32x16_bf16 {vr(S,16)}, {vr(K+4,4)}, {vr(Q+4,4)}, {vr(S,16)}
    s_mov_b32 s29, 14
    s_nop 7
    s_nop 2
    """)
    stamp(A, 5)
    def chunk(dma, more, end7):
        for n in range(8):
            mid, end = None, None
            if n == 4 and more: mid = {4: ["s_waitcnt vmcnt(0)"] + arrive()}
            if n == 5 and more:
                c1, c2 = poll_split(A)
                mid = {1: poll_issue(), 4: c1}; end = c2
            if n == 6 and dma: d = kv_dma(); mid = {0: d[0], 2: d[1], 4: d[2]}
            if n == 7:
                if dma: mid = {1: kv_dma()[3]}
                end = end7
            A.extend(attn_slot(n, mid, end))
    itr0(A, 2)
    adv = itr(2) + rot3(95, KV_SLOT, AREG) + [f"v_mov_b32 v{R['cur']}, v{R['nxt']}", f"v_add_u32 v{R['nxt']}, s95, v{L16}"]
    L = A.label("att")
    A(L + ":")
    chunk(True, True, adv + ["s_sub_u32 s29, s29, 1", "s_cmp_lg_u32 s29, 0", f"s_cbranch_scc1 {L}"])
    L2 = A.label("att")
    A(f"s_mov_b32 s29, 2\n{L2}:")
    chunk(False, True, adv + ["s_sub_u32 s29, s29, 1", "s_cmp_lg_u32 s29, 0", f"s_cbranch_scc1 {L2}"])
    V, Pp, O, Lq = R["V"], R["Pk"] + 8, R["O"] + 16, R["L"] + 4
    A(f"""
    v_cvt_pk_bf16_f32 v{Pp+7}, v{S+30}, v{S+31}
    s_nop 1
    v_mfma_f32_32x32x16_bf16 {vr(O,16)}, {vr(V,4)}, {vr(Pp,4)}, {vr(O,16)}
    v_mfma_f32_32x32x16_bf16 {vr(O,16)}, {vr(V+4,4)}, {vr(Pp+4,4)}, {vr(O,16)}
    v_smfmac_f32_16x16x64_bf16 {vr(Lq,4)}, {vr(R['ONE'],4)}, {vr(Pp,8)}, v{R['IDX']}
    s_nop 7
    s_nop 3
    """)

def attn_finish(A):
    R = RA; t = R["tmp"]; O = R["O"]
    for qb in range(2):
        L = R["L"] + 4 * qb
        A(f"""
        v_add_f32 v{L}, v{L}, v{L+1}
        v_add_f32 v{L+2}, v{L+2}, v{L+3}
        s_nop 1
        v_permlane16_swap_b32 v{L}, v{L+2}
        v_mov_b32 v{t+qb}, v{L}
        s_nop 1
        v_permlane32_swap_b32 v{t+qb}, v{L}
        """)
    LS, LD = A.label("slow"), A.label("fin")
    A(f"v_mul_f32 v{t+2}, 0, v{O}")
    for i in range(1, 32): A(f"v_fmac_f32 v{t+2}, 0, v{O+i}")
    A(f"""
    v_min_f32 v{t+3}, v{t}, v{t+1}
    v_max_f32 v{t+4}, v{t}, v{t+1}
    v_add_f32 v{t+3}, v{t+3}, v{t+2}
    v_add_f32 v{t+4}, v{t+4}, v{t+2}
    v_cmp_nle_f32 vcc, {fhex(2.0**-60)}, v{t+3}
    s_mov_b32 s42, {fhex(2.0**60)}
    v_cmp_nge_f32 s[40:41], s42, v{t+4}
    v_cmp_u_f32 s[42:43], v{t}, v{t+1}
    s_nop 1
    s_or_b64 vcc, vcc, s[40:41]
    s_or_b64 vcc, vcc, s[42:43]
    s_cbranch_vccnz {LS}
    {LD}:
    """)
    B = Asm(); B._lab = 9000
    B(LS + ":"); attn_slow(B); B(f"s_branch {LD}")
    COLD.extend(l.strip() for l in B.lines)
    srd(A, 12, PT["ws"], OF, 4 * MB)
    A(f"""
    v_rcp_f32 v{t}, v{t}
    v_rcp_f32 v{t+1}, v{t+1}
    s_lshl_b32 s6, s22, 3
    s_lshl_b32 s7, s21, 1
    s_add_u32 s6, s6, s7
    s_lshl_b32 s6, s6, 5
    s_add_u32 s6, s6, s25
    s_lshl_b32 s6, s6, 11
    s_add_u32 s7, s6, {32*2048}
    """)
    for qb in range(2):
        for i in range(16): A(f"v_mul_f32 v{O+16*qb+i}, v{O+16*qb+i}, v{t+qb}")
        d = R["Pk"] + 8 * qb
        for i in range(8): A(f"v_cvt_pk_bf16_f32 v{d+i}, v{O+16*qb+2*i}, v{O+16*qb+2*i+1}")
        for f in range(2): A(f"buffer_store_dwordx4 {vr(d+4*f,4)}, v{L16}, s[12:15], s{6+qb} offen offset:{1024*f} {SC}")
    A(f"""
    s_lshl_b32 s42, s22, 5
    s_add_u32 s42, s42, s25
    s_lshl_b32 s42, s42, 7
    s_add_u32 s42, s42, {FO}
    s_lshr_b32 s43, s100, 1
    s_lshl_b32 s43, s43, 12
    s_add_u32 s43, s43, {FO}
    """)

def attn_slow(A):
    R = RA; t = R["tmp"]; O, S, P, K, V, Q = R["O"], R["S"], R["Pk"], R["K"], R["V"], R["Q"]
    m = t + 4; al = t + 6; u = t + 7
    L = A.label("sl")
    for i in range(32): A(f"v_mov_b32 v{O+i}, 0")
    A(f"""
    v_mov_b32 v{t}, 0
    v_mov_b32 v{t+1}, 0
    v_mov_b32 v{m}, {fhex(-3.0e38)}
    v_mov_b32 v{m+1}, {fhex(-3.0e38)}
    s_lshl_b32 s26, s25, 17
    s_add_u32 s27, s26, {4*MB}
    s_mov_b32 s29, 64
    {L}:
    buffer_load_dwordx4 {vr(K,4)}, v{L16}, s[8:11], s26 offen {SC}
    buffer_load_dwordx4 {vr(K+4,4)}, v{L16}, s[8:11], s26 offen offset:1024 {SC}
    buffer_load_dwordx4 {vr(V,4)}, v{L16}, s[8:11], s27 offen {SC}
    buffer_load_dwordx4 {vr(V+4,4)}, v{L16}, s[8:11], s27 offen offset:1024 {SC}
    s_add_u32 s26, s26, 2048
    s_add_u32 s27, s27, 2048
    s_waitcnt vmcnt(0)
    """)
    for qb in range(2):
        Oq = O + 16 * qb
        A(f"""
        v_mfma_f32_32x32x16_bf16 {vr(S,16)}, {vr(K,4)}, {vr(Q+8*qb,4)}, 0
        v_mfma_f32_32x32x16_bf16 {vr(S,16)}, {vr(K+4,4)}, {vr(Q+8*qb+4,4)}, {vr(S,16)}
        s_nop 7
        s_nop 3
        v_max3_f32 v{u}, v{S}, v{S+1}, v{m+qb}
        """)
        for i in range(2, 16, 2): A(f"v_max3_f32 v{u}, v{S+i}, v{S+i+1}, v{u}")
        A(f"""
        v_mov_b32 v{al}, v{u}
        s_nop 1
        v_permlane32_swap_b32 v{al}, v{u}
        v_max_f32 v{u}, v{u}, v{al}
        v_sub_f32 v{al}, v{m+qb}, v{u}
        v_exp_f32 v{al}, v{al}
        v_mov_b32 v{m+qb}, v{u}
        """)
        for i in range(16): A(f"v_sub_f32 v{S+i}, v{S+i}, v{u}")
        for i in range(16): A(f"v_exp_f32 v{S+i}, v{S+i}")
        A(f"v_mul_f32 v{t+qb}, v{t+qb}, v{al}")
        for i in range(16): A(f"v_mul_f32 v{Oq+i}, v{Oq+i}, v{al}")
        for i in range(16): A(f"v_add_f32 v{t+qb}, v{t+qb}, v{S+i}")
        for i in range(8): A(f"v_cvt_pk_bf16_f32 v{P+i}, v{S+2*i}, v{S+2*i+1}")
        A(f"""
        s_nop 1
        v_mfma_f32_32x32x16_bf16 {vr(Oq,16)}, {vr(V,4)}, {vr(P,4)}, {vr(Oq,16)}
        v_mfma_f32_32x32x16_bf16 {vr(Oq,16)}, {vr(V+4,4)}, {vr(P+4,4)}, {vr(Oq,16)}
        """)
    A(f"s_sub_u32 s29, s29, 1\ns_cmp_lg_u32 s29, 0\ns_nop 7\ns_cbranch_scc1 {L}\ns_nop 3")
    for qb in range(2):
        A(f"v_mov_b32 v{u}, v{t+qb}\ns_nop 1\nv_permlane32_swap_b32 v{u}, v{t+qb}\nv_add_f32 v{t+qb}, v{t+qb}, v{u}")

def pack2(A, d, a, b, swap):
    A(f"v_cvt_pk_bf16_f32 v{d}, v{a}, v{a+1}\nv_cvt_pk_bf16_f32 v{d+1}, v{a+2}, v{a+3}")
    A(f"v_cvt_pk_bf16_f32 v{d+2}, v{b}, v{b+1}\nv_cvt_pk_bf16_f32 v{d+3}, v{b+2}, v{b+3}")
    A(f"s_nop 1\n{swap} v{d}, v{d+2}\n{swap} v{d+1}, v{d+3}")

def epi_B(A):
    LZ2, LH1, LEND = A.label("z2"), A.label("h1"), A.label("eB")
    CS, TM = 112, 120
    A(f"v_lshrrev_b32 v204, 4, v{LANE}\nv_lshlrev_b32 v204, 4, v204\nv_add_u32 v204, {GB['tab']}, v204")
    for ft in range(7): A(f"ds_read_b128 {vr(160+4*ft,4)}, v204 offset:{64*ft}")
    bcast4(A, 212, 188); bcast4(A, 214, 196)
    A("s_waitcnt lgkmcnt(0)")
    for st in range(4):
        for i in range(14): A(f"v_pk_mul_f32 {vr(120+2*i,2)}, {vr(160+2*i,2)}, {vr(196+2*st,2)}")
        for i in range(14): A(f"v_pk_fma_f32 {vr(st*28+2*i,2)}, {vr(st*28+2*i,2)}, {vr(188+2*st,2)}, {vr(120+2*i,2)}")
    for i, c in enumerate((GC0, GC0, GC1, GC1)): A(f"v_mov_b32 v{CS+i}, {fhex(c)}")
    A(f"v_mov_b32 v{CS+4}, 1.0\nv_mov_b32 v{CS+5}, 1.0\ns_nop 1")
    gelu_pairs(A, list(range(0, 112, 2)), TM, CS)
    stamp(A, 3)
    A(f"s_mov_b32 s16, 4096\ns_mov_b32 s17, 8192\ns_mov_b32 s18, 12288\ns_cmp_ge_u32 s24, 2\ns_cbranch_scc1 {LZ2}")
    so = lambda k: ("0", "s16", "s17", "s18")[k >> 2]
    srd(A, 12, PT["ws"], Z1F, ZBYTES)
    A(f"""
    v_and_b32 v130, 15, v{LANE}
    v_lshrrev_b32 v131, 5, v{LANE}
    v_lshl_add_u32 v130, v131, 4, v130
    v_bfe_u32 v131, v{LANE}, 4, 1
    v_lshl_add_u32 v130, v131, 5, v130
    v_lshlrev_b32 v130, 4, v130
    s_lshl_b32 s3, s23, 6
    s_lshl_b32 s6, s22, 3
    s_add_u32 s3, s3, s6
    s_lshl_b32 s6, s21, 1
    s_add_u32 s3, s3, s6
    s_lshl_b32 s3, s3, 1
    s_add_u32 s3, s3, s24
    s_mul_i32 s3, s3, 7168
    v_add_u32 v130, s3, v130
    v_add_u32 v131, {7*2048}, v130
    """)
    k = 0
    for sp in range(2):
        for ft in range(7):
            d = 136 + 4 * (k % 4); k += 1
            pack2(A, d, ((2 * sp) * 7 + ft) * 4, ((2 * sp + 1) * 7 + ft) * 4, "v_permlane32_swap_b32")
            A(f"buffer_store_dwordx4 {vr(d,4)}, v{130+sp}, s[12:15], {so(ft)} offen offset:{(ft&3)*1024} {SC}")
    A(f"s_branch {LEND}\n{LZ2}:")
    S = 128
    for st in range(4): A(f"v_pk_add_f32 {vr(S+2*st,2)}, {vr(st*28,2)}, {vr(st*28+2,2)}")
    for i in range(2, 14):
        for st in range(4): A(f"v_pk_add_f32 {vr(S+2*st,2)}, {vr(S+2*st,2)}, {vr(st*28+2*i,2)}")
    for st in range(4): A(f"v_add_f32 v{136+st}, v{S+2*st}, v{S+2*st+1}")
    reduce4(A, 136)
    A(f"v_mul_f32 v137, {fhex(-1/112)}, v136")
    bcast4(A, 137, 140)
    for i in range(14):
        for st in range(4): A(f"v_pk_add_f32 {vr(148+2*st,2)}, {vr(st*28+2*i,2)}, {vr(140+2*st,2)}")
        for st in range(4):
            if i == 0: A(f"v_pk_mul_f32 {vr(S+2*st,2)}, {vr(148+2*st,2)}, {vr(148+2*st,2)}")
            else: A(f"v_pk_fma_f32 {vr(S+2*st,2)}, {vr(148+2*st,2)}, {vr(148+2*st,2)}, {vr(S+2*st,2)}")
    for st in range(4): A(f"v_add_f32 v{156+st}, v{S+2*st}, v{S+2*st+1}")
    reduce4(A, 156)
    if OPT.get("hs") == 10: stamp(A, 7, force=True)
    srd(A, 12, PT["ws"], STAT, 16 * 2048 * 16)
    Lp, Lpd = A.label("stp"), A.label("std")
    A(f"""
    v_mov_b32 v137, s31
    v_mov_b32 v138, v156
    v_mov_b32 v139, s31
    s_lshl_b32 s6, s22, 8
    s_lshl_b32 s7, s21, 6
    s_add_u32 s6, s6, s7
    s_lshl_b32 s6, s6, 4
    v_add_u32 v160, s6, v{L16}
    s_lshl_b32 s3, s23, 1
    s_add_u32 s3, s3, s24
    s_sub_u32 s3, s3, 2
    s_lshl_b32 s3, s3, 15
    buffer_store_dwordx4 v[136:139], v160, s[12:15], s3 offen {SC}
    s_mov_b32 s97, 0x8000
    v_and_b32 v161, 15, v{LANE}
    v_lshlrev_b32 v161, 15, v161
    s_add_u32 s6, s6, {63*16+12}
    {Lp}:
    buffer_load_dword v162, v161, s[12:15], s6 offen {SC}
    s_sub_u32 s97, s97, 1
    s_cmp_eq_u32 s97, 0
    s_cbranch_scc1 {Lpd}
    s_waitcnt vmcnt(0)
    v_cmp_ne_u32 vcc, s31, v162
    s_cbranch_vccz {Lp}f
    s_sleep 4
    s_branch {Lp}
    {Lp}f:
    """)
    G = 164
    if OPT.get("hs") == 10: stamp(A, 8, force=True)
    for ct in range(16): A(f"s_mov_b32 s3, {ct*32768}\nbuffer_load_dwordx4 {vr(G+4*ct,4)}, v160, s[12:15], s3 offen {SC}")
    A("s_waitcnt vmcnt(0)")
    A(f"v_xor_b32 v163, s31, v{G+1}")
    for ct in range(16):
        for u in (1, 3):
            if ct or u == 3: A(f"v_xor_b32 v162, s31, v{G+4*ct+u}\nv_or_b32 v163, v163, v162")
    A(f"""
    v_cmp_ne_u32 vcc, 0, v163
    s_cbranch_vccnz {Lp}
    {Lpd}:
    s_waitcnt vmcnt(0)
    """)
    if OPT.get("hs") == 10: stamp(A, 9, force=True)
    for ct in range(16): A(f"v_mov_b32 v{128+2*ct}, v{G+4*ct}\nv_mov_b32 v{129+2*ct}, v{G+4*ct+2}")
    stats_combine(A, 128, 160)
    A("v_mul_f32 v160, v160, v161\nv_sub_f32 v160, 0, v160")
    bcast4(A, 161, 128); bcast4(A, 160, 136)
    for i in range(14):
        for st in range(4): A(f"v_pk_fma_f32 {vr(st*28+2*i,2)}, {vr(st*28+2*i,2)}, {vr(128+2*st,2)}, {vr(136+2*st,2)}")
    srd(A, 12, PT["ws"], Z2N, ZBYTES)
    A(f"""
    s_lshl_b32 s3, s23, 5
    s_lshl_b32 s6, s22, 2
    s_add_u32 s3, s3, s6
    s_add_u32 s3, s3, s21
    s_lshl_b32 s3, s3, 1
    s_and_b32 s6, s24, 1
    s_add_u32 s3, s3, s6
    s_mul_i32 s3, s3, 14336
    v_lshrrev_b32 v146, 4, v{LANE}
    v_lshlrev_b32 v146, 6, v146
    v_xor_b32 v146, v146, v{L16}
    v_add_u32 v146, s3, v146
    s_lshl_b32 s6, s6, 6
    v_xor_b32 v147, s6, v146
    s_cmp_eq_u32 s24, 3
    s_cbranch_scc1 {LH1}
    """)
    for half in range(2):
        n = 0
        for st in range(4):
            for p in range(3):
                ft = 2 * p + half; k = st * 3 + p; d = 148 + 4 * (n % 4); n += 1
                pack2(A, d, (st * 7 + ft) * 4, (st * 7 + ft + 1) * 4, "v_permlane16_swap_b32")
                A(f"buffer_store_dwordx4 {vr(d,4)}, v146, s[12:15], {so(k)} offen offset:{(k&3)*1024} {SC}")
            if st & 1:
                ft = 6 if half == 0 else 0; k = 12 + st // 2; d = 148 + 4 * (n % 4); n += 1
                pack2(A, d, ((st - 1) * 7 + ft) * 4, (st * 7 + ft) * 4, "v_permlane16_swap_b32")
                A(f"buffer_store_dwordx4 {vr(d,4)}, v147, s[12:15], {so(k)} offen offset:{(k&3)*1024} {SC}")
        if half == 0: A(f"s_branch {LEND}\n{LH1}:")
    A(f"""
    {LEND}:
    s_lshl_b32 s43, s23, 12
    s_add_u32 s43, s43, {FZ}
    s_lshl_b32 s42, s36, 7
    s_add_u32 s42, s42, s43
    """)

RB = dict(fr=112, rel=208, ab=214, dz=220, dw=222, tmp=224)

def sp_dma():
    R = RB; g = []
    g.append(["s_add_u32 m0, s94, s30", "s_nop 0", f"buffer_load_dwordx4 v{R['dw']}, s[12:15], s27 offen lds"])
    g.append([f"buffer_load_dwordx4 v{R['dw']+1}, s[12:15], s27 offen offset:1024 lds", "s_add_u32 s27, s27, 128"])
    for j in range(7):
        ins = []
        if j == 0: ins += ["s_add_u32 m0, s94, s28", "s_nop 0"]
        if j == 4: ins += ["s_add_u32 m0, m0, 4096", "s_nop 0"]
        ins.append(f"buffer_load_dwordx4 v{R['dz']+(j>>2)}, s[8:11], s26 offen offset:{(j%4)*1024} {SC} lds")
        if j == 6: ins += ["s_add_u32 s26, s26, 28672"] + rot3(94, SP_SLOT, BREG)
        g.append(ins)
    return g
def sp_reads(buf, ks):
    R = RB; f = R["fr"] + 32 * buf; ab = R["ab"]
    rd = [f"ds_read_b128 {vr(f,4)}, v{ab+4+ks}"]
    for fb in range(7):
        for hf in range(2):
            if fb == 3: a, o = ab + 2 + (ks ^ hf), 256 * ks
            else: a, o = ab + hf, (fb >> 2) * 14336 + (3 * ks + (fb & 3)) * 1024
            rd.append(f"ds_read_b64_tr_b16 {vr(f+4+4*fb+2*hf,2)}, v{a} offset:{o}")
    return rd
def sp_mfma(buf):
    f = RB["fr"] + 32 * buf
    return [f"v_mfma_f32_32x32x16_bf16 {vr(16*fb,16)}, {vr(f+4+4*fb,4)}, {vr(f,4)}, {vr(16*fb,16)}" for fb in range(7)]
def sp_addr():
    return rot3(95, SP_SLOT, BREG) + [f"v_add_u32 v{RB['ab']+i}, s95, v{RB['rel']+i}" for i in range(6)]

def sp_setup(A):
    R = RB; t = R["tmp"]; rel = R["rel"]
    srd(A, 8, PT["ws"], Z2N, ZBYTES); srd(A, 12, PT["wsp"], 0, 2048 * 4096)
    A(f"""
    s_mul_i32 s28, s21, 7168
    s_mul_i32 s3, s23, {32*28672}
    s_add_u32 s3, s3, s28
    v_add_u32 v{R['dz']}, s3, v{L16}
    v_add_u32 v{R['dz']+1}, 4096, v{R['dz']}
    s_lshl_b32 s3, s36, 6
    s_lshl_b32 s6, s21, 4
    s_add_u32 s3, s3, s6
    v_lshrrev_b32 v{t}, 3, v{LANE}
    v_add_u32 v{t}, s3, v{t}
    v_lshlrev_b32 v{t}, 12, v{t}
    v_lshrrev_b32 v{t+1}, 4, v{LANE}
    v_and_b32 v{t+2}, 7, v{LANE}
    v_xor_b32 v{t+1}, v{t+1}, v{t+2}
    v_lshl_add_u32 v{R['dw']}, v{t+1}, 4, v{t}
    v_xor_b32 v{t+1}, 4, v{t+1}
    v_lshl_add_u32 v{R['dw']+1}, v{t+1}, 4, v{t}
    v_add_u32 v{R['dw']+1}, {8*4096-1024}, v{R['dw']+1}
    s_lshl_b32 s30, s21, 11
    s_add_u32 s30, s30, {SPW}
    s_mov_b32 s26, 0
    s_mov_b32 s27, 0
    s_mov_b32 s94, {BREG}
    ; s = 8h + rr
    v_lshrrev_b32 v{t}, 5, v{LANE}
    v_bfe_u32 v{t+1}, v{LANE}, 2, 2
    v_lshl_add_u32 v{t+1}, v{t}, 3, v{t+1}
    v_bfe_u32 v{t+2}, v{LANE}, 4, 1
    v_bfe_u32 v{t+3}, v{LANE}, 1, 1
    v_lshl_add_u32 v{t+4}, v{t+3}, 1, v{t+2}
    v_lshlrev_b32 v{t+5}, 2, v{t+4}
    v_xor_b32 v{t+5}, v{t+5}, v{t+1}
    v_lshlrev_b32 v{t+5}, 4, v{t+5}
    v_and_b32 v{t+6}, 1, v{LANE}
    v_lshl_add_u32 v{t+5}, v{t+6}, 3, v{t+5}
    v_lshl_add_u32 v{rel}, v{t+4}, 8, v{t+5}
    s_mul_i32 s3, s38, 6144
    v_add_u32 v{rel}, s3, v{rel}
    v_xor_b32 v{rel+1}, 64, v{rel}
    v_lshl_add_u32 v{t+5}, v{t+3}, 9, v{t+5}
    v_mul_u32_u24 v{t+2}, 14336, v{t+2}
    v_add_u32 v{t+5}, v{t+5}, v{t+2}
    s_lshl_b32 s3, s38, 10
    s_add_u32 s3, s3, 12288
    v_add_u32 v{rel+2}, s3, v{t+5}
    v_xor_b32 v{rel+3}, 64, v{rel+2}
    v_and_b32 v{t+1}, 31, v{LANE}
    v_bfe_u32 v{t+2}, v{LANE}, 1, 3
    s_lshl_b32 s3, s38, 2
    v_add_u32 v{t}, s3, v{t}
    v_xor_b32 v{t}, v{t}, v{t+2}
    s_lshl_b32 s3, s37, 5
    v_add_u32 v{t+1}, s3, v{t+1}
    v_lshlrev_b32 v{t+1}, 7, v{t+1}
    v_lshl_add_u32 v{t+1}, v{t}, 4, v{t+1}
    v_add_u32 v{rel+4}, {SPW}, v{t+1}
    v_xor_b32 v{rel+5}, 32, v{rel+4}
    s_mov_b32 s95, {BREG + 2*SP_SLOT}
    s_lshl_b32 s3, s36, 6
    s_lshl_b32 s6, s21, 4
    s_add_u32 s3, s3, s6
    v_and_b32 v{t+8}, 15, v{LANE}
    v_add_u32 v{t+8}, s3, v{t+8}
    v_lshlrev_b32 v{t+8}, 12, v{t+8}
    """)
    A.extend(sp_addr())
    for i in range(112): A(f"v_mov_b32 v{i}, 0")

def mix(rd, dm, every):
    fill = []; dm = list(dm)
    for i, r_ in enumerate(rd):
        fill.append(r_)
        if i % every == every - 1 and dm: fill.append(dm.pop(0))
    return fill + dm

def sp_wpre(A):
    for c in range(3):
        for g in sp_dma()[:2]: A.extend(g)
        A.extend(rot3(94, SP_SLOT, BREG))
    if OPT.get("mz", 1): mall_warm(A)
def sp_main(A):
    for c in range(3):
        for g in sp_dma()[2:]: A.extend(g)
    n = e = 0
    A(f"s_waitcnt vmcnt(14)")
    gsync(A)
    A.extend(sp_reads(0, 0)); A.extend(sp_reads(1, 1))
    A(f"s_waitcnt vmcnt(7)")
    A.extend(arrive()); A.extend(poll_issue())
    stamp(A, 6)
    def stage(i0, dma, nxt, vm):
        ma, mb = sp_mfma(i0 % 3), sp_mfma((i0 + 1) % 3)
        if not nxt: return ["s_waitcnt lgkmcnt(0)"] + ma + mb
        dm = sp_dma() if dma and not OPT.get('snodma') else []
        if OPT.get("spv", 1) == 0:
            o = ["s_waitcnt lgkmcnt(15)", ma[0], ma[1]] + sp_addr() + poll_check(A)
            o += interleave(ma[2:], mix(sp_reads((i0 + 2) % 3, 0), dm[:4], 4))
            o += interleave(mb[:6], mix(sp_reads((i0 + 3) % 3, 1), dm[4:], 3))
            if vm is not None: o += [f"s_waitcnt vmcnt({vm})"] + arrive()
            o += mb[6:]
            if vm is not None: o += poll_issue()
            return o
        ne = OPT.get("spe", 4)
        o = poll_check(A) + [ma[0]] + sp_addr()
        o += interleave(ma[1:], mix(sp_reads((i0 + 2) % 3, 0), dm[:ne], 4))
        o += interleave(mb[:3], sp_reads((i0 + 3) % 3, 1))
        if vm is not None: o += [f"s_waitcnt vmcnt({max(0, vm - 9 + ne) if dma else vm})"] + arrive()
        o += interleave(mb[3:6], dm[ne:])
        if vm is not None: o += poll_issue()
        o += mb[6:] + itr(3)
        return o
    L = A.label("sp")
    itr0(A, 3)
    A(f"s_mov_b32 s29, 9\n{L}:")
    for s in range(3):
        if "pat" in OPT: A(f"s_setprio {('%03d' % OPT['pat'])[s]}")
        A.extend(stage(2 * s, True, True, 9 + 2 * e))
    A(f"s_sub_u32 s29, s29, 1\ns_cmp_lg_u32 s29, 0\ns_cbranch_scc1 {L}")
    A.extend(stage(0, True, True, 9 + 2 * e)); A.extend(stage(2, True, True, 9 + 2 * e)); A.extend(stage(4, False, True, e))
    A.extend(stage(0, False, True, None)); A.extend(stage(2, False, False, None))

def sp_epi(A):
    R = RB; t = R["tmp"]; Z = 112
    LK, LE = A.label("kh1"), A.label("spe")
    srd(A, 8, PT["ws"], Z1F, ZBYTES); srd(A, 16, PT["ws"], UF, ZBYTES); srd(A, 12, PT["bsp"], 0, 4096)
    A(f"""
    s_lshl_b32 s39, s36, 1
    s_add_u32 s39, s39, s37
    s_lshl_b32 s3, s23, 6
    s_add_u32 s3, s3, s39
    s_mul_i32 s40, s3, {7*2048}
    s_mul_i32 s41, s39, 56
    s_mul_i32 s3, s23, 7
    s_add_u32 s41, s41, s3
    s_lshl_b32 s41, s41, 11
    v_and_b32 v{t+2}, 31, v{LANE}
    s_lshl_b32 s3, s39, 5
    v_add_u32 v{t+2}, s3, v{t+2}
    v_lshlrev_b32 v{t+2}, 1, v{t+2}
    buffer_load_ushort v{t+6}, v{t+2}, s[12:15], 0 offen
    s_lshl_b32 s3, s21, 14
    s_add_u32 s3, s3, {SPX}
    v_add_u32 v{t+3}, s3, v{L16}
    s_xor_b32 s3, s21, 2
    s_lshl_b32 s3, s3, 14
    s_add_u32 s3, s3, {SPX}
    v_add_u32 v{t+4}, s3, v{L16}
    """)
    A(f"s_cmp_eq_u32 s38, 1\ns_cbranch_scc1 {LK}")
    for kh in range(2):
        mine = range(0, 4) if kh == 0 else range(4, 7)
        other = range(4, 7) if kh == 0 else range(0, 4)
        for i, fb in enumerate(mine):
            A(f"s_add_u32 s3, s40, {fb*2048}")
            for q in range(2): A(f"buffer_load_dwordx4 {vr(Z+8*i+4*q,4)}, v{L16}, s[8:11], s3 offen offset:{1024*q} {SC}")
        gsync(A)
        for i, fb in enumerate(other):
            for q in range(4): A(f"ds_write_b128 v{t+3}, {vr(16*fb+4*q,4)} offset:{i*4096+q*1024}")
        gsync(A)
        dst = lambda i: (64 + 16 * i if i < 3 else 144) if kh == 0 else 16 * i
        for i, fb in enumerate(mine):
            for q in range(4): A(f"ds_read_b128 {vr(dst(i)+4*q,4)}, v{t+4} offset:{i*4096+q*1024}")
        A(f"s_waitcnt vmcnt(0)\nv_lshlrev_b32 v{t+6}, 16, v{t+6}\nv_mov_b32 v{t+7}, v{t+6}")
        for i, fb in enumerate(mine):
            a = 16 * fb; d = dst(i)
            A(f"s_waitcnt lgkmcnt({min(15, 4*(len(mine)-1-i))})")
            for q in range(8): A(f"v_pk_add_f32 {vr(a+2*q,2)}, {vr(a+2*q,2)}, {vr(d+2*q,2)}")
            for q in range(8): A(f"v_pk_add_f32 {vr(a+2*q,2)}, {vr(a+2*q,2)}, {vr(t+6,2)}")
            for q in range(8): A(f"v_lshlrev_b32 v{d+2*q}, 16, v{Z+8*i+q}\nv_and_b32 v{d+2*q+1}, 0xffff0000, v{Z+8*i+q}")
            for q in range(8): A(f"v_pk_mul_f32 {vr(a+2*q,2)}, {vr(a+2*q,2)}, {vr(d+2*q,2)}")
            for q in range(8): A(f"v_cvt_pk_bf16_f32 v{Z+8*i+q}, v{a+2*q}, v{a+2*q+1}")
            A(f"s_add_u32 s3, s41, {fb*2048}")
            for f in range(2): A(f"buffer_store_dwordx4 {vr(Z+8*i+4*f,4)}, v{L16}, s[16:19], s3 offen offset:{1024*f} {SC}")
        if kh == 0: A(f"s_branch {LE}\n{LK}:")
    A(f"""
    {LE}:
    s_lshl_b32 s42, s36, 3
    s_add_u32 s42, s42, s23
    s_lshl_b32 s42, s42, 7
    s_add_u32 s42, s42, {FU}
    s_lshl_b32 s43, s100, 11
    s_add_u32 s43, s43, {FU}
    """)

FWS = 8192; FNS = 6; DA = 3; DW = 5
RF = dict(wf=32, af=96, wa=160, wb=162, da=164, dw=165, tmp=168)
def f_loads(base, t4, w=True, a=True):
    R = RF; g = []
    if w:
        g.append(["s_add_u32 m0, s94, s30", "s_nop 0", f"buffer_load_dwordx4 v{R['dw']}, s[12:15], s27 offen lds"])
        g.append([f"buffer_load_dwordx4 v{R['dw']+1}, s[12:15], s27 offen offset:1024 lds", "s_add_u32 s27, s27, 131072"] + rot3(94, FWS, base, FNS))
    if a:
        f = R["af"] + 16 * ((t4 + DA) % 4)
        for ks in range(4):
            g.append([f"buffer_load_dwordx4 {vr(f+4*ks,4)}, v{R['da']}, s[8:11], s26 offen offset:{ks*1024} {SC}"] + (["s_add_u32 s26, s26, 4096"] if ks == 3 else []))
    return g
def f_reads(buf):
    R = RF; f = R["wf"] + 32 * buf
    return [f"ds_read_b64_tr_b16 {vr(f+8*ks+4*nb+2*hf,2)}, v{R['wb']+nb} offset:{(16*ks+8*hf)*128}" for ks in range(4) for nb in range(2) for hf in range(2)]
def f_mfma(t4):
    R = RF; f = R["wf"] + 32 * (t4 & 1); af = R["af"] + 16 * t4
    return [f"v_mfma_f32_32x32x16_bf16 {vr(16*nb,16)}, {vr(f+8*ks+4*nb,4)}, {vr(af+4*ks,4)}, {vr(16*nb,16)}" for ks in range(4) for nb in range(2)]
def f_addr(base):
    R = RF
    return rot3(95, FWS, base, FNS) + [f"v_add_u32 v{R['wb']}, s95, v{R['wa']}", f"v_add_u32 v{R['wb']+1}, s95, v{R['wa']+1}"]

def f_setup(A, role):
    R = RF; t = R["tmp"]; base = FREG[role]
    nkb = 32 if role == "A" else 56
    srd(A, 8, PT["ws"], OF if role == "A" else UF, 64 * nkb * 2048)
    srd(A, 12, PT["wo" if role == "A" else "wout"], 0, nkb * 32 * 2048)
    A(f"""
    s_lshl_b32 s3, s100, 2
    s_add_u32 s3, s3, s21
    s_mul_i32 s3, s3, {nkb*2048}
    v_add_u32 v{R['da']}, s3, v{L16}
    v_lshrrev_b32 v{t+1}, 3, v{LANE}
    s_lshl_b32 s3, s21, 4
    v_add_u32 v{t+1}, s3, v{t+1}
    v_lshlrev_b32 v{t+1}, 11, v{t+1}
    v_bfe_u32 v{t+2}, v{LANE}, 4, 1
    v_lshlrev_b32 v{t+2}, 2, v{t+2}
    v_and_b32 v{t+3}, 7, v{LANE}
    v_xor_b32 v{t+2}, v{t+2}, v{t+3}
    v_lshl_add_u32 v{t+1}, v{t+2}, 4, v{t+1}
    s_lshl_b32 s3, s101, 7
    v_add_u32 v{R['dw']}, s3, v{t+1}
    v_add_u32 v{R['dw']+1}, {8*2048-1024}, v{R['dw']}
    s_lshl_b32 s30, s21, 11
    s_mov_b32 s26, 0
    s_mov_b32 s27, 0
    s_mov_b32 s94, {base}
    v_lshrrev_b32 v{t+1}, 5, v{LANE}
    v_bfe_u32 v{t+2}, v{LANE}, 2, 2
    v_lshl_add_u32 v{t+1}, v{t+1}, 2, v{t+2}
    v_lshlrev_b32 v{t+1}, 7, v{t+1}
    v_lshrrev_b32 v{t+2}, 1, v{t+2}
    v_lshl_add_u32 v{t+1}, v{t+2}, 6, v{t+1}
    v_bfe_u32 v{t+2}, v{LANE}, 4, 1
    v_lshl_add_u32 v{t+1}, v{t+2}, 5, v{t+1}
    v_and_b32 v{t+2}, 3, v{LANE}
    v_lshl_add_u32 v{R['wa']}, v{t+2}, 3, v{t+1}
    v_xor_b32 v{R['wa']+1}, 64, v{R['wa']}
    s_mov_b32 s95, {base + (FNS-1)*FWS}
    """)
    A.extend(f_addr(base))
    for i in range(32): A(f"v_mov_b32 v{i}, 0")

def f_wpre(A, role):
    t = RF["tmp"]; X = 176
    srd(A, 16, PT["x"], 0, 4 * MB)
    A(f"""
    s_lshl_b32 s3, s100, 2
    s_add_u32 s3, s3, s21
    s_lshl_b32 s3, s3, 5
    v_and_b32 v{t+5}, 31, v{LANE}
    v_add_u32 v{t+5}, s3, v{t+5}
    v_lshlrev_b32 v{t+5}, 11, v{t+5}
    v_lshrrev_b32 v{t+2}, 5, v{LANE}
    v_lshl_add_u32 v{t+5}, v{t+2}, 4, v{t+5}
    s_lshl_b32 s3, s101, 7
    s_add_u32 s3, s3, {0 if role == 'A' else 64}
    v_add_u32 v{t+5}, s3, v{t+5}
    buffer_load_dwordx4 {vr(X,4)}, v{t+5}, s[16:19], 0 offen
    buffer_load_dwordx4 {vr(X+4,4)}, v{t+5}, s[16:19], 0 offen offset:32
    """)
    for c in range(DW):
        for g in f_loads(FREG[role], 0, True, False): A.extend(g)

def f_main(A, role):
    base = FREG[role]; nst = 16 if role == "A" else 28
    for c in range(DA):
        for g in f_loads(base, c - DA, False, True): A.extend(g)
    A(f"s_waitcnt vmcnt({4*DA})")
    gsync(A)
    A.extend(f_reads(0))
    A.extend(arrive()); A.extend(poll_issue())
    stamp(A, 8)
    def stage(t):
        m = f_mfma(t % 4)
        def cnt(u): return (2 if u + DW < nst else 0) + (4 if u + DA < nst else 0)
        vm = sum(cnt(u) if u >= 0 else 4 for u in range(t - DA + 1, t))
        if t == nst - 1: return [f"s_waitcnt vmcnt(0) lgkmcnt(0)"] + m
        o = [f"s_waitcnt vmcnt({vm})"] + poll_check(A) + arrive() + [m[0]] + f_addr(base)
        o += interleave(m[1:6], mix(f_reads((t + 1) & 1), f_loads(base, t % 4, t + DW < nst, t + DA < nst), 3))
        o += [m[6]] + poll_issue() + [m[7]]
        return o
    for t in range(4): A.extend(stage(t))
    L = A.label("fin" + role)
    nl = (nst - 12) // 4
    A(f"s_mov_b32 s29, {nl}\n{L}:")
    for t in range(4, 8): A.extend(stage(t))
    A(f"s_sub_u32 s29, s29, 1\ns_cmp_lg_u32 s29, 0\ns_cbranch_scc1 {L}")
    for t in range(nst - 8, nst): A.extend(stage(t))

def f_epi(A, role):
    t = RF["tmp"]; keep = 0 if role == "A" else 16; give = 16 - keep
    X = 176; Y = 32
    srd(A, 12, PT["out"], 0, 4 * MB)
    A(f"""
    s_lshl_b32 s3, s21, 12
    v_add_u32 v{t+3}, s3, v{L16}
    v_add_u32 v{t+2}, {XCH[role]}, v{t+3}
    v_add_u32 v{t+3}, {XCH["B" if role == "A" else "A"]}, v{t+3}
    """)
    A("s_nop 3")
    for q in range(4): A(f"ds_write_b128 v{t+2}, {vr(give+4*q,4)} offset:{q*1024}")
    A("s_waitcnt lgkmcnt(0)\ns_barrier")
    for q in range(4): A(f"ds_read_b128 {vr(Y+4*q,4)}, v{t+3} offset:{q*1024}")
    A("s_waitcnt vmcnt(0)")
    for p in range(2): A(f"v_permlane32_swap_b32 v{X+4*p}, v{X+4*p+2}\nv_permlane32_swap_b32 v{X+4*p+1}, v{X+4*p+3}")
    A("s_waitcnt lgkmcnt(0)")
    S, T = (keep, Y) if role == "A" else (Y, keep)
    U = 64; E = 80
    def rnd(b):
        for i in range(8): A(f"v_cvt_pk_bf16_f32 v{U+i}, v{b+2*i}, v{b+2*i+1}")
        for i in range(8): A(f"v_lshlrev_b32 v{b+2*i}, 16, v{U+i}\nv_and_b32 v{b+2*i+1}, 0xffff0000, v{U+i}")
    rnd(T)
    for i in range(16): A(f"v_mul_f32 v{E+i}, {fhex(-LOG2E)}, v{T+i}")
    for i in range(16): A(f"v_exp_f32 v{E+i}, v{E+i}")
    rnd(S)
    for i in range(16): A(f"v_add_f32 v{E+i}, 1.0, v{E+i}")
    for i in range(16): A(f"v_rcp_f32 v{E+i}, v{E+i}")
    for i in range(16): A(f"v_mul_f32 v{T+i}, v{T+i}, v{E+i}")
    rnd(T)
    for i in range(16): A(f"v_mul_f32 v{S+i}, v{S+i}, v{T+i}")
    rnd(S)
    for i in range(8): A(f"v_lshlrev_b32 v{E+2*i}, 16, v{X+i}\nv_and_b32 v{E+2*i+1}, 0xffff0000, v{X+i}")
    for i in range(16): A(f"v_add_f32 v{S+i}, v{S+i}, v{E+i}")
    for i in range(8): A(f"v_cvt_pk_bf16_f32 v{X+i}, v{S+2*i}, v{S+2*i+1}")
    A("s_nop 1")
    for p in range(2): A(f"v_permlane32_swap_b32 v{X+4*p}, v{X+4*p+2}\nv_permlane32_swap_b32 v{X+4*p+1}, v{X+4*p+3}")
    A(f"buffer_store_dwordx4 {vr(X,4)}, v{t+5}, s[12:15], 0 offen\nbuffer_store_dwordx4 {vr(X+4,4)}, v{t+5}, s[12:15], 0 offen offset:32")

def code_touch(A):
    A(f"""
    s_getpc_b64 s[6:7]
    L_pc:
    s_sub_u32 s12, s6, L_pc-{NAME}
    s_subb_u32 s13, s7, 0
    s_mov_b32 s14, L_codeend-{NAME}
    s_mov_b32 s15, 0x00020000
    v_lshlrev_b32 v212, 7, v{LANE}
    s_lshl_b32 s3, s21, 14
    buffer_load_dword v213, v212, s[12:15], s3 offen
    s_add_u32 s3, s3, 8192
    buffer_load_dword v213, v212, s[12:15], s3 offen
    """)

def mall_setup(A):
    A(f"""
    s_cmp_lt_u32 s21, 2
    s_cselect_b32 s16, s{PT['wsp']}, s{PT['wout']}
    s_cselect_b32 s17, s{PT['wsp']+1}, s{PT['wout']+1}
    s_mov_b32 s18, {112*128}
    s_cmov_b32 s18, {128*128}
    s_cmp_eq_u32 s21, 3
    s_cselect_b32 s16, s{PT['wo']}, s16
    s_cselect_b32 s17, s{PT['wo']+1}, s17
    s_cmov_b32 s18, {64*128}
    s_cmp_eq_u32 s21, 1
    s_cselect_b32 s3, 256, 0
    s_add_u32 s3, s3, s2
    s_mul_i32 s3, s3, s18
    s_add_u32 s16, s16, s3
    s_addc_u32 s17, s17, 0
    s_mov_b32 s19, 0x00020000
    v_lshlrev_b32 v210, 7, v{LANE}
    s_mov_b32 s30, 0
    s_mul_i32 s3, s36, {magic_div(OPT.get('mp', 5), 31)[0]}
    s_lshr_b32 s3, s3, {magic_div(OPT.get('mp', 5), 31)[1]}
    s_mul_i32 s3, s3, {OPT.get('mp', 5)}
    s_sub_u32 s43, s36, s3
    s_add_u32 s43, s43, {OPT.get('m0', 1)}
    """)

def mall_warm(A):
    L = A.label("mw"); t = RB["tmp"]
    A(f"s_cmp_ge_u32 s24, 2\ns_cbranch_scc1 {L}\ns_lshl_b32 s3, s2, 2\ns_add_u32 s3, s3, s21\nv_lshlrev_b32 v{t}, 7, v{LANE}")
    A(f"s_lshl_b32 s6, s3, 14\nbuffer_load_dword v{t+1}, v{t}, s[12:15], s6 offen\ns_add_u32 s6, s6, 8192\nbuffer_load_dword v{t+1}, v{t}, s[12:15], s6 offen")
    srd(A, 16, PT["wout"], 0, 1792 * 2048)
    A(f"v_min_u32 v{t+2}, {55*128}, v{t}\ns_mul_i32 s6, s3, {56*128}\nbuffer_load_dword v{t+1}, v{t+2}, s[16:19], s6 offen")
    srd(A, 16, PT["wo"], 0, 1024 * 2048)
    A(f"v_min_u32 v{t+2}, {31*128}, v{t}\ns_lshl_b32 s6, s3, 12\nbuffer_load_dword v{t+1}, v{t+2}, s[16:19], s6 offen\n{L}:")

def z_touch(A):
    t = RB["tmp"]
    A(f"""
    v_min_u32 v{t}, 55, v{LANE}
    v_lshlrev_b32 v{t}, 7, v{t}
    s_lshl_b32 s3, s23, 5
    s_add_u32 s3, s3, s36
    s_mul_i32 s3, s3, 28672
    s_add_u32 s3, s3, s28
    buffer_load_dword v{t+1}, v{t}, s[8:11], s3 offen {SC}
    """)
    return 1

def f_touch_w(A, role):
    t = RF["tmp"]; n = 64 if role == "A" else 56; rows = 256 if role == "A" else 448
    A(f"""
    v_min_u32 v{t}, {n-1}, v{LANE}
    v_lshlrev_b32 v{t}, 11, v{t}
    s_and_b32 s3, s100, 3
    s_mul_i32 s3, s3, {rows}
    s_mul_i32 s6, s21, {rows//4}
    s_add_u32 s3, s3, s6
    s_lshl_b32 s3, s3, 11
    s_lshl_b32 s6, s101, 7
    s_add_u32 s3, s3, s6
    buffer_load_dword v{t+1}, v{t}, s[12:15], s3 offen
    """)
    if role == "B": A(f"s_add_u32 s3, s3, {56*2048}\nbuffer_load_dword v{t+1}, v{t}, s[12:15], s3 offen")

def f_touch_a(A, role):
    t = RF["tmp"]; n = 64 if role == "A" else 56; blk = 8192 if role == "A" else 14336
    A(f"""
    v_min_u32 v{t}, {n-1}, v{LANE}
    v_lshlrev_b32 v{t}, 7, v{t}
    s_lshl_b32 s3, s100, 2
    s_add_u32 s3, s3, s21
    s_lshl_b32 s3, s3, 3
    s_and_b32 s6, s101, 7
    s_add_u32 s3, s3, s6
    s_mul_i32 s3, s3, {blk}
    buffer_load_dword v{t+1}, v{t}, s[8:11], s3 offen {SC}
    """)
    if role == "B": A(f"s_add_u32 s3, s3, 7168\nbuffer_load_dword v{t+1}, v{t}, s[8:11], s3 offen {SC}")
    return 1 if role == "A" else 2

def prio(A, key):
    if key in OPT: A(f"s_setprio {OPT[key]}")

P_SP_DONE = 2 + 1 + 1 + 30 + 1

def gen(A):
    kstart(A, NAME)
    start(A)
    stamp(A, 0)
    if common.PROFILE: A("s_memtime s[86:87]\ns_waitcnt lgkmcnt(0)\ns_mov_b32 s84, s86")
    A("s_cmp_ge_u32 s20, 4\ns_cbranch_scc1 L_roleB")
    ln_loads(A)
    g1_setup_A(A)
    for par in (1, 0, 1, 0, 1):
        for g in g1_dma("A", par, GA, pro=True): A.extend(g)
    ln_stats(A, 20)
    g1_main(A, "A", GA, 96, 1)
    stamp(A, 2)
    prio(A, "pa1")
    epi_A(A)
    stamp(A, 3)
    handoff(A, 42, 43, 8, attn_setup, tag='k')
    stamp(A, 4)
    prio(A, "pa1b")
    attn_main(A)
    stamp(A, 6)
    attn_finish(A)
    prio(A, "pa2")
    handoff(A, 42, 43, 32, lambda A: f_setup(A, "A"), tag='o', after=lambda A: f_wpre(A, "A"), presync=True)
    stamp(A, 7)
    f_main(A, "A")
    stamp(A, 9)
    f_epi(A, "A")
    fin_prof(A)
    A("s_endpgm\nL_roleB:")
    if OPT.get("ct", 1): code_touch(A)
    g1_setup_B(A)
    for s in range(4):
        for g in g1_dma("B", 0, GB, pro=True): A.extend(g)
    n = w_touch(A)
    g1_setup_B2(A)
    mall_setup(A)
    g1_main(A, "B", GB, 112, n)
    stamp(A, 2)
    prio(A, "pb1")
    epi_B(A)
    stamp(A, 4)
    handoff(A, 42, 43, 32, sp_setup, tag='z', after=sp_wpre)
    stamp(A, 5)
    prio(A, "pb2")
    sp_main(A)
    stamp(A, 7)
    prio(A, "pb2e")
    sp_epi(A)
    handoff(A, 42, 43, 16, lambda A: f_setup(A, "B"), tag='u', after=lambda A: f_wpre(A, "B"), presync=True)
    prio(A, "pb3")
    f_main(A, "B")
    stamp(A, 9)
    f_epi(A, "B")
    fin_prof(A)
    A("L_end:\ns_endpgm")
    A.extend(COLD)
    A("L_codeend:")
    A.raw(kd(NAME, 256, 256, 102))

def fin_prof(A):
    if not common.PROFILE: return
    A("s_mov_b32 s43, s84\ns_waitcnt vmcnt(0)")
    stamp(A, 10)
    A("s_mov_b32 s86, s43\ns_memtime s[42:43]\ns_waitcnt lgkmcnt(0)")
    srd(A, 88, 4, PROF, 256 * 8 * 64)
    A("s_lshl_b32 s92, s2, 3\ns_add_u32 s92, s92, s20\ns_lshl_b32 s92, s92, 6\nv_mov_b32 v251, s92")
    for k in range(12): A(f"v_mov_b32 v252, s{64+2*k}\nbuffer_store_dword v252, v251, s[88:91], 0 offen offset:{4*k}")
    A("v_mov_b32 v252, s42\nbuffer_store_dword v252, v251, s[88:91], 0 offen offset:48")
    if OPT.get("itr"):
        srd(A, 88, 4, PROF + 131072, 256 * 8 * 256)
        A(f"s_lshl_b32 s92, s92, 2\nv_lshlrev_b32 v251, 2, v{LANE}\nbuffer_store_dword v253, v251, s[88:91], s92 offen")

if __name__ == "__main__":
    out = sys.argv[1]
    common.PROFILE = "--prof" in sys.argv
    for a in sys.argv[2:]:
        if "=" in a:
            k, v = a.split("="); OPT[k] = int(v)
    A = Asm()
    A.raw("; out = x + MHA(LN x) * silu(gMLP(LN x)) as one persistent dataflow kernel (one 8-wave workgroup per CU); generated by gen/fused.py\n"
          f"; @launch grid=(256,1,1) block=(512,1,1) lds={LDS}\n" '.amdgcn_target "amdgcn-amd-amdhsa--gfx950"\n.text')
    gen(A)
    t = A.text()
    errs = check_hazards(t)
    for e in errs[:30]: print("HAZARD", e, file=sys.stderr)
    open(out, "w").write(t)
```

```python
import sys, re
from common import *
import common
from k_g1 import gelu_pairs, reduce4, bcast4, stats_combine, QSCALE, GC0, GC1

OPT = {"pa1": 3, "pa1b": 1, "pb1": 2, "pb2": 2, "pb2e": 2, "pb3": 0, "pa2": 3, "mw": 0, "pgB": 1, "me": 1, "mz": 0}
_stamp = stamp
def stamp(A, k, real=False, force=False):
    if OPT.get("hs") and k in (7, 8, 9) and not force: return
    _stamp(A, k, not OPT.get('cyc'))
NAME = "recurrent_scan__mha_block__mixer_gmlp__prompt_kernel"
XSLOT = 32768; WSLOT = 13312; WRING = 3 * XSLOT; WBO = 6144
AREG = 0; KV_SLOT = 16384
BREG = 49152; SP_SLOT = 36864; SPW = 28672
FREG = {"A": 0, "B": 49152}; SPX = 49152; XCH = {"A": 32768, "B": 114688}
FLG = BREG + 3 * SP_SLOT
NONCE = FLG + 2048
LDS = FLG + 2048 + 64
LANE, VF_, VG, VP, VT, L16 = 250, 246, 247, 248, 249, 245
PT = dict(x=48, wqkv=50, wo=52, win=56, wsp=58, bsp=60, wout=62, out=44, dbg=46, ws=4)
SC = "sc1"
LOG2E = 1.4426950408889634
COLD = []
def FL(k): return ("", "sc1 ", "nt ", "sc0 ")[OPT.get(k, 0)]

def align(A, key):
    v = OPT.get("al" + key, OPT.get("al"))
    if v is None: return
    A.raw(".p2align 6, 0xbf800000" if False else ".p2align 6")
    for i in range(v): A("s_nop 0")
def itr0(A, key):
    if OPT.get("itr") == key or (key == 3 and OPT.get("itr") == 2): A("s_memtime s[92:93]\ns_waitcnt lgkmcnt(0)\ns_mov_b32 s90, 0\nv_writelane_b32 v253, s92, 0")
def itr(key):
    if OPT.get("itr") == key or (key == 3 and OPT.get("itr") == 2):
        return ["s_memtime s[92:93]", "s_waitcnt lgkmcnt(0)", "s_add_u32 s90, s90, 1", "s_mov_b32 s91, m0", "s_mov_b32 m0, s90", "v_writelane_b32 v253, s92, m0", "s_mov_b32 m0, s91"]
    return []
def arrive(): return [f"v_add_u32 v{VP}, 1, v{VP}", f"ds_write_b32 v{VF_}, v{VP}"]
def poll_issue(): return [f"ds_read_b32 v{VT}, v{VG}"]
def poll_check(A, slp=0, G=None, P=None):
    G = VG if G is None else G; P = f"v{VP}" if P is None else P
    L, Lok = A.label("spin"), A.label("ok")
    cmpi = f"v_cmp_gt_u32 vcc, {P}, v{VT}"
    COLD.extend([f"{L}:", "s_mov_b32 s97, 0x40000", f"{L}b:"] + ([f"s_sleep {slp}"] if slp else []) +
                [f"ds_read_b32 v{VT}, v{G}", "s_sub_u32 s97, s97, 1", "s_cmp_eq_u32 s97, 0", f"s_cbranch_scc1 {Lok}",
                 "s_waitcnt lgkmcnt(0)", cmpi, f"s_cbranch_vccnz {L}b", f"s_branch {Lok}"])
    return ["s_waitcnt lgkmcnt(0)", cmpi, f"s_cbranch_vccnz {L}", f"{Lok}:"]
def poll_split(A):
    c = poll_check(A)
    return c[:2], c[2:]
def gsync(A, slp=0):
    A.extend(arrive()); A.extend(poll_issue()); A.extend(poll_check(A, slp))
def rot3(s, size, base=0, n=3):
    return [f"s_add_u32 s{s}, s{s}, {size}", f"s_cmp_eq_u32 s{s}, {base + n * size}", f"s_cmov_b32 s{s}, {base}"]

def flag_wait(A, soff, lanes, slp=4):
    L, Ld = A.label("gp"), A.label("gpd")
    A(f"v_and_b32 v244, {lanes-1}, v{LANE}\nv_lshlrev_b32 v244, 7, v244\ns_mov_b32 s97, 0x8000\n{L}:")
    A(f"buffer_load_dword v242, v244, s[32:35], s{soff} offen {SC}")
    A("s_waitcnt vmcnt(0)\nv_cmp_ne_u32 vcc, s31, v242")
    A(f"s_cbranch_vccz {Ld}\ns_sleep {slp}\ns_sub_u32 s97, s97, 1\ns_cmp_lg_u32 s97, 0\ns_cbranch_scc1 {L}\n{Ld}:")
def handoff(A, sset, swait, lanes, between=None, slp=2, tag="", after=None, presync=False):
    Ls = A.label("fw")
    if between: A("s_nop 1"); between(A)
    dbg = OPT.get("hs") and tag == "xkzou......"[OPT["hs"] - 1]
    if dbg: stamp(A, 7, force=True)
    A("s_waitcnt vmcnt(0)")
    if dbg: stamp(A, 8, force=True)
    A.extend(arrive())
    if presync: A.extend(poll_issue()); A.extend(poll_check(A))
    A(f"s_cmp_lg_u32 s21, 0\ns_cbranch_scc1 {Ls}")
    if not presync: A.extend(poll_issue()); A.extend(poll_check(A))
    if dbg: stamp(A, 9, force=True)
    A(f"""
    v_mov_b32 v242, 0
    v_mov_b32 v243, s31
    s_mov_b64 exec, 1
    buffer_store_dword v243, v242, s[32:35], s{sset} offen {SC}
    s_mov_b64 exec, -1
    """)
    if after:
        L2 = A.label("fw")
        A(f"{Ls}:"); after(A); Ls = L2
        A(f"s_cmp_lg_u32 s21, 0\ns_cbranch_scc1 {Ls}")
    flag_wait(A, swait, lanes)
    A(f"{Ls}:")
    gsync(A, slp)

def start(A):
    A(f"""
    s_cmp_ge_u32 s2, 256
    s_cbranch_scc1 L_end
    s_load_dwordx16 s[48:63], s[0:1], 0
    s_load_dwordx4 s[44:47], s[0:1], 64
    s_load_dwordx2 s[4:5], s[0:1], 80
    v_lshrrev_b32 v1, 6, v0
    v_and_b32 v{LANE}, 63, v0
    v_readfirstlane_b32 s20, v1
    {"s_lshr_b32 s23, s2, 5" if OPT.get("badmap") else "s_and_b32 s23, s2, 7"}
    {"s_and_b32 s36, s2, 31" if OPT.get("badmap") else "s_lshr_b32 s36, s2, 3"}
    s_and_b32 s22, s36, 7
    s_lshr_b32 s24, s36, 3
    s_lshl_b32 s25, s23, 2
    s_add_u32 s25, s25, s24
    s_and_b32 s21, s20, 3
    s_and_b32 s37, s21, 1
    s_lshr_b32 s38, s21, 1
    s_lshr_b32 s100, s23, 1
    s_lshl_b32 s100, s100, 2
    s_and_b32 s3, s36, 3
    s_add_u32 s100, s100, s3
    s_and_b32 s101, s23, 1
    s_lshl_b32 s101, s101, 3
    s_lshr_b32 s3, s36, 2
    s_add_u32 s101, s101, s3
    v_lshlrev_b32 v{L16}, 4, v{LANE}
    s_lshl_b32 s3, s20, 8
    s_add_u32 s3, s3, {FLG}
    v_lshlrev_b32 v{VF_}, 2, v{LANE}
    v_and_b32 v{VG}, 3, v{LANE}
    v_lshlrev_b32 v{VG}, 8, v{VG}
    v_add_u32 v{VG}, v{VG}, v{VF_}
    v_add_u32 v{VF_}, s3, v{VF_}
    s_and_b32 s3, s20, 4
    s_lshl_b32 s3, s3, 8
    s_add_u32 s3, s3, {FLG}
    v_add_u32 v{VG}, s3, v{VG}
    v_mov_b32 v{VP}, 0
    ds_write_b32 v{VF_}, v{VP}
    s_waitcnt lgkmcnt(0)
    s_barrier
    """)
    if OPT.get("wso"): A(f"s_add_u32 s4, s4, {OPT['wso'] << 20}\ns_addc_u32 s5, s5, 0")
    srd(A, 32, PT["ws"], FLAGS, FBYTES)
    Ln = A.label("non")
    A(f"s_lshl_b32 s3, s2, 3\ns_add_u32 s3, s3, s20\ns_cmp_lg_u32 s3, 4\ns_cbranch_scc1 {Ln}")
    srd(A, 16, PT["dbg"], 0, 256)
    A(f"""
    s_memrealtime s[6:7]
    s_waitcnt lgkmcnt(0)
    s_or_b32 s3, s6, 1
    v_mov_b32 v1, s3
    v_mov_b32 v2, 0
    s_mov_b64 exec, 1
    buffer_store_dword v1, v2, s[16:19], 0 offen {SC}
    s_mov_b64 exec, -1
    {Ln}:
    """)

def ln_loads(A):
    srd(A, 8, PT["x"], 0, 4 * MB); srd(A, 16, PT["dbg"], 0, 256)
    A(f"""
    s_lshl_b32 s3, s22, 8
    s_lshl_b32 s6, s25, 3
    s_add_u32 s3, s3, s6
    s_lshl_b32 s6, s21, 1
    s_add_u32 s39, s3, s6
    s_lshl_b32 s3, s39, 11
    v_mov_b32 v242, 0
    """)
    for rr in range(2):
        for q in range(2): A(f"buffer_load_dwordx4 {vr(8+40*rr+4*q,4)}, v{L16}, s[8:11], s3 offen offset:{2048*rr+1024*q}")
    A(f"buffer_load_dword v243, v242, s[16:19], 0 offen {SC}")

def ln_stats(A, younger):
    A(f"s_waitcnt vmcnt({younger})")
    streams = []
    for rr in range(2):
        B = Asm(); o = 40 * rr
        for i in range(8): B(f"v_lshlrev_b32 v{o+16+2*i}, 16, v{o+8+i}\nv_and_b32 v{o+17+2*i}, 0xffff0000, v{o+8+i}")
        for i in range(8): B(f"v_add_f32 v{o+32+i}, v{o+16+2*i}, v{o+17+2*i}")
        for i in range(4): B(f"v_add_f32 v{o+32+i}, v{o+32+i}, v{o+36+i}")
        B(f"v_add_f32 v{o+32}, v{o+32}, v{o+34}\nv_add_f32 v{o+33}, v{o+33}, v{o+35}\nv_add_f32 v{o+32}, v{o+32}, v{o+33}")
        wave_sum(B, o + 32, o + 33)
        B(f"v_mul_f32 v{o+32}, {fhex(1/1024)}, v{o+32}")
        for i in range(16): B(f"v_sub_f32 v{o+16+i}, v{o+16+i}, v{o+32}")
        B(f"v_mul_f32 v{o+34}, v{o+16}, v{o+16}\nv_mul_f32 v{o+35}, v{o+17}, v{o+17}")
        for i in range(2, 16): B(f"v_fmac_f32 v{o+34+(i&1)}, v{o+16+i}, v{o+16+i}")
        B(f"v_add_f32 v{o+34}, v{o+34}, v{o+35}")
        wave_sum(B, o + 34, o + 33)
        B(f"v_mul_f32 v{o+34}, {fhex(1/1024)}, v{o+34}")
        bf16_round(B, o + 32, o + 32); bf16_round(B, o + 34, o + 34)
        B(f"v_add_f32 v{o+34}, {fhex(1e-5)}, v{o+34}")
        bf16_round(B, o + 34, o + 34)
        B(f"v_sqrt_f32 v{o+34}, v{o+34}\ns_nop 0")
        bf16_round(B, o + 34, o + 34)
        B(f"v_rcp_f32 v{o+34}, v{o+34}\ns_nop 0")
        B(f"v_mul_f32 v{o+32}, v{o+32}, v{o+34}")
        streams.append([l.strip().replace("s_nop 1", "s_nop 0") for l in B.lines])
    for a_, b_ in zip(*streams):
        A(a_)
        if not (a_.startswith("s_nop") and b_.startswith("s_nop")): A(b_)
    L, Ld = A.label("nn"), A.label("nnd")
    COLD.extend([f"{L}:", "s_mov_b32 s97, 0x8000", f"{L}b:", "s_sleep 4", f"buffer_load_dword v243, v242, s[16:19], 0 offen {SC}", "s_waitcnt vmcnt(0)",
                 "v_readfirstlane_b32 s31, v243", "s_sub_u32 s97, s97, 1", "s_cmp_eq_u32 s97, 0", f"s_cbranch_scc1 {Ld}",
                 "s_cmp_eq_u32 s31, 0", f"s_cbranch_scc1 {L}b", f"s_branch {Ld}"])
    A(f"""
    v_readfirstlane_b32 s31, v243
    v_cmp_eq_u32 vcc, 0, v{LANE}
    s_cmp_eq_u32 s31, 0
    s_cbranch_scc1 {L}
    {Ld}:
    v_mov_b32 v242, {NONCE}
    ds_write_b32 v242, v243
    v_cndmask_b32 v4, v74, v34, vcc
    v_cndmask_b32 v6, v72, v32, vcc
    v_mov_b32 v5, s31
    v_sub_f32 v6, 0, v6
    v_mov_b32 v7, s31
    s_lshl_b32 s3, s39, 4
    """)
    srd(A, 12, PT["ws"], RS, 2048 * 16)
    A(f"s_mov_b64 exec, 3\nbuffer_store_dwordx4 v[4:7], v{L16}, s[12:15], s3 offen {SC}\ns_mov_b64 exec, -1\ns_nop 0")

GA = dict(frag=96, xr=176, xa=180, wr=184, wa=185, dv=186, cs=192, one=204, idx=208, ns=3, sel=0, tab=36864, rs=176)
GB = dict(frag=112, xr=200, xa=202, wr=204, wa=205, dv=206, cs=216, one=232, idx=236, ns=4, sel=1, tab=49152, rs=212)
ROWT = 37888

def g1_dma(role, par, R, touch=False, pro=False):
    g = []
    for j in range(4):
        ins = []
        if role == "A":
            if j == 0 and pro: ins += [f"s_add_u32 m0, s94, s28" if par else "s_add_u32 m0, s94, s30", "s_nop 0"]
            ins.append(f"buffer_load_dwordx4 v{R['dv']+j}, s[8:11], {'s26' if par else 's27'} offen offset:{j*1024} lds")
            if j == 3: ins += ["s_add_u32 s26, s26, 128"] if par else ["s_add_u32 s27, s27, 128"] + (rot3(94, XSLOT) if pro else [])
        else:
            if j == 0 and pro: ins += ["s_add_u32 m0, s94, s28", "s_nop 0"]
            if j == 3: ins.append("s_mov_b64 exec, s[98:99]")
            ins.append(f"buffer_load_dwordx4 v{R['dv']+j}, s[8:11], s26 offen offset:{j*1024} lds")
            if j == 3:
                ins += ["s_mov_b64 exec, -1", "s_add_u32 s26, s26, s27"] + (rot3(94, WSLOT, WRING, 4) if pro else [])
                if touch: ins += ["buffer_load_dword v211, v210, s[16:19], s30 offen", "s_add_u32 s30, s30, 1024"]
        g.append(ins)
    return g

def g1_addr(role, par, R, dma=False):
    o = []
    if dma and role == "B": o.append("s_add_u32 m0, s95, s28")
    if dma and role == "A": o.append("s_add_u32 m0, s96, s28" if par else "s_add_u32 m0, m0, 4096")
    w = rot3(95, WSLOT, WRING, 4) + [f"v_add_u32 v{R['wa']}, s95, v{R['wr']}"]
    x = []
    if par:
        x = rot3(96, XSLOT)
        for i in range(4 if role == "A" else 2): x.append(f"v_add_u32 v{R['xa']+i}, s96, v{R['xr']+i}")
    return o, x, w

def g1_step(role, par, dma, reads, R):
    cur = par; nxt = par ^ 1
    mf, rd = [], []
    if role == "A":
        fb = lambda buf: R["frag"] + 40 * buf
        xf = lambda buf, ks, rb: fb(buf) + 8 * ks + 4 * rb
        wf = lambda buf, ks, b: fb(buf) + 16 + 8 * b + 4 * ks
        for ks in range(2):
            for rb in range(2):
                for b in range(3):
                    acc = vr((rb * 3 + b) * 16, 16)
                    x_, w_ = vr(xf(cur, ks, rb), 4), vr(wf(cur, ks, b), 4)
                    mf.append(f"v_mfma_f32_32x32x16_bf16 {acc}, {w_}, {x_}, {acc}" if b < 2 else f"v_mfma_f32_32x32x16_bf16 {acc}, {x_}, {w_}, {acc}")
        for ks in range(2):
            for rb in range(2):
                rd.append(f"ds_read_b128 {vr(xf(nxt, ks, rb), 4)}, v{R['xa'] + 2 * nxt + ks} offset:{rb * 4096}")
            for b in range(3):
                for hf in range(2):
                    rd.append(f"ds_read_b64_tr_b16 {vr(wf(nxt, ks, b) + 2 * hf, 2)}, v{R['wa']} offset:{(16 * ks + 4 * hf) * 192 + 64 * b}")
    else:
        fb = lambda buf: R["frag"] + 44 * buf
        xf = lambda buf, st: fb(buf) + 4 * st
        wf = lambda buf, ft: fb(buf) + 16 + 4 * ft
        for ft in range(7):
            for st in range(4):
                acc = vr((st * 7 + ft) * 4, 4)
                mf.append(f"v_mfma_f32_16x16x32_bf16 {acc}, {vr(wf(cur, ft), 4)}, {vr(xf(cur, st), 4)}, {acc}")
        for st in range(4):
            rd.append(f"ds_read_b128 {vr(xf(nxt, st), 4)}, v{R['xa'] + nxt} offset:{st * 2048}")
        for ft in range(7):
            for hf in range(2):
                rd.append(f"ds_read_b64_tr_b16 {vr(wf(nxt, ft) + 2 * hf, 2)}, v{R['wa']} offset:{WBO + hf * 8 * 224 + 32 * ft}")
    if not reads: return mf, []
    o, x, w = g1_addr(role, par, R, dma)
    dm = g1_dma(role, par, R, OPT.get('mw')) if dma and not OPT.get("g_nodma" + role) else []
    if OPT.get("g_nord" + role): rd = rd[:4]
    nx = 2 if role == "A" else 4
    xs = [[i] for i in o + x[:3]] + ([x[3:]] if x else [])
    rds = rd[:nx] + [None] + rd[nx:]
    fill = list(xs)
    k = 0; step = max(1, len(rd) // max(1, len(dm))); i = 0
    wq = [[q] for q in w]
    for r_ in rd[:nx]:
        fill.append(r_); fill += wq[:2] if role == "A" else wq[:1]; wq = wq[2:] if role == "A" else wq[1:]
    fill += wq
    for i, r_ in enumerate(rd[nx:]):
        fill.append(r_)
        if (i + 1) % step == 0 and k < len(dm): fill.append(dm[k]); k += 1
    fill += dm[k:]
    nlast = OPT.get("nl" + role, 2 if role == "A" else 5)
    st0 = OPT.get("st" + role, 0)
    return interleave(mf[:-nlast], fill, start=st0) + mf[-nlast:], x + w + rd

def g1_setup_A(A):
    R = GA
    A(f"""
    s_mov_b32 s26, 0
    s_mov_b32 s27, 65536
    s_lshl_b32 s28, s21, 13
    s_add_u32 s30, s28, 4096
    s_mov_b32 s94, 0
    v_lshrrev_b32 v1, 3, v{LANE}
    s_lshl_b32 s3, s22, 8
    s_lshl_b32 s6, s21, 6
    s_add_u32 s3, s3, s6
    v_add_u32 v1, s3, v1
    v_lshlrev_b32 v1, 11, v1
    v_lshrrev_b32 v2, 4, v{LANE}
    v_and_b32 v3, 7, v{LANE}
    v_xor_b32 v4, v2, v3
    v_xor_b32 v5, 4, v4
    v_lshl_add_u32 v4, v4, 4, v1
    v_lshl_add_u32 v5, v5, 4, v1
    v_mov_b32 v{R['dv']}, v4
    v_add_u32 v{R['dv']+1}, {16384-1024}, v5
    v_add_u32 v{R['dv']+2}, {2*(16384-1024)}, v4
    v_add_u32 v{R['dv']+3}, {3*(16384-1024)}, v5
    v_lshrrev_b32 v2, 5, v{LANE}
    v_and_b32 v1, 31, v{LANE}
    v_bfe_u32 v3, v{LANE}, 1, 3
    v_xor_b32 v3, v3, v2
    v_add_u32 v1, s6, v1
    v_lshlrev_b32 v1, 7, v1
    v_lshl_add_u32 v{R['xr']}, v3, 4, v1
    v_xor_b32 v{R['xr']+1}, 32, v{R['xr']}
    v_xor_b32 v{R['xr']+2}, 64, v{R['xr']}
    v_xor_b32 v{R['xr']+3}, 96, v{R['xr']}
    v_bfe_u32 v1, v{LANE}, 2, 2
    v_lshl_add_u32 v1, v2, 3, v1
    v_mul_u32_u24 v1, 192, v1
    v_bfe_u32 v3, v{LANE}, 4, 1
    v_lshl_add_u32 v1, v3, 5, v1
    v_and_b32 v3, 3, v{LANE}
    v_lshl_add_u32 v{R['wr']}, v3, 3, v1
    """)

def g1_setup_B(A):
    R = GB
    m12, s12 = magic_div(12, 511); m14, s14 = magic_div(14, 511)
    LB, LE = A.label("sB"), A.label("sE")
    A(f"""
    s_mov_b32 s26, 0
    s_mov_b32 s94, {WRING}
    s_cmp_eq_u32 s21, 2
    s_cselect_b32 s98, -1, 0
    s_mov_b32 s99, s98
    s_cmp_ge_u32 s21, 2
    s_cselect_b32 s8, s{PT['win']}, s{PT['wqkv']}
    s_cselect_b32 s9, s{PT['win']+1}, s{PT['wqkv']+1}
    s_mov_b32 s10, {1024*6144}
    s_cmov_b32 s10, {1024*7168}
    s_mov_b32 s11, 0x00020000
    s_mov_b32 s27, {32*6144}
    s_cmov_b32 s27, {32*7168}
    s_cbranch_scc1 {LB}
    s_mul_i32 s3, s21, 3
    s_lshl_b32 s28, s3, 10
    s_lshl_b32 s3, s3, 6
    s_lshl_b32 s39, s25, 6
    """)
    for j in range(4):
        A(f"""
        v_add_u32 v1, s3, v{LANE}
        v_add_u32 v1, {64*j}, v1
        v_mul_u32_u24 v2, {m12}, v1
        v_lshrrev_b32 v2, {s12}, v2
        v_mul_u32_u24 v3, 12, v2
        v_sub_u32 v3, v1, v3
        v_mul_u32_u24 v2, 6144, v2
        v_lshrrev_b32 v4, 2, v3
        v_lshl_add_u32 v2, v4, 11, v2
        v_and_b32 v3, 3, v3
        v_lshl_add_u32 v2, v3, 4, v2
        v_add_u32 v2, s39, v2
        v_subrev_u32 v{R['dv']+j}, {1024*j}, v2
        """)
    A(f"""
    s_add_u32 s40, s39, 2048
    s_add_u32 s41, s39, 4096
    s_branch {LE}
    {LB}:
    s_sub_u32 s3, s21, 2
    s_lshl_b32 s3, s3, 2
    s_lshl_b32 s28, s3, 10
    s_add_u32 s28, s28, {WBO}
    s_lshl_b32 s3, s3, 6
    s_lshr_b32 s39, s24, 1
    s_mul_i32 s39, s39, 3584
    s_mul_i32 s7, s23, 448
    s_add_u32 s39, s39, s7
    s_and_b32 s7, s24, 1
    s_mul_i32 s7, s7, 224
    s_add_u32 s39, s39, s7
    """)
    for j in range(4):
        A(f"""
        v_add_u32 v1, s3, v{LANE}
        v_add_u32 v1, {64*j}, v1
        v_mul_u32_u24 v2, {m14}, v1
        v_lshrrev_b32 v2, {s14}, v2
        v_mul_u32_u24 v3, 14, v2
        v_sub_u32 v3, v1, v3
        v_and_b32 v4, 0x13, v2
        v_bfe_u32 v5, v2, 2, 1
        v_lshl_add_u32 v4, v5, 3, v4
        v_bfe_u32 v5, v2, 3, 1
        v_lshl_add_u32 v4, v5, 2, v4
        v_mul_u32_u24 v4, 7168, v4
        v_lshl_add_u32 v4, v3, 4, v4
        v_add_u32 v4, s39, v4
        v_subrev_u32 v{R['dv']+j}, {1024*j}, v4
        """)
    A(f"s_add_u32 s40, s39, 128\ns_add_u32 s41, s39, 220\n{LE}:")

def g1_setup_B2(A):
    R = GB
    A(f"""
    v_and_b32 v1, 15, v{LANE}
    v_lshrrev_b32 v2, 4, v{LANE}
    v_lshrrev_b32 v3, 1, v1
    v_xor_b32 v4, v3, v2
    s_lshl_b32 s6, s21, 6
    v_add_u32 v1, s6, v1
    v_lshlrev_b32 v1, 7, v1
    v_lshl_add_u32 v{R['xr']}, v4, 4, v1
    v_xor_b32 v{R['xr']+1}, 64, v{R['xr']}
    v_bfe_u32 v1, v{LANE}, 2, 2
    v_bfe_u32 v3, v{LANE}, 4, 1
    v_lshl_add_u32 v1, v3, 2, v1
    v_lshrrev_b32 v3, 5, v{LANE}
    v_lshl_add_u32 v1, v3, 4, v1
    v_mul_u32_u24 v1, 224, v1
    v_and_b32 v3, 3, v{LANE}
    v_lshl_add_u32 v{R['wr']}, v3, 3, v1
    """)

def w_touch(A):
    L = A.label("wt")
    A(f"""
    s_lshl_b32 s3, s37, 9
    s_lshl_b32 s6, s22, 6
    s_add_u32 s3, s3, s6
    v_add_u32 v214, s3, v{LANE}
    s_lshr_b32 s3, s27, 5
    v_mul_lo_u32 v214, v214, s3
    v_add_u32 v214, s39, v214
    s_sub_u32 s14, s40, s39
    s_sub_u32 s15, s41, s39
    v_add_u32 v215, s14, v214
    v_add_u32 v237, s15, v214
    s_and_b32 s39, s36, 3
    s_cmp_eq_u32 s37, 1
    s_cbranch_scc1 {L}
    s_mov_b32 s39, 99
    """)
    A.extend(w_touch_loads())
    A(L + ":")
    return 0
def w_touch_loads(): return [f"buffer_load_dword v213, v{r}, s[8:11], 0 offen" for r in (214, 215, 237)]

def ones_setup(A, R, role):
    t = 1
    sel = "v_lshrrev_b32 v3, 1, v1" if role == "A" else f"v_lshrrev_b32 v3, 5, v{LANE}\nv_lshrrev_b32 v4, 1, v1\nv_xor_b32 v3, v3, v4"
    A(f"""
    v_and_b32 v1, 15, v{LANE}
    v_mov_b32 v2, 0x3f803f80
    {sel}
    v_cmp_eq_u32 vcc, 0, v3
    v_and_b32 v5, 1, v1
    v_mul_u32_u24 v5, 0xaaaa, v5
    v_cndmask_b32 v{R['one']}, 0, v2, vcc
    v_cndmask_b32 v{R['one']+1}, 0, v2, vcc
    """)
    if role == "A": A("v_cmp_eq_u32 vcc, 1, v3\ns_nop 1")
    A(f"v_cndmask_b32 v{R['one']+2}, 0, v2, vcc\nv_cndmask_b32 v{R['one']+3}, 0, v2, vcc\nv_add_u32 v{R['idx']}, 0x4444, v5")
    for i in range(4 * R["ns"]): A(f"v_mov_b32 v{R['cs']+i}, 0")
    A(f"s_cmp_eq_u32 s21, {R['sel']}\ns_cselect_b32 s42, s22, 99\ns_mov_b32 s41, 0\ns_mov_b32 s40, 0\nv_mov_b32 v240, 0\nv_mov_b32 v241, 0")
    srd(A, 12, PT["ws"], CSP, 32 * 8 * 2048)

def cs_sums(role, R):
    c = R["cs"]; ins = []; regs = []
    for i in range(R["ns"]):
        if role == "B" and i == 3: ins.append(f"v_add_f32 v{c+12}, v{c+12}, v{c+14}"); regs.append(c + 12)
        else: ins += [f"v_add_f32 v{c+4*i}, v{c+4*i}, v{c+4*i+1}", f"v_add_f32 v{c+4*i+2}, v{c+4*i+2}, v{c+4*i+3}"]; regs += [c + 4 * i, c + 4 * i + 2]
    return regs, ins

GTAB = 40960
def cs_hook(A, role, R, par, kind):
    L = A.label("cs")
    B = Asm(); B._lab = A._lab * 100
    B(L + ":")
    w0 = R["frag"] + (40 if role == "A" else 44) * par + 16
    for i in range(3): B(f"v_smfmac_f32_16x16x64_bf16 {vr(R['cs']+4*i,4)}, {vr(R['one'],4)}, {vr(w0+8*i,8)}, v{R['idx']}")
    if role == "B": B(f"v_mfma_f32_16x16x32_bf16 {vr(R['cs']+12,4)}, {vr(R['one'],4)}, {vr(w0+24,4)}, {vr(R['cs']+12,4)}")
    so = 0 if role == "A" else 1024
    if kind == "share" and par == 1:
        B(f"s_bitcmp1_b32 s41, 0\ns_cbranch_scc0 {L}r\ns_nop 7")
        B.extend(cs_sums(role, R)[1])
        B("s_lshl_b32 s3, s25, 3\ns_add_u32 s3, s3, s22\ns_lshl_b32 s3, s3, 11")
        for i in range(R["ns"]): B(f"v_mov_b32 v{R['cs']+4*i+1}, s31\nv_mov_b32 v{R['cs']+4*i+3}, s31")
        B("s_mov_b64 exec, 0xffff")
        for i in range(R["ns"]): B(f"buffer_store_dwordx4 {vr(R['cs']+4*i,4)}, v{L16}, s[12:15], s3 offen offset:{so+256*i} {SC}")
        B("s_mov_b64 exec, -1\ns_nop 0")
        for i in range(4 * R["ns"]): B(f"v_mov_b32 v{R['cs']+i}, 0")
    if kind == "last":
        regs, ins = cs_sums(role, R)
        G = R["frag"]
        B(f"v_lshlrev_b32 v238, 2, v{LANE}\nv_and_b32 v238, 63, v238\nv_add_u32 v237, {GTAB + (0 if role == 'A' else 512)}, v238\nv_add_u32 v238, {R['tab']}, v238")
        for k in range(len(regs)): B(f"ds_read_b32 v{G+k}, v237 offset:{64*k}")
        B.extend(ins)
        B("s_waitcnt lgkmcnt(0)")
        for k, r_ in enumerate(regs): B(f"v_add_f32 v{G+k}, v{G+k}, v{r_}")
        B("s_mov_b64 exec, 0xffff")
        for k in range(len(regs)): B(f"ds_write_b32 v238, v{G+k} offset:{64*k}")
        B("s_mov_b64 exec, -1\ns_waitcnt lgkmcnt(0)")
    B(f"s_branch {L}r")
    COLD.extend(l.strip() for l in B.lines)
    return [f"s_cbranch_vccnz {L}", f"{L}r:"]

GG = 210
def gather_regs(): return [210 + 4 * i for i in range(7)] + [186]
def gather_issue(A):
    L = A.label("ga"); B = Asm()
    B(f"""
    {L}:
    s_lshl_b32 s40, s25, 14
    s_lshl_b32 s3, s37, 10
    s_add_u32 s40, s40, s3
    v_lshrrev_b32 v241, 4, v{LANE}
    v_and_b32 v240, 15, v{LANE}
    v_lshlrev_b32 v240, 4, v240
    v_lshl_add_u32 v240, v241, 11, v240
    v_cmp_lt_u32 vcc, 1, v241
    v_add_u32 v241, 8192, v240
    v_mov_b32 v239, 1.0
    v_cndmask_b32 v241, v241, v240, vcc
    v_cndmask_b32_e64 v239, v239, 0, vcc
    """)
    B.extend(gather_loads()); B(f"s_mov_b64 vcc, 0\ns_branch {L}r")
    COLD.extend(l.strip() for l in B.lines)
    return ["s_cmp_ge_u32 s21, 2", f"s_cbranch_scc1 {L}", f"{L}r:"]
def gather_loads():
    g = gather_regs()
    return [f"buffer_load_dwordx4 {vr(g[4*u+i],4)}, v{240+u}, s[12:15], s40 offen offset:{256*i} {SC}" for u in range(2) for i in range(4)]
def gather_finish(A):
    L = A.label("gf"); B = Asm(); g = gather_regs()
    B(f"{L}:\ns_mov_b32 s97, 0x8000\n{L}p:\ns_waitcnt vmcnt(0)\nv_xor_b32 v238, s31, v{g[0]+1}")
    for i in range(8):
        for u in (1, 3):
            if i & 3 == 3: continue
            if i or u == 3: B(f"v_xor_b32 v209, s31, v{g[i]+u}\nv_or_b32 v238, v238, v209")
    B(f"v_xor_b32 v209, s31, v{g[3]+1}\nv_xor_b32 v{g[3]+3}, s31, v{g[7]+1}\nv_or_b32 v209, v209, v{g[3]+3}\nv_mul_lo_u32 v209, v209, s37\nv_or_b32 v238, v238, v209")
    B(f"v_cmp_ne_u32 vcc, 0, v238\ns_sub_u32 s97, s97, 1\ns_cbranch_vccz {L}q\ns_cmp_eq_u32 s97, 0\ns_cbranch_scc1 {L}q\ns_sleep 2")
    B.extend(gather_loads())
    B(f"s_branch {L}p\n{L}q:")
    vals = [g[k // 2] + 2 * (k & 1) for k in range(7)]
    for k, v in enumerate(vals): B(f"v_fmac_f32 v{v}, v239, v{g[4 + k // 2] + 2 * (k & 1)}")
    for sw in ("v_permlane16_swap_b32", "v_permlane32_swap_b32"):
        for v in vals: B(f"v_mov_b32 v{v+1}, v{v}")
        B("s_nop 0")
        for v in vals: B(f"{sw} v{v}, v{v+1}")
        for v in vals: B(f"v_add_f32 v{v}, v{v}, v{v+1}")
    B(f"s_lshl_b32 s3, s37, 9\ns_add_u32 s3, s3, {GTAB}\nv_lshlrev_b32 v238, 2, v{LANE}\nv_add_u32 v238, s3, v238\ns_mov_b64 exec, 0xffff")
    for k, v in enumerate(vals): B(f"ds_write_b32 v238, v{v} offset:{64*k}")
    B(f"s_mov_b64 exec, -1\ns_mov_b64 vcc, 0\ns_branch {L}r")
    COLD.extend(l.strip() for l in B.lines)
    return ["s_cmp_ge_u32 s21, 2", f"s_cbranch_scc1 {L}", f"{L}r:"]

def rs_load(role, R):
    return [f"buffer_load_dwordx4 {vr(R['rs'],4)}, v{L16}, s[16:19], s39 offen {SC}"]
def rs_wait(A, role, R):
    L = A.label("rs"); g = R["rs"]
    chk = ["s_waitcnt vmcnt(0)", f"v_cmp_ne_u32 vcc, s31, v{g+1}", f"v_cmp_ne_u32 s[40:41], s31, v{g+3}", "s_nop 0", "s_or_b64 vcc, vcc, s[40:41]"]
    COLD.extend([f"{L}:", "s_mov_b32 s97, 0x8000", f"{L}b:", "s_sleep 2"] + rs_load(role, R) + ["s_sub_u32 s97, s97, 1", "s_cmp_eq_u32 s97, 0", f"s_cbranch_scc1 {L}t"] + chk +
                [f"s_cbranch_vccnz {L}b", f"{L}t:", "s_waitcnt vmcnt(0)", f"s_branch {L}r"])
    A.extend(chk + [f"s_cbranch_vccnz {L}", f"{L}r:"])

def g1_main(A, role, R, nacc, extra):
    A(f"s_mov_b32 s95, {WRING + 3*WSLOT}\ns_mov_b32 s96, {2*XSLOT}")
    prio(A, "pg" + role)
    ones_setup(A, R, role)
    for i in range(nacc): A(f"v_mov_b32 v{i}, 0")
    A(f"s_waitcnt vmcnt({12 + extra}) lgkmcnt(0)\ns_barrier")
    stamp(A, 1)
    if role == "B": A(f"v_mov_b32 v242, {NONCE}\nds_read_b32 v243, v242")
    A.extend(g1_step(role, 1, False, True, R)[1])
    A(f"s_waitcnt vmcnt({8 + extra}) lgkmcnt(0)" if role == "B" else "s_waitcnt lgkmcnt(0)")
    if role == "B": A("v_readfirstlane_b32 s31, v243")
    nl = OPT.get("nt" + role, 1 if role == "A" else 2)
    flag = {"share": ["s_lshr_b32 s3, s41, 1", "s_cmp_eq_u32 s3, s42", "s_cselect_b64 vcc, -1, 0"],
            "own": [f"s_cmp_eq_u32 s21, {R['sel']}", "s_cselect_b64 vcc, -1, 0"]}
    def step(par, dma, vm, kind, reads=1, pre=(), book=(), cut=False):
        body = g1_step(role, par, dma, reads, R)[0]
        A("s_barrier"); A(body[0])
        A.extend(cs_hook(A, role, R, par, kind)); A.extend(pre)
        A.extend(body[1:-nl]); A.extend(book)
        w = ([f"vmcnt({vm})"] if vm is not None else []) + (["lgkmcnt(0)"] if reads else [])
        end = body[-nl:] + (["s_waitcnt " + " ".join(w)] if w else [])
        if cut: return end
        A.extend(end)
    ev = []
    if role == "B":
        if OPT.get("me"):
            Lw = A.label("mw")
            ev += ["s_cmp_eq_u32 s41, s43", f"s_cbranch_scc1 {Lw}", f"{Lw}r:"]
            COLD.extend([f"{Lw}:", "buffer_load_dword v211, v210, s[16:19], s30 offen", "s_add_u32 s30, s30, 8192", f"s_add_u32 s43, s43, {OPT.get('mp', 5)}", f"s_branch {Lw}r"])
        Lw = A.label("w2")
        ev += ["s_cmp_eq_u32 s41, s39", f"s_cbranch_scc1 {Lw}", f"{Lw}r:"]
        COLD.extend([f"{Lw}:"] + w_touch_loads() + [f"s_branch {Lw}r"])
    v0, v1 = (8, None) if role == "A" else (8, 8)
    L = A.label("g1" + role)
    if role == "A": itr0(A, 1)
    A.extend(flag["share"])
    A(f"s_branch {L}m")
    S = Asm(); cold_n = len(COLD)
    odd_end = g1_step(role, 1, 1, 1, R)[0][-nl:] + ["s_waitcnt " + " ".join(([f"vmcnt({v1})"] if v1 is not None else []) + ["lgkmcnt(0)"])]
    A(L + ":"); A.extend(odd_end); A(L + "m:")
    step(0, 1, v0, "share", book=ev)
    end = step(1, 1, v1, "share", cut=True,
               book=(itr(1) if role == "A" else []) + ["s_add_u32 s41, s41, 1"] + flag["share"] + ["s_cmp_lt_u32 s41, 12", f"s_cbranch_scc1 {L}"])
    A.extend(flag["own"]); A.extend(end)
    if OPT.get("hs") == 9: stamp(A, 7, force=True)
    B = Asm(); srd(B, 16, PT["ws"], RS, 2048 * 16); B("s_lshl_b32 s39, s22, 2\ns_add_u32 s39, s39, s21\ns_lshl_b32 s39, s39, 10")
    rsl = [l.strip() for l in B.lines] + rs_load(role, R)
    tr = itr(1) if role == "A" else []
    if role == "A":
        step(0, 1, 8, "own"); step(1, 1, None, "own", book=tr)
        step(0, 1, 8, "own"); step(1, 0, None, "own", pre=gather_issue(A) + flag["own"], book=tr)
        step(0, 0, 0, "own"); step(1, 0, None, "own", pre=gather_finish(A) + flag["own"], book=tr)
    else:
        step(0, 1, 8, "own"); step(1, 1, 8, "own"); step(0, 1, 8, "own"); step(1, 1, 8, "own")
        step(0, 0, 4, "own"); step(1, 0, 0, "own")
    step(0, 0, None, "own", pre=rsl); step(1, 0, None, "last", reads=0, book=tr)
    if OPT.get("hs") == 9: stamp(A, 8, force=True)
    rs_wait(A, role, R)
    if OPT.get("hs") == 9: stamp(A, 9, force=True)
    A("s_barrier")

RA = dict(O=0, S=32, Pk=64, Q=96, K=112, V=120, L=128, ONE=136, IDX=140, cur=141, nxt=142, dk=143, dv=144, tmp=148)

def epi_A(A):
    R = RA; g = 198
    CS, RW, T = 144, 160, 176
    A("v_mov_b32 v198, v176\nv_mov_b32 v199, v178")
    srd(A, 8, PT["ws"], KF, 8 * MB)
    A(f"""
    s_lshl_b32 s3, s21, 9
    s_add_u32 s3, s3, {ROWT}
    v_lshlrev_b32 v192, 2, v{LANE}
    v_add_u32 v193, s3, v192
    ds_write_b32 v193, v{g}
    ds_write_b32 v193, v{g+1} offset:256
    v_lshrrev_b32 v194, 5, v{LANE}
    v_lshlrev_b32 v194, 4, v194
    v_add_u32 v195, s3, v194
    v_add_u32 v194, {GA['tab']}, v194
    v_and_b32 v192, 127, v192
    v_add_u32 v192, {GA['tab']+256}, v192
    ds_read_b32 v196, v192
    """)
    for q in range(4): A(f"ds_read_b128 {vr(CS+4*q,4)}, v194 offset:{128+32*q}")
    A(f"""
    v_mov_b32 v200, v{g}
    v_mov_b32 v202, v{g}
    v_mov_b32 v204, v{g+1}
    v_mov_b32 v206, v{g+1}
    s_lshl_b32 s3, s25, 6
    s_lshl_b32 s6, s22, 3
    v_permlane32_swap_b32 v200, v202
    v_permlane32_swap_b32 v204, v206
    s_add_u32 s3, s3, s6
    s_lshl_b32 s6, s21, 1
    s_add_u32 s3, s3, s6
    s_lshl_b32 s6, s3, 11
    s_add_u32 s7, s6, {4*MB}
    v_mov_b32 v201, v200
    v_mov_b32 v203, v202
    v_mov_b32 v205, v204
    v_mov_b32 v207, v206
    """)
    def fix_rowlane(a0, rb):
        for q in range(8): A(f"v_pk_mul_f32 {vr(T+2*q,2)}, {vr(CS+2*q,2)}, {vr(204+2*rb,2)}")
        for q in range(8): A(f"v_pk_fma_f32 {vr(a0+2*q,2)}, {vr(a0+2*q,2)}, {vr(200+2*rb,2)}, {vr(T+2*q,2)}")
    def pack_store(a0, d0, so, rb):
        for i in range(8): A(f"v_cvt_pk_bf16_f32 v{d0+i}, v{a0+2*i}, v{a0+2*i+1}")
        for f in range(2): A(f"buffer_store_dwordx4 {vr(d0+4*f,4)}, v{L16}, s[8:11], {so} offen offset:{(rb*2+f)*1024} {SC}")
    def rowreads(rb):
        for q in range(4): A(f"ds_read_b128 {vr(RW+4*q,4)}, v195 offset:{128*rb+32*q}")
        for q in range(4): A(f"ds_read_b128 {vr(208+4*q,4)}, v195 offset:{256+128*rb+32*q}")
    rowreads(0)
    A("s_waitcnt lgkmcnt(8)\nv_mov_b32 v197, v196")
    for rb in range(2): fix_rowlane((rb * 3 + 1) * 16, rb); pack_store((rb * 3 + 1) * 16, 112 + 8 * rb, "s6", rb)
    for q in range(4): A(f"ds_read_b128 {vr(CS+4*q,4)}, v194 offset:{32*q}")
    for rb in range(2):
        a0 = (rb * 3 + 2) * 16
        A(f"s_waitcnt lgkmcnt({4 if rb == 0 else 0})")
        for q in range(8): A(f"v_pk_mul_f32 {vr(T+2*q,2)}, {vr(208+2*q,2)}, v[196:197]")
        for q in range(8): A(f"v_pk_fma_f32 {vr(a0+2*q,2)}, {vr(a0+2*q,2)}, {vr(RW+2*q,2)}, {vr(T+2*q,2)}")
        if rb == 0: rowreads(1)
        pack_store(a0, 128 + 8 * rb, "s7", rb)
    for i in range(8): A(f"v_mul_f32 v{200+i}, {fhex(QSCALE)}, v{200+i}")
    for rb in range(2):
        fix_rowlane(rb * 48, rb)
        for i in range(8): A(f"v_cvt_pk_bf16_f32 v{R['Q']+8*rb+i}, v{rb*48+2*i}, v{rb*48+2*i+1}")
    A(f"s_lshl_b32 s43, s25, 10\ns_add_u32 s43, s43, {FKV}\ns_lshl_b32 s42, s22, 7\ns_add_u32 s42, s42, s43")

def attn_slot(n, extra_mid=None, extra_end=None):
    R = RA
    qb = n & 1; b = n >> 1
    S = R["S"] + 16 * qb; Sn = R["S"] + 16 * (qb ^ 1)
    P = R["Pk"] + 8 * qb; Pp = R["Pk"] + 8 * (qb ^ 1)
    qn = qb ^ 1
    K, V, Q, O, L = R["K"], R["V"], R["Q"] + 8 * qn, R["O"] + 16 * qn, R["L"] + 4 * qn
    valu = []
    head = [f"v_cvt_pk_bf16_f32 v{Pp+7}, v{Sn+14}, v{Sn+15}"]
    for i in range(16):
        valu.append(f"v_exp_f32 v{S+i}, v{S+i}")
        p2 = i - 3
        if p2 >= 0 and p2 % 2 == 0: valu.append(f"v_cvt_pk_bf16_f32 v{P+p2//2}, v{S+p2}, v{S+p2+1}")
    M = [f"v_mfma_f32_32x32x16_bf16 {vr(Sn,16)}, {vr(K,4)}, {vr(Q,4)}, 0",
         f"v_mfma_f32_32x32x16_bf16 {vr(Sn,16)}, {vr(K+4,4)}, {vr(Q+4,4)}, {vr(Sn,16)}",
         f"v_mfma_f32_32x32x16_bf16 {vr(O,16)}, {vr(V,4)}, {vr(Pp,4)}, {vr(O,16)}",
         f"v_mfma_f32_32x32x16_bf16 {vr(O,16)}, {vr(V+4,4)}, {vr(Pp+4,4)}, {vr(O,16)}",
         f"v_smfmac_f32_16x16x64_bf16 {vr(L,4)}, {vr(R['ONE'],4)}, {vr(Pp,8)}, v{R['IDX']}"]
    pre = [[] for _ in range(5)]; post = [[] for _ in range(5)]
    if qb == 1: pre[0].append("s_waitcnt lgkmcnt(0)")
    if qb == 0:
        ka, ko = (R["cur"], (b + 1) * 4096) if b < 3 else (R["nxt"], 0)
        post[1] += [f"ds_read_b128 {vr(K,4)}, v{ka} offset:{ko}", f"ds_read_b128 {vr(K+4,4)}, v{ka} offset:{ko+1024}"]
        post[3] += [f"ds_read_b128 {vr(V,4)}, v{R['cur']} offset:{b*4096+2048}", f"ds_read_b128 {vr(V+4,4)}, v{R['cur']} offset:{b*4096+3072}"]
    if extra_mid:
        for k, v in extra_mid.items(): post[k] += v
    out = list(head)
    cuts = {0: [0, 4, 9, 14, 19], 1: [0, 0, 10, 10, 19], 2: [0, 0, 9, 9, 9], 3: [0, 7, 7, 14, 14], 4: [0, 0, 8, 8, 16]}[OPT.get("av", 0)] + [len(valu)]
    for g in range(5): out += pre[g] + [M[g]] + post[g] + valu[cuts[g]:cuts[g + 1]]
    return out + (extra_end or [])

def kv_dma():
    R = RA
    return [["s_add_u32 m0, s94, s28", "s_nop 0", f"buffer_load_dwordx4 v{R['dk']}, s[8:11], s26 offen {SC} lds"],
            [f"buffer_load_dwordx4 v{R['dk']}, s[8:11], s26 offen offset:1024 {SC} lds"],
            [f"buffer_load_dwordx4 v{R['dv']}, s[8:11], s26 offen offset:2048 {SC} lds"],
            [f"buffer_load_dwordx4 v{R['dv']}, s[8:11], s26 offen offset:3072 {SC} lds", "s_add_u32 s26, s26, 8192"] + rot3(94, KV_SLOT, AREG)]

def attn_setup(A):
    R = RA; t = R["tmp"]
    for i in range(32): A(f"v_mov_b32 v{R['O']+i}, 0")
    for i in range(16): A(f"v_mov_b32 v{R['Pk']+i}, 0\nv_mov_b32 v{R['S']+16+i}, 0")
    for i in range(8): A(f"v_mov_b32 v{R['V']+i}, 0\nv_mov_b32 v{R['L']+i}, 0")
    A(f"""
    v_and_b32 v{t}, 15, v{LANE}
    v_mov_b32 v{t+1}, 0x3f803f80
    v_cmp_gt_u32 vcc, 2, v{t}
    v_lshrrev_b32 v{t+2}, 1, v{t}
    s_nop 0
    v_cndmask_b32 v{R['ONE']}, 0, v{t+1}, vcc
    v_cndmask_b32 v{R['ONE']+1}, 0, v{t+1}, vcc
    v_cmp_eq_u32 vcc, 1, v{t+2}
    v_and_b32 v{t}, 1, v{t}
    v_mul_u32_u24 v{t}, 0xaaaa, v{t}
    v_cndmask_b32 v{R['ONE']+2}, 0, v{t+1}, vcc
    v_cndmask_b32 v{R['ONE']+3}, 0, v{t+1}, vcc
    v_add_u32 v{R['IDX']}, 0x4444, v{t}
    v_add_u32 v{R['cur']}, {AREG}, v{L16}
    v_add_u32 v{R['nxt']}, {AREG + KV_SLOT}, v{L16}
    s_mov_b32 s95, {AREG + KV_SLOT}
    s_lshl_b32 s3, s25, 17
    s_lshl_b32 s6, s21, 11
    s_add_u32 s6, s6, s3
    v_add_u32 v{R['dk']}, s6, v{L16}
    v_add_u32 v{R['dv']}, {4*MB-2048}, v{R['dk']}
    s_mov_b32 s26, 0
    s_lshl_b32 s28, s21, 12
    s_mov_b32 s94, {AREG}
    """)

def attn_main(A):
    R = RA
    for c in range(2):
        for g in kv_dma(): A.extend(g)
    A("s_waitcnt vmcnt(4)")
    gsync(A)
    K, Q, S = R["K"], R["Q"], R["S"]
    A(f"""
    ds_read_b128 {vr(K,4)}, v{R['cur']}
    ds_read_b128 {vr(K+4,4)}, v{R['cur']} offset:1024
    s_waitcnt lgkmcnt(0)
    v_mfma_f32_32x32x16_bf16 {vr(S,16)}, {vr(K,4)}, {vr(Q,4)}, 0
    v_mfma_f32_32x32x16_bf16 {vr(S,16)}, {vr(K+4,4)}, {vr(Q+4,4)}, {vr(S,16)}
    s_mov_b32 s29, 14
    s_nop 7
    s_nop 2
    """)
    stamp(A, 5)
    def chunk(dma, more, end7):
        for n in range(8):
            mid, end = None, None
            if n == 4 and more: mid = {4: ["s_waitcnt vmcnt(0)"] + arrive()}
            if n == 5 and more:
                c1, c2 = poll_split(A)
                mid = {1: poll_issue(), 4: c1}; end = c2
            if n == 6 and dma: d = kv_dma(); mid = {0: d[0], 2: d[1], 4: d[2]}
            if n == 7:
                if dma: mid = {1: kv_dma()[3]}
                end = end7
            A.extend(attn_slot(n, mid, end))
    itr0(A, 2)
    adv = itr(2) + rot3(95, KV_SLOT, AREG) + [f"v_mov_b32 v{R['cur']}, v{R['nxt']}", f"v_add_u32 v{R['nxt']}, s95, v{L16}"]
    L = A.label("att")
    A(L + ":")
    chunk(True, True, adv + ["s_sub_u32 s29, s29, 1", "s_cmp_lg_u32 s29, 0", f"s_cbranch_scc1 {L}"])
    L2 = A.label("att")
    A(f"s_mov_b32 s29, 2\n{L2}:")
    chunk(False, True, adv + ["s_sub_u32 s29, s29, 1", "s_cmp_lg_u32 s29, 0", f"s_cbranch_scc1 {L2}"])
    V, Pp, O, Lq = R["V"], R["Pk"] + 8, R["O"] + 16, R["L"] + 4
    A(f"""
    v_cvt_pk_bf16_f32 v{Pp+7}, v{S+30}, v{S+31}
    s_nop 1
    v_mfma_f32_32x32x16_bf16 {vr(O,16)}, {vr(V,4)}, {vr(Pp,4)}, {vr(O,16)}
    v_mfma_f32_32x32x16_bf16 {vr(O,16)}, {vr(V+4,4)}, {vr(Pp+4,4)}, {vr(O,16)}
    v_smfmac_f32_16x16x64_bf16 {vr(Lq,4)}, {vr(R['ONE'],4)}, {vr(Pp,8)}, v{R['IDX']}
    s_nop 7
    s_nop 3
    """)

def attn_finish(A):
    R = RA; t = R["tmp"]; O = R["O"]
    for qb in range(2):
        L = R["L"] + 4 * qb
        A(f"""
        v_add_f32 v{L}, v{L}, v{L+1}
        v_add_f32 v{L+2}, v{L+2}, v{L+3}
        s_nop 1
        v_permlane16_swap_b32 v{L}, v{L+2}
        v_mov_b32 v{t+qb}, v{L}
        s_nop 1
        v_permlane32_swap_b32 v{t+qb}, v{L}
        """)
    LS, LD = A.label("slow"), A.label("fin")
    A(f"v_mul_f32 v{t+2}, 0, v{O}")
    for i in range(1, 32): A(f"v_fmac_f32 v{t+2}, 0, v{O+i}")
    A(f"""
    v_min_f32 v{t+3}, v{t}, v{t+1}
    v_max_f32 v{t+4}, v{t}, v{t+1}
    v_add_f32 v{t+3}, v{t+3}, v{t+2}
    v_add_f32 v{t+4}, v{t+4}, v{t+2}
    v_cmp_nle_f32 vcc, {fhex(2.0**-60)}, v{t+3}
    s_mov_b32 s42, {fhex(2.0**60)}
    v_cmp_nge_f32 s[40:41], s42, v{t+4}
    v_cmp_u_f32 s[42:43], v{t}, v{t+1}
    s_nop 1
    s_or_b64 vcc, vcc, s[40:41]
    s_or_b64 vcc, vcc, s[42:43]
    s_cbranch_vccnz {LS}
    {LD}:
    """)
    B = Asm(); B._lab = 9000
    B(LS + ":"); attn_slow(B); B(f"s_branch {LD}")
    COLD.extend(l.strip() for l in B.lines)
    srd(A, 12, PT["ws"], OF, 4 * MB)
    A(f"""
    v_rcp_f32 v{t}, v{t}
    v_rcp_f32 v{t+1}, v{t+1}
    s_lshl_b32 s6, s22, 3
    s_lshl_b32 s7, s21, 1
    s_add_u32 s6, s6, s7
    s_lshl_b32 s6, s6, 5
    s_add_u32 s6, s6, s25
    s_lshl_b32 s6, s6, 11
    s_add_u32 s7, s6, {32*2048}
    """)
    for qb in range(2):
        for i in range(16): A(f"v_mul_f32 v{O+16*qb+i}, v{O+16*qb+i}, v{t+qb}")
        d = R["Pk"] + 8 * qb
        for i in range(8): A(f"v_cvt_pk_bf16_f32 v{d+i}, v{O+16*qb+2*i}, v{O+16*qb+2*i+1}")
        for f in range(2): A(f"buffer_store_dwordx4 {vr(d+4*f,4)}, v{L16}, s[12:15], s{6+qb} offen offset:{1024*f} {SC}")
    A(f"""
    s_lshl_b32 s42, s22, 5
    s_add_u32 s42, s42, s25
    s_lshl_b32 s42, s42, 7
    s_add_u32 s42, s42, {FO}
    s_lshr_b32 s43, s100, 1
    s_lshl_b32 s43, s43, 12
    s_add_u32 s43, s43, {FO}
    """)

def attn_slow(A):
    R = RA; t = R["tmp"]; O, S, P, K, V, Q = R["O"], R["S"], R["Pk"], R["K"], R["V"], R["Q"]
    m = t + 4; al = t + 6; u = t + 7
    L = A.label("sl")
    for i in range(32): A(f"v_mov_b32 v{O+i}, 0")
    A(f"""
    v_mov_b32 v{t}, 0
    v_mov_b32 v{t+1}, 0
    v_mov_b32 v{m}, {fhex(-3.0e38)}
    v_mov_b32 v{m+1}, {fhex(-3.0e38)}
    s_lshl_b32 s26, s25, 17
    s_add_u32 s27, s26, {4*MB}
    s_mov_b32 s29, 64
    {L}:
    buffer_load_dwordx4 {vr(K,4)}, v{L16}, s[8:11], s26 offen {SC}
    buffer_load_dwordx4 {vr(K+4,4)}, v{L16}, s[8:11], s26 offen offset:1024 {SC}
    buffer_load_dwordx4 {vr(V,4)}, v{L16}, s[8:11], s27 offen {SC}
    buffer_load_dwordx4 {vr(V+4,4)}, v{L16}, s[8:11], s27 offen offset:1024 {SC}
    s_add_u32 s26, s26, 2048
    s_add_u32 s27, s27, 2048
    s_waitcnt vmcnt(0)
    """)
    for qb in range(2):
        Oq = O + 16 * qb
        A(f"""
        v_mfma_f32_32x32x16_bf16 {vr(S,16)}, {vr(K,4)}, {vr(Q+8*qb,4)}, 0
        v_mfma_f32_32x32x16_bf16 {vr(S,16)}, {vr(K+4,4)}, {vr(Q+8*qb+4,4)}, {vr(S,16)}
        s_nop 7
        s_nop 3
        v_max3_f32 v{u}, v{S}, v{S+1}, v{m+qb}
        """)
        for i in range(2, 16, 2): A(f"v_max3_f32 v{u}, v{S+i}, v{S+i+1}, v{u}")
        A(f"""
        v_mov_b32 v{al}, v{u}
        s_nop 1
        v_permlane32_swap_b32 v{al}, v{u}
        v_max_f32 v{u}, v{u}, v{al}
        v_sub_f32 v{al}, v{m+qb}, v{u}
        v_exp_f32 v{al}, v{al}
        v_mov_b32 v{m+qb}, v{u}
        """)
        for i in range(16): A(f"v_sub_f32 v{S+i}, v{S+i}, v{u}")
        for i in range(16): A(f"v_exp_f32 v{S+i}, v{S+i}")
        A(f"v_mul_f32 v{t+qb}, v{t+qb}, v{al}")
        for i in range(16): A(f"v_mul_f32 v{Oq+i}, v{Oq+i}, v{al}")
        for i in range(16): A(f"v_add_f32 v{t+qb}, v{t+qb}, v{S+i}")
        for i in range(8): A(f"v_cvt_pk_bf16_f32 v{P+i}, v{S+2*i}, v{S+2*i+1}")
        A(f"""
        s_nop 1
        v_mfma_f32_32x32x16_bf16 {vr(Oq,16)}, {vr(V,4)}, {vr(P,4)}, {vr(Oq,16)}
        v_mfma_f32_32x32x16_bf16 {vr(Oq,16)}, {vr(V+4,4)}, {vr(P+4,4)}, {vr(Oq,16)}
        """)
    A(f"s_sub_u32 s29, s29, 1\ns_cmp_lg_u32 s29, 0\ns_nop 7\ns_cbranch_scc1 {L}\ns_nop 3")
    for qb in range(2):
        A(f"v_mov_b32 v{u}, v{t+qb}\ns_nop 1\nv_permlane32_swap_b32 v{u}, v{t+qb}\nv_add_f32 v{t+qb}, v{t+qb}, v{u}")

def pack2(A, d, a, b, swap):
    A(f"v_cvt_pk_bf16_f32 v{d}, v{a}, v{a+1}\nv_cvt_pk_bf16_f32 v{d+1}, v{a+2}, v{a+3}")
    A(f"v_cvt_pk_bf16_f32 v{d+2}, v{b}, v{b+1}\nv_cvt_pk_bf16_f32 v{d+3}, v{b+2}, v{b+3}")
    A(f"s_nop 1\n{swap} v{d}, v{d+2}\n{swap} v{d+1}, v{d+3}")

def epi_B(A):
    LZ2, LH1, LEND = A.label("z2"), A.label("h1"), A.label("eB")
    CS, TM = 112, 120
    A(f"v_lshrrev_b32 v204, 4, v{LANE}\nv_lshlrev_b32 v204, 4, v204\nv_add_u32 v204, {GB['tab']}, v204")
    for ft in range(7): A(f"ds_read_b128 {vr(160+4*ft,4)}, v204 offset:{64*ft}")
    bcast4(A, 212, 188); bcast4(A, 214, 196)
    A("s_waitcnt lgkmcnt(0)")
    for st in range(4):
        for i in range(14): A(f"v_pk_mul_f32 {vr(120+2*i,2)}, {vr(160+2*i,2)}, {vr(196+2*st,2)}")
        for i in range(14): A(f"v_pk_fma_f32 {vr(st*28+2*i,2)}, {vr(st*28+2*i,2)}, {vr(188+2*st,2)}, {vr(120+2*i,2)}")
    for i, c in enumerate((GC0, GC0, GC1, GC1)): A(f"v_mov_b32 v{CS+i}, {fhex(c)}")
    A(f"v_mov_b32 v{CS+4}, 1.0\nv_mov_b32 v{CS+5}, 1.0\ns_nop 1")
    gelu_pairs(A, list(range(0, 112, 2)), TM, CS)
    stamp(A, 3)
    A(f"s_mov_b32 s16, 4096\ns_mov_b32 s17, 8192\ns_mov_b32 s18, 12288\ns_cmp_ge_u32 s24, 2\ns_cbranch_scc1 {LZ2}")
    so = lambda k: ("0", "s16", "s17", "s18")[k >> 2]
    srd(A, 12, PT["ws"], Z1F, ZBYTES)
    A(f"""
    v_and_b32 v130, 15, v{LANE}
    v_lshrrev_b32 v131, 5, v{LANE}
    v_lshl_add_u32 v130, v131, 4, v130
    v_bfe_u32 v131, v{LANE}, 4, 1
    v_lshl_add_u32 v130, v131, 5, v130
    v_lshlrev_b32 v130, 4, v130
    s_lshl_b32 s3, s23, 6
    s_lshl_b32 s6, s22, 3
    s_add_u32 s3, s3, s6
    s_lshl_b32 s6, s21, 1
    s_add_u32 s3, s3, s6
    s_lshl_b32 s3, s3, 1
    s_add_u32 s3, s3, s24
    s_mul_i32 s3, s3, 7168
    v_add_u32 v130, s3, v130
    v_add_u32 v131, {7*2048}, v130
    """)
    k = 0
    for sp in range(2):
        for ft in range(7):
            d = 136 + 4 * (k % 4); k += 1
            pack2(A, d, ((2 * sp) * 7 + ft) * 4, ((2 * sp + 1) * 7 + ft) * 4, "v_permlane32_swap_b32")
            A(f"buffer_store_dwordx4 {vr(d,4)}, v{130+sp}, s[12:15], {so(ft)} offen offset:{(ft&3)*1024} {SC}")
    A(f"s_branch {LEND}\n{LZ2}:")
    S = 128
    for st in range(4): A(f"v_pk_add_f32 {vr(S+2*st,2)}, {vr(st*28,2)}, {vr(st*28+2,2)}")
    for i in range(2, 14):
        for st in range(4): A(f"v_pk_add_f32 {vr(S+2*st,2)}, {vr(S+2*st,2)}, {vr(st*28+2*i,2)}")
    for st in range(4): A(f"v_add_f32 v{136+st}, v{S+2*st}, v{S+2*st+1}")
    reduce4(A, 136)
    A(f"v_mul_f32 v137, {fhex(-1/112)}, v136")
    bcast4(A, 137, 140)
    for i in range(14):
        for st in range(4): A(f"v_pk_add_f32 {vr(148+2*st,2)}, {vr(st*28+2*i,2)}, {vr(140+2*st,2)}")
        for st in range(4):
            if i == 0: A(f"v_pk_mul_f32 {vr(S+2*st,2)}, {vr(148+2*st,2)}, {vr(148+2*st,2)}")
            else: A(f"v_pk_fma_f32 {vr(S+2*st,2)}, {vr(148+2*st,2)}, {vr(148+2*st,2)}, {vr(S+2*st,2)}")
    for st in range(4): A(f"v_add_f32 v{156+st}, v{S+2*st}, v{S+2*st+1}")
    reduce4(A, 156)
    if OPT.get("hs") == 10: stamp(A, 7, force=True)
    srd(A, 12, PT["ws"], STAT, 16 * 2048 * 16)
    Lp, Lpd = A.label("stp"), A.label("std")
    A(f"""
    v_mov_b32 v137, s31
    v_mov_b32 v138, v156
    v_mov_b32 v139, s31
    s_lshl_b32 s6, s22, 8
    s_lshl_b32 s7, s21, 6
    s_add_u32 s6, s6, s7
    s_lshl_b32 s6, s6, 4
    v_add_u32 v160, s6, v{L16}
    s_lshl_b32 s3, s23, 1
    s_add_u32 s3, s3, s24
    s_sub_u32 s3, s3, 2
    s_lshl_b32 s3, s3, 15
    buffer_store_dwordx4 v[136:139], v160, s[12:15], s3 offen {SC}
    s_mov_b32 s97, 0x8000
    v_and_b32 v161, 15, v{LANE}
    v_lshlrev_b32 v161, 15, v161
    s_add_u32 s6, s6, {63*16+12}
    {Lp}:
    buffer_load_dword v162, v161, s[12:15], s6 offen {SC}
    s_sub_u32 s97, s97, 1
    s_cmp_eq_u32 s97, 0
    s_cbranch_scc1 {Lpd}
    s_waitcnt vmcnt(0)
    v_cmp_ne_u32 vcc, s31, v162
    s_cbranch_vccz {Lp}f
    s_sleep 4
    s_branch {Lp}
    {Lp}f:
    """)
    G = 164
    if OPT.get("hs") == 10: stamp(A, 8, force=True)
    for ct in range(16): A(f"s_mov_b32 s3, {ct*32768}\nbuffer_load_dwordx4 {vr(G+4*ct,4)}, v160, s[12:15], s3 offen {SC}")
    A("s_waitcnt vmcnt(0)")
    A(f"v_xor_b32 v163, s31, v{G+1}")
    for ct in range(16):
        for u in (1, 3):
            if ct or u == 3: A(f"v_xor_b32 v162, s31, v{G+4*ct+u}\nv_or_b32 v163, v163, v162")
    A(f"""
    v_cmp_ne_u32 vcc, 0, v163
    s_cbranch_vccnz {Lp}
    {Lpd}:
    s_waitcnt vmcnt(0)
    """)
    if OPT.get("hs") == 10: stamp(A, 9, force=True)
    for ct in range(16): A(f"v_mov_b32 v{128+2*ct}, v{G+4*ct}\nv_mov_b32 v{129+2*ct}, v{G+4*ct+2}")
    stats_combine(A, 128, 160)
    A("v_mul_f32 v160, v160, v161\nv_sub_f32 v160, 0, v160")
    bcast4(A, 161, 128); bcast4(A, 160, 136)
    for i in range(14):
        for st in range(4): A(f"v_pk_fma_f32 {vr(st*28+2*i,2)}, {vr(st*28+2*i,2)}, {vr(128+2*st,2)}, {vr(136+2*st,2)}")
    srd(A, 12, PT["ws"], Z2N, ZBYTES)
    A(f"""
    s_lshl_b32 s3, s23, 5
    s_lshl_b32 s6, s22, 2
    s_add_u32 s3, s3, s6
    s_add_u32 s3, s3, s21
    s_lshl_b32 s3, s3, 1
    s_and_b32 s6, s24, 1
    s_add_u32 s3, s3, s6
    s_mul_i32 s3, s3, 14336
    v_lshrrev_b32 v146, 4, v{LANE}
    v_lshlrev_b32 v146, 6, v146
    v_xor_b32 v146, v146, v{L16}
    v_add_u32 v146, s3, v146
    s_lshl_b32 s6, s6, 6
    v_xor_b32 v147, s6, v146
    s_cmp_eq_u32 s24, 3
    s_cbranch_scc1 {LH1}
    """)
    for half in range(2):
        n = 0
        for st in range(4):
            for p in range(3):
                ft = 2 * p + half; k = st * 3 + p; d = 148 + 4 * (n % 4); n += 1
                pack2(A, d, (st * 7 + ft) * 4, (st * 7 + ft + 1) * 4, "v_permlane16_swap_b32")
                A(f"buffer_store_dwordx4 {vr(d,4)}, v146, s[12:15], {so(k)} offen offset:{(k&3)*1024} {SC}")
            if st & 1:
                ft = 6 if half == 0 else 0; k = 12 + st // 2; d = 148 + 4 * (n % 4); n += 1
                pack2(A, d, ((st - 1) * 7 + ft) * 4, (st * 7 + ft) * 4, "v_permlane16_swap_b32")
                A(f"buffer_store_dwordx4 {vr(d,4)}, v147, s[12:15], {so(k)} offen offset:{(k&3)*1024} {SC}")
        if half == 0: A(f"s_branch {LEND}\n{LH1}:")
    A(f"""
    {LEND}:
    s_lshl_b32 s43, s23, 12
    s_add_u32 s43, s43, {FZ}
    s_lshl_b32 s42, s36, 7
    s_add_u32 s42, s42, s43
    """)

ZS = 14336; WS_ = 16384; SPZ = BREG; SPWR = BREG + 4 * ZS
RB = dict(fr=56, za=200, wr=204, wa=208, dz=212, dw=213, tmp=224)

def sp_dma_w():
    R = RB
    g = [[f"buffer_load_dwordx4 v{R['dw']+j}, s[12:15], s27 offen offset:{j*1024} lds"] for j in range(4)]
    g[0] = ["s_add_u32 m0, s94, s30", "s_nop 0"] + g[0]
    g[3] += ["s_add_u32 s27, s27, 128"] + rot3(94, WS_, SPWR)
    return g
def sp_dma_z(slot):
    R = RB
    g = [[f"buffer_load_dwordx4 v{R['dz']}, s[8:11], s26 offen offset:{j*1024} {SC} lds"] for j in range(4)]
    g[0] = [f"s_add_u32 m0, s28, {SPZ + slot * ZS}", "s_nop 0"] + g[0]
    g[3] = ["s_mov_b64 exec, s[98:99]"] + g[3] + ["s_mov_b64 exec, -1", "s_add_u32 s26, s26, 28672"]
    return g
def sp_reads(buf, slot):
    R = RB; f = R["fr"] + 72 * buf; rd = []
    for ks in range(4):
        rd.append(f"ds_read_b128 {vr(f+4*ks,4)}, v{R['wa']+ks}")
        for p in range(3):
            for hf in range(2): rd.append(f"ds_read_b64_tr_b16 {vr(f+16+12*ks+4*p+2*hf,2)}, v{R['za']+hf} offset:{slot*ZS+(3*ks+p)*1024}")
        if ks & 1:
            for hf in range(2): rd.append(f"ds_read_b64_tr_b16 {vr(f+64+4*(ks>>1)+2*hf,2)}, v{R['za']+2+hf} offset:{slot*ZS+(12+(ks>>1))*1024}")
    return rd
def sp_mfma(buf):
    f = RB["fr"] + 72 * buf
    big = lambda ks, p: f"v_mfma_f32_32x32x16_bf16 {vr(16*p,16)}, {vr(f+16+12*ks+4*p,4)}, {vr(f+4*ks,4)}, {vr(16*p,16)}"
    sm = lambda u, a: f"v_mfma_f32_16x16x32_bf16 {vr(48+4*a,4)}, {vr(f+64+4*u,4)}, {vr(f+8*u+4*a,4)}, {vr(48+4*a,4)}"
    sw = lambda u: [f"v_permlane16_swap_b32 v{f+8*u+i}, v{f+8*u+4+i}" for i in range(4)]
    return [[big(0, 0)], [big(0, 1)], [big(0, 2)], [big(1, 0)], [big(1, 1)], [big(1, 2)] + sw(0), [big(2, 0)], [big(2, 1)], [sm(0, 0)], [sm(0, 1)],
            [big(2, 2)], [big(3, 0)], [big(3, 1)], [big(3, 2)] + sw(1) + ["s_nop 1"], [sm(1, 0)], [sm(1, 1)]]
def sp_addr():
    return rot3(95, WS_, SPWR) + [f"v_add_u32 v{RB['wa']+i}, s95, v{RB['wr']+i}" for i in range(4)]

def sp_setup(A):
    R = RB; t = R["tmp"]; za = R["za"]
    srd(A, 8, PT["ws"], Z2N, ZBYTES); srd(A, 12, PT["wsp"], 0, 2048 * 4096)
    A(f"""
    s_and_b32 s39, s36, 1
    s_lshr_b32 s40, s36, 1
    s_lshl_b32 s40, s40, 2
    s_add_u32 s40, s40, s21
    s_lshl_b32 s28, s21, 12
    s_cmp_eq_u32 s21, 3
    s_cmov_b32 s28, {11*1024}
    s_cmp_lt_u32 s21, 2
    s_cselect_b32 s98, -1, 0
    s_mov_b32 s99, s98
    s_mul_i32 s3, s23, {32*28672}
    s_mul_i32 s6, s39, {ZS}
    s_add_u32 s3, s3, s6
    s_add_u32 s3, s3, s28
    v_add_u32 v{R['dz']}, s3, v{L16}
    s_lshl_b32 s3, s40, 5
    v_lshrrev_b32 v{t}, 3, v{LANE}
    v_add_u32 v{t}, s3, v{t}
    v_lshlrev_b32 v{t}, 12, v{t}
    v_lshrrev_b32 v{t+1}, 4, v{LANE}
    v_and_b32 v{t+2}, 7, v{LANE}
    v_xor_b32 v{t+1}, v{t+1}, v{t+2}
    v_lshl_add_u32 v{R['dw']}, v{t+1}, 4, v{t}
    v_xor_b32 v{t+1}, 4, v{t+1}
    v_lshl_add_u32 v{R['dw']+1}, v{t+1}, 4, v{t}
    v_add_u32 v{R['dw']+2}, {2*(8*4096-1024)}, v{R['dw']}
    v_add_u32 v{R['dw']+3}, {3*(8*4096-1024)}, v{R['dw']+1}
    v_add_u32 v{R['dw']+1}, {8*4096-1024}, v{R['dw']+1}
    s_lshl_b32 s30, s21, 12
    s_mov_b32 s26, 0
    s_mov_b32 s27, 0
    s_mov_b32 s94, {SPWR}
    v_lshrrev_b32 v{t}, 5, v{LANE}
    v_bfe_u32 v{t+1}, v{LANE}, 2, 2
    v_lshl_add_u32 v{t+1}, v{t}, 3, v{t+1}
    v_bfe_u32 v{t+2}, v{LANE}, 4, 1
    v_bfe_u32 v{t+3}, v{LANE}, 1, 1
    v_lshl_add_u32 v{t+4}, v{t+3}, 1, v{t+2}
    v_lshlrev_b32 v{t+5}, 2, v{t+4}
    v_xor_b32 v{t+5}, v{t+5}, v{t+1}
    v_lshlrev_b32 v{t+5}, 4, v{t+5}
    v_and_b32 v{t+6}, 1, v{LANE}
    v_lshl_add_u32 v{t+5}, v{t+6}, 3, v{t+5}
    v_lshl_add_u32 v{za}, v{t+4}, 8, v{t+5}
    v_xor_b32 v{za+1}, 64, v{za}
    s_lshl_b32 s3, s39, 6
    v_xor_b32 v{za+2}, s3, v{za}
    v_xor_b32 v{za+3}, 64, v{za+2}
    v_and_b32 v{t+1}, 31, v{LANE}
    v_bfe_u32 v{t+2}, v{LANE}, 1, 3
    v_xor_b32 v{t}, v{t}, v{t+2}
    v_lshlrev_b32 v{t+1}, 7, v{t+1}
    v_lshl_add_u32 v{t+1}, v{t}, 4, v{t+1}
    v_add_u32 v{R['wr']}, s30, v{t+1}
    v_xor_b32 v{R['wr']+1}, 32, v{R['wr']}
    v_xor_b32 v{R['wr']+2}, 64, v{R['wr']}
    v_xor_b32 v{R['wr']+3}, 96, v{R['wr']}
    s_mov_b32 s95, {SPWR + 2*WS_}
    """)
    for i in range(4): A(f"v_add_u32 v{za+i}, {SPZ}, v{za+i}")
    A.extend(sp_addr())
    for i in range(56): A(f"v_mov_b32 v{i}, 0")

def mix(rd, dm, every):
    fill = []; dm = list(dm)
    for i, r_ in enumerate(rd):
        fill.append(r_)
        if i % every == every - 1 and dm: fill.append(dm.pop(0))
    return fill + dm
def weave(main, fill):
    out = []; k = 0
    for i, g in enumerate(main):
        out += g
        tgt = ((i + 1) * len(fill) + len(main) - 1) // len(main)
        while k < tgt:
            out += [fill[k]] if isinstance(fill[k], str) else fill[k]; k += 1
    return out

def sp_wpre(A):
    for c in range(3):
        for g in sp_dma_w(): A.extend(g)
def sp_main(A):
    for c in range(4):
        for g in sp_dma_z(c): A.extend(g)
    A("s_waitcnt vmcnt(12)")
    gsync(A)
    A.extend(sp_reads(0, 0))
    A("s_waitcnt vmcnt(8)")
    A.extend(arrive()); A.extend(poll_issue())
    stamp(A, 6)
    NR = OPT.get("spr", 10)
    def stage(t):
        m = sp_mfma(t & 1)
        if t == 31: return ["s_waitcnt lgkmcnt(0)"] + sum(m, [])
        cw = lambda u: 4 if 0 <= u and u + 3 < 32 else 0
        cz = lambda u: 4 if 0 <= u and u + 4 < 32 else 0
        dw = sp_dma_w() if cw(t) else []; dz = sp_dma_z(t & 3) if cz(t) else []
        o = []
        if t >= 2: o.append(f"s_waitcnt vmcnt({cz(t-2) + cw(t-1) + cz(t-1)})")
        o += poll_check(A) + m[0] + sp_addr()
        rds = sp_reads((t + 1) & 1, (t + 1) & 3)
        if OPT.get("x_half"): rds = [r for r in rds if "b128" in r] + [r.replace("b64_tr_b16", "b128x") for r in rds if "tr_b16" in r][::2]; rds = [re.sub(r"ds_read_b128x v\[(\d+):(\d+)\]", lambda m: f"ds_read_b128 v[{m.group(1)}:{int(m.group(1))+3}]", r) for r in rds]
        if OPT.get("x_nord"): rds = []
        if OPT.get("x_nodma"): dw = dz = []
        o += weave(m[1:NR], mix(rds, dw, 7))
        if t < 30:
            vm = (4 if t == 0 else cw(t-1) + cz(t-1) if t > 1 else 8) + cw(t)
            o += [f"s_waitcnt vmcnt({vm})"] + arrive()
        o += weave(m[NR:15], dz)
        if t < 30: o += poll_issue()
        return o + m[15] + itr(3)
    itr0(A, 3)
    for t in range(4): A.extend(stage(t))
    L = A.label("sp")
    A(f"s_mov_b32 s29, 6\n{L}:")
    for t in range(4, 8): A.extend(stage(t))
    A(f"s_sub_u32 s29, s29, 1\ns_cmp_lg_u32 s29, 0\ns_cbranch_scc1 {L}")
    A.extend(stage(28))
    sp_epi_loads(A)
    for t in range(29, 32): A.extend(stage_tail(stage, t))

def stage_tail(stage, t):
    import re
    return [re.sub(r"vmcnt\((\d+)\)", lambda m: f"vmcnt({int(m.group(1)) + 9})", x) for x in stage(t)]

ZB = 212
def sp_epi_loads(A):
    t = RB["tmp"]
    srd(A, 16, PT["ws"], Z1F, ZBYTES)
    A(f"""
    s_lshl_b32 s3, s23, 6
    s_add_u32 s3, s3, s40
    s_mul_i32 s3, s3, {7*2048}
    s_lshl_b32 s6, s39, 13
    s_add_u32 s6, s6, s3
    s_add_u32 s7, s6, 4096
    s_lshl_b32 s41, s39, 10
    s_add_u32 s41, s41, 6144
    s_add_u32 s3, s3, s41
    v_and_b32 v251, 15, v{LANE}
    v_lshrrev_b32 v252, 5, v{LANE}
    v_lshl_add_u32 v251, v252, 4, v251
    v_bfe_u32 v252, v{LANE}, 4, 1
    v_lshl_add_u32 v252, v252, 5, v251
    v_lshlrev_b32 v252, 4, v252
    """)
    for i in range(6): A(f"buffer_load_dwordx4 {vr(ZB+4*i,4)}, v{L16}, s[16:19], s{6+(i>>2)} offen offset:{(i&3)*1024} {SC}")
    A(f"buffer_load_dwordx4 {vr(ZB+24,4)}, v252, s[16:19], s3 offen {SC}")
    srd(A, 16, PT["bsp"], 0, 4096)
    A(f"""
    s_lshl_b32 s3, s40, 6
    v_lshlrev_b32 v251, 1, v251
    v_and_b32 v254, 31, v{LANE}
    v_lshlrev_b32 v254, 1, v254
    buffer_load_ushort v251, v251, s[16:19], s3 offen
    buffer_load_ushort v254, v254, s[16:19], s3 offen
    """)

def sp_epi(A):
    D = 56; P = 80
    srd(A, 16, PT["ws"], UF, ZBYTES)
    A(f"""
    s_mul_i32 s3, s40, 56
    s_mul_i32 s6, s23, 7
    s_add_u32 s3, s3, s6
    s_lshl_b32 s3, s3, 11
    s_lshl_b32 s6, s39, 13
    s_add_u32 s6, s6, s3
    s_add_u32 s7, s6, 4096
    s_add_u32 s3, s3, s41
    s_waitcnt vmcnt(0)
    v_lshlrev_b32 v254, 16, v254
    v_lshlrev_b32 v200, 16, v251
    v_mov_b32 v255, v254
    v_mov_b32 v201, v200
    """)
    for p in range(3):
        a = 16 * p
        for q in range(8): A(f"v_lshlrev_b32 v{D+2*q}, 16, v{ZB+8*p+q}\nv_and_b32 v{D+2*q+1}, 0xffff0000, v{ZB+8*p+q}")
        for q in range(8): A(f"v_pk_add_f32 {vr(a+2*q,2)}, {vr(a+2*q,2)}, v[254:255]")
        for q in range(8): A(f"v_pk_mul_f32 {vr(a+2*q,2)}, {vr(a+2*q,2)}, {vr(D+2*q,2)}")
        for q in range(8): A(f"v_cvt_pk_bf16_f32 v{P+8*p+q}, v{a+2*q}, v{a+2*q+1}")
        for f in range(2): A(f"buffer_store_dwordx4 {vr(P+8*p+4*f,4)}, v{L16}, s[16:19], s{6+((2*p+f)>>2)} offen offset:{((2*p+f)&3)*1024} {SC}")
    for i in range(4): A(f"v_permlane32_swap_b32 v{48+i}, v{52+i}")
    for q in range(4): A(f"v_lshlrev_b32 v{D+2*q}, 16, v{ZB+24+q}\nv_and_b32 v{D+2*q+1}, 0xffff0000, v{ZB+24+q}")
    for q in range(4): A(f"v_pk_add_f32 {vr(48+2*q,2)}, {vr(48+2*q,2)}, v[200:201]")
    for q in range(4): A(f"v_pk_mul_f32 {vr(48+2*q,2)}, {vr(48+2*q,2)}, {vr(D+2*q,2)}")
    for q in range(4): A(f"v_cvt_pk_bf16_f32 v{P+24+q}, v{48+2*q}, v{48+2*q+1}")
    A(f"""
    buffer_store_dwordx4 {vr(P+24,4)}, v252, s[16:19], s3 offen {SC}
    s_lshr_b32 s42, s36, 1
    s_lshl_b32 s42, s42, 3
    s_add_u32 s42, s42, s23
    s_lshl_b32 s42, s42, 1
    s_add_u32 s42, s42, s39
    s_lshl_b32 s42, s42, 7
    s_add_u32 s42, s42, {FU}
    s_lshl_b32 s43, s100, 11
    s_add_u32 s43, s43, {FU}
    """)

FWS = 8192; FNS = 6; DA = 3; DW = 5
RF = dict(wf=32, af=96, wa=160, wb=162, da=164, dw=165, tmp=168)
def f_loads(base, t4, w=True, a=True):
    R = RF; g = []
    if w:
        g.append(["s_add_u32 m0, s94, s30", "s_nop 0", f"buffer_load_dwordx4 v{R['dw']}, s[12:15], s27 offen lds"])
        g.append([f"buffer_load_dwordx4 v{R['dw']+1}, s[12:15], s27 offen offset:1024 lds", "s_add_u32 s27, s27, 131072"] + rot3(94, FWS, base, FNS))
    if a:
        f = R["af"] + 16 * ((t4 + DA) % 4)
        for ks in range(4):
            g.append([f"buffer_load_dwordx4 {vr(f+4*ks,4)}, v{R['da']}, s[8:11], s26 offen offset:{ks*1024} {SC}"] + (["s_add_u32 s26, s26, 4096"] if ks == 3 else []))
    return g
def f_reads(buf):
    R = RF; f = R["wf"] + 32 * buf
    return [f"ds_read_b64_tr_b16 {vr(f+8*ks+4*nb+2*hf,2)}, v{R['wb']+nb} offset:{(16*ks+8*hf)*128}" for ks in range(4) for nb in range(2) for hf in range(2)]
def f_mfma(t4):
    R = RF; f = R["wf"] + 32 * (t4 & 1); af = R["af"] + 16 * t4
    return [f"v_mfma_f32_32x32x16_bf16 {vr(16*nb,16)}, {vr(f+8*ks+4*nb,4)}, {vr(af+4*ks,4)}, {vr(16*nb,16)}" for ks in range(4) for nb in range(2)]
def f_addr(base):
    R = RF
    return rot3(95, FWS, base, FNS) + [f"v_add_u32 v{R['wb']}, s95, v{R['wa']}", f"v_add_u32 v{R['wb']+1}, s95, v{R['wa']+1}"]

def f_setup(A, role):
    R = RF; t = R["tmp"]; base = FREG[role]
    nkb = 32 if role == "A" else 56
    srd(A, 8, PT["ws"], OF if role == "A" else UF, 64 * nkb * 2048)
    srd(A, 12, PT["wo" if role == "A" else "wout"], 0, nkb * 32 * 2048)
    A(f"""
    s_lshl_b32 s3, s100, 2
    s_add_u32 s3, s3, s21
    s_mul_i32 s3, s3, {nkb*2048}
    v_add_u32 v{R['da']}, s3, v{L16}
    v_lshrrev_b32 v{t+1}, 3, v{LANE}
    s_lshl_b32 s3, s21, 4
    v_add_u32 v{t+1}, s3, v{t+1}
    v_lshlrev_b32 v{t+1}, 11, v{t+1}
    v_bfe_u32 v{t+2}, v{LANE}, 4, 1
    v_lshlrev_b32 v{t+2}, 2, v{t+2}
    v_and_b32 v{t+3}, 7, v{LANE}
    v_xor_b32 v{t+2}, v{t+2}, v{t+3}
    v_lshl_add_u32 v{t+1}, v{t+2}, 4, v{t+1}
    s_lshl_b32 s3, s101, 7
    v_add_u32 v{R['dw']}, s3, v{t+1}
    v_add_u32 v{R['dw']+1}, {8*2048-1024}, v{R['dw']}
    s_lshl_b32 s30, s21, 11
    s_mov_b32 s26, 0
    s_mov_b32 s27, 0
    s_mov_b32 s94, {base}
    v_lshrrev_b32 v{t+1}, 5, v{LANE}
    v_bfe_u32 v{t+2}, v{LANE}, 2, 2
    v_lshl_add_u32 v{t+1}, v{t+1}, 2, v{t+2}
    v_lshlrev_b32 v{t+1}, 7, v{t+1}
    v_lshrrev_b32 v{t+2}, 1, v{t+2}
    v_lshl_add_u32 v{t+1}, v{t+2}, 6, v{t+1}
    v_bfe_u32 v{t+2}, v{LANE}, 4, 1
    v_lshl_add_u32 v{t+1}, v{t+2}, 5, v{t+1}
    v_and_b32 v{t+2}, 3, v{LANE}
    v_lshl_add_u32 v{R['wa']}, v{t+2}, 3, v{t+1}
    v_xor_b32 v{R['wa']+1}, 64, v{R['wa']}
    s_mov_b32 s95, {base + (FNS-1)*FWS}
    """)
    A.extend(f_addr(base))
    for i in range(32): A(f"v_mov_b32 v{i}, 0")

def f_wpre(A, role):
    t = RF["tmp"]; X = 176
    srd(A, 16, PT["x"], 0, 4 * MB)
    A(f"""
    s_lshl_b32 s3, s100, 2
    s_add_u32 s3, s3, s21
    s_lshl_b32 s3, s3, 5
    v_and_b32 v{t+5}, 31, v{LANE}
    v_add_u32 v{t+5}, s3, v{t+5}
    v_lshlrev_b32 v{t+5}, 11, v{t+5}
    v_lshrrev_b32 v{t+2}, 5, v{LANE}
    v_lshl_add_u32 v{t+5}, v{t+2}, 4, v{t+5}
    s_lshl_b32 s3, s101, 7
    s_add_u32 s3, s3, {0 if role == 'A' else 64}
    v_add_u32 v{t+5}, s3, v{t+5}
    buffer_load_dwordx4 {vr(X,4)}, v{t+5}, s[16:19], 0 offen
    buffer_load_dwordx4 {vr(X+4,4)}, v{t+5}, s[16:19], 0 offen offset:32
    """)
    for c in range(DW):
        for g in f_loads(FREG[role], 0, True, False): A.extend(g)

def f_main(A, role):
    base = FREG[role]; nst = 16 if role == "A" else 28
    for c in range(DA):
        for g in f_loads(base, c - DA, False, True): A.extend(g)
    A(f"s_waitcnt vmcnt({4*DA})")
    gsync(A)
    A.extend(f_reads(0))
    A.extend(arrive()); A.extend(poll_issue())
    stamp(A, 8)
    def stage(t):
        m = f_mfma(t % 4)
        def cnt(u): return (2 if u + DW < nst else 0) + (4 if u + DA < nst else 0)
        vm = sum(cnt(u) if u >= 0 else 4 for u in range(t - DA + 1, t))
        if t == nst - 1: return [f"s_waitcnt vmcnt(0) lgkmcnt(0)"] + m
        o = [f"s_waitcnt vmcnt({vm})"] + poll_check(A) + arrive() + [m[0]] + f_addr(base)
        o += interleave(m[1:6], mix(f_reads((t + 1) & 1), f_loads(base, t % 4, t + DW < nst, t + DA < nst), 3))
        o += [m[6]] + poll_issue() + [m[7]]
        return o
    for t in range(4): A.extend(stage(t))
    L = A.label("fin" + role)
    nl = (nst - 12) // 4
    A(f"s_mov_b32 s29, {nl}\n{L}:")
    for t in range(4, 8): A.extend(stage(t))
    A(f"s_sub_u32 s29, s29, 1\ns_cmp_lg_u32 s29, 0\ns_cbranch_scc1 {L}")
    for t in range(nst - 8, nst): A.extend(stage(t))

def f_epi(A, role):
    t = RF["tmp"]; keep = 0 if role == "A" else 16; give = 16 - keep
    X = 176; Y = 32
    srd(A, 12, PT["out"], 0, 4 * MB)
    A(f"""
    s_lshl_b32 s3, s21, 12
    v_add_u32 v{t+3}, s3, v{L16}
    v_add_u32 v{t+2}, {XCH[role]}, v{t+3}
    v_add_u32 v{t+3}, {XCH["B" if role == "A" else "A"]}, v{t+3}
    """)
    A("s_nop 3")
    for q in range(4): A(f"ds_write_b128 v{t+2}, {vr(give+4*q,4)} offset:{q*1024}")
    A("s_waitcnt lgkmcnt(0)\ns_barrier")
    for q in range(4): A(f"ds_read_b128 {vr(Y+4*q,4)}, v{t+3} offset:{q*1024}")
    A("s_waitcnt vmcnt(0)")
    for p in range(2): A(f"v_permlane32_swap_b32 v{X+4*p}, v{X+4*p+2}\nv_permlane32_swap_b32 v{X+4*p+1}, v{X+4*p+3}")
    A("s_waitcnt lgkmcnt(0)")
    S, T = (keep, Y) if role == "A" else (Y, keep)
    U = 64; E = 80
    def rnd(b):
        for i in range(8): A(f"v_cvt_pk_bf16_f32 v{U+i}, v{b+2*i}, v{b+2*i+1}")
        for i in range(8): A(f"v_lshlrev_b32 v{b+2*i}, 16, v{U+i}\nv_and_b32 v{b+2*i+1}, 0xffff0000, v{U+i}")
    rnd(T)
    for i in range(16): A(f"v_mul_f32 v{E+i}, {fhex(-LOG2E)}, v{T+i}")
    for i in range(16): A(f"v_exp_f32 v{E+i}, v{E+i}")
    rnd(S)
    for i in range(16): A(f"v_add_f32 v{E+i}, 1.0, v{E+i}")
    for i in range(16): A(f"v_rcp_f32 v{E+i}, v{E+i}")
    for i in range(16): A(f"v_mul_f32 v{T+i}, v{T+i}, v{E+i}")
    rnd(T)
    for i in range(16): A(f"v_mul_f32 v{S+i}, v{S+i}, v{T+i}")
    rnd(S)
    for i in range(8): A(f"v_lshlrev_b32 v{E+2*i}, 16, v{X+i}\nv_and_b32 v{E+2*i+1}, 0xffff0000, v{X+i}")
    for i in range(16): A(f"v_add_f32 v{S+i}, v{S+i}, v{E+i}")
    for i in range(8): A(f"v_cvt_pk_bf16_f32 v{X+i}, v{S+2*i}, v{S+2*i+1}")
    A("s_nop 1")
    for p in range(2): A(f"v_permlane32_swap_b32 v{X+4*p}, v{X+4*p+2}\nv_permlane32_swap_b32 v{X+4*p+1}, v{X+4*p+3}")
    A(f"buffer_store_dwordx4 {vr(X,4)}, v{t+5}, s[12:15], 0 offen {FL('of')}\nbuffer_store_dwordx4 {vr(X+4,4)}, v{t+5}, s[12:15], 0 offen offset:32 {FL('of')}")

def code_touch(A):
    A(f"""
    s_getpc_b64 s[6:7]
    L_pc:
    s_sub_u32 s12, s6, L_pc-{NAME}
    s_subb_u32 s13, s7, 0
    s_mov_b32 s14, L_codeend-{NAME}
    s_mov_b32 s15, 0x00020000
    v_lshlrev_b32 v212, 7, v{LANE}
    s_lshl_b32 s3, s21, 14
    buffer_load_dword v213, v212, s[12:15], s3 offen
    s_add_u32 s3, s3, 8192
    buffer_load_dword v213, v212, s[12:15], s3 offen
    """)

def tlb_touch(A):
    L = A.label("tl")
    A(f"s_cmp_lg_u32 s21, 3\ns_cbranch_scc1 {L}")
    srd(A, 12, PT["ws"], 0, 58 * MB)
    A(f"v_lshlrev_b32 v212, 20, v{LANE}\nbuffer_load_dword v213, v212, s[12:15], 0 offen")
    srd(A, 12, PT["out"], 0, 4 * MB)
    A(f"buffer_load_dword v213, v212, s[12:15], 0 offen\n{L}:")

def mall_setup(A):
    A(f"""
    s_cmp_lt_u32 s21, 2
    s_cselect_b32 s16, s{PT['wsp']}, s{PT['wout']}
    s_cselect_b32 s17, s{PT['wsp']+1}, s{PT['wout']+1}
    s_mov_b32 s18, {112*128}
    s_cmov_b32 s18, {128*128}
    s_cmp_eq_u32 s21, 3
    s_cselect_b32 s16, s{PT['wo']}, s16
    s_cselect_b32 s17, s{PT['wo']+1}, s17
    s_cmov_b32 s18, {64*128}
    s_cmp_eq_u32 s21, 1
    s_cselect_b32 s3, 256, 0
    s_add_u32 s3, s3, s2
    s_mul_i32 s3, s3, s18
    s_add_u32 s16, s16, s3
    s_addc_u32 s17, s17, 0
    s_mov_b32 s19, 0x00020000
    v_lshlrev_b32 v210, 7, v{LANE}
    s_mov_b32 s30, 0
    s_mul_i32 s3, s36, {magic_div(OPT.get('mp', 5), 31)[0]}
    s_lshr_b32 s3, s3, {magic_div(OPT.get('mp', 5), 31)[1]}
    s_mul_i32 s3, s3, {OPT.get('mp', 5)}
    s_sub_u32 s43, s36, s3
    s_add_u32 s43, s43, {OPT.get('m0', 1)}
    """)

def mall_warm(A):
    L = A.label("mw"); t = RB["tmp"]
    A(f"s_cmp_ge_u32 s24, 2\ns_cbranch_scc1 {L}\ns_lshl_b32 s3, s2, 2\ns_add_u32 s3, s3, s21\nv_lshlrev_b32 v{t}, 7, v{LANE}")
    A(f"s_lshl_b32 s6, s3, 14\nbuffer_load_dword v{t+1}, v{t}, s[12:15], s6 offen\ns_add_u32 s6, s6, 8192\nbuffer_load_dword v{t+1}, v{t}, s[12:15], s6 offen")
    srd(A, 16, PT["wout"], 0, 1792 * 2048)
    A(f"v_min_u32 v{t+2}, {55*128}, v{t}\ns_mul_i32 s6, s3, {56*128}\nbuffer_load_dword v{t+1}, v{t+2}, s[16:19], s6 offen")
    srd(A, 16, PT["wo"], 0, 1024 * 2048)
    A(f"v_min_u32 v{t+2}, {31*128}, v{t}\ns_lshl_b32 s6, s3, 12\nbuffer_load_dword v{t+1}, v{t+2}, s[16:19], s6 offen\n{L}:")

def z_touch(A):
    t = RB["tmp"]
    A(f"""
    v_min_u32 v{t}, 55, v{LANE}
    v_lshlrev_b32 v{t}, 7, v{t}
    s_lshl_b32 s3, s23, 5
    s_add_u32 s3, s3, s36
    s_mul_i32 s3, s3, 28672
    s_add_u32 s3, s3, s28
    buffer_load_dword v{t+1}, v{t}, s[8:11], s3 offen {SC}
    """)
    return 1

def f_touch_w(A, role):
    t = RF["tmp"]; n = 64 if role == "A" else 56; rows = 256 if role == "A" else 448
    A(f"""
    v_min_u32 v{t}, {n-1}, v{LANE}
    v_lshlrev_b32 v{t}, 11, v{t}
    s_and_b32 s3, s100, 3
    s_mul_i32 s3, s3, {rows}
    s_mul_i32 s6, s21, {rows//4}
    s_add_u32 s3, s3, s6
    s_lshl_b32 s3, s3, 11
    s_lshl_b32 s6, s101, 7
    s_add_u32 s3, s3, s6
    buffer_load_dword v{t+1}, v{t}, s[12:15], s3 offen
    """)
    if role == "B": A(f"s_add_u32 s3, s3, {56*2048}\nbuffer_load_dword v{t+1}, v{t}, s[12:15], s3 offen")

def f_touch_a(A, role):
    t = RF["tmp"]; n = 64 if role == "A" else 56; blk = 8192 if role == "A" else 14336
    A(f"""
    v_min_u32 v{t}, {n-1}, v{LANE}
    v_lshlrev_b32 v{t}, 7, v{t}
    s_lshl_b32 s3, s100, 2
    s_add_u32 s3, s3, s21
    s_lshl_b32 s3, s3, 3
    s_and_b32 s6, s101, 7
    s_add_u32 s3, s3, s6
    s_mul_i32 s3, s3, {blk}
    buffer_load_dword v{t+1}, v{t}, s[8:11], s3 offen {SC}
    """)
    if role == "B": A(f"s_add_u32 s3, s3, 7168\nbuffer_load_dword v{t+1}, v{t}, s[8:11], s3 offen {SC}")
    return 1 if role == "A" else 2

def prio(A, key):
    if key in OPT: A(f"s_setprio {OPT[key]}")

P_SP_DONE = 2 + 1 + 1 + 30 + 1

def gen(A):
    kstart(A, NAME)
    start(A)
    stamp(A, 0)
    if common.PROFILE: A("s_memtime s[86:87]\ns_waitcnt lgkmcnt(0)\ns_mov_b32 s84, s86")
    A("s_cmp_ge_u32 s20, 4\ns_cbranch_scc1 L_roleB")
    ln_loads(A)
    g1_setup_A(A)
    for par in (1, 0, 1, 0, 1):
        for g in g1_dma("A", par, GA, pro=True): A.extend(g)
    ln_stats(A, 20)
    g1_main(A, "A", GA, 96, 1)
    stamp(A, 2)
    prio(A, "pa1")
    epi_A(A)
    stamp(A, 3)
    handoff(A, 42, 43, 8, attn_setup, tag='k')
    stamp(A, 4)
    prio(A, "pa1b")
    if not OPT.get("x_noattn"): attn_main(A)
    stamp(A, 6)
    attn_finish(A)
    prio(A, "pa2")
    handoff(A, 42, 43, 32, lambda A: f_setup(A, "A"), tag='o', after=lambda A: f_wpre(A, "A"), presync=True)
    stamp(A, 7)
    f_main(A, "A")
    stamp(A, 9)
    f_epi(A, "A")
    fin_prof(A)
    A("s_endpgm\nL_roleB:")
    if OPT.get("ct", 1): code_touch(A)
    if OPT.get("tlb"): tlb_touch(A)
    g1_setup_B(A)
    for s in range(4):
        for g in g1_dma("B", 0, GB, pro=True): A.extend(g)
    n = w_touch(A)
    g1_setup_B2(A)
    mall_setup(A)
    g1_main(A, "B", GB, 112, n)
    stamp(A, 2)
    prio(A, "pb1")
    epi_B(A)
    stamp(A, 4)
    handoff(A, 42, 43, 32, sp_setup, tag='z', after=sp_wpre)
    stamp(A, 5)
    prio(A, "pb2")
    sp_main(A)
    stamp(A, 7)
    prio(A, "pb2e")
    sp_epi(A)
    handoff(A, 42, 43, 16, lambda A: f_setup(A, "B"), tag='u', after=lambda A: f_wpre(A, "B"), presync=True)
    prio(A, "pb3")
    f_main(A, "B")
    stamp(A, 9)
    f_epi(A, "B")
    fin_prof(A)
    A("L_end:\ns_endpgm")
    A.extend(COLD)
    A("L_codeend:")
    A.raw(kd(NAME, 256, 256, 102))

def fin_prof(A):
    if not common.PROFILE: return
    A("s_mov_b32 s43, s84\ns_waitcnt vmcnt(0)")
    stamp(A, 10)
    A("s_mov_b32 s86, s43\ns_memtime s[42:43]\ns_waitcnt lgkmcnt(0)")
    srd(A, 88, 4, PROF, 256 * 8 * 64)
    A("s_lshl_b32 s92, s2, 3\ns_add_u32 s92, s92, s20\ns_lshl_b32 s92, s92, 6\nv_mov_b32 v251, s92")
    for k in range(12): A(f"v_mov_b32 v252, s{64+2*k}\nbuffer_store_dword v252, v251, s[88:91], 0 offen offset:{4*k}")
    A("v_mov_b32 v252, s42\nbuffer_store_dword v252, v251, s[88:91], 0 offen offset:48")
    if OPT.get("itr"):
        srd(A, 88, 4, PROF + 131072, 256 * 8 * 256)
        A(f"s_lshl_b32 s92, s92, 2\nv_lshlrev_b32 v251, 2, v{LANE}\nbuffer_store_dword v253, v251, s[88:91], s92 offen")

if __name__ == "__main__":
    out = sys.argv[1]
    common.PROFILE = "--prof" in sys.argv
    for a in sys.argv[2:]:
        if "=" in a:
            k, v = a.split("="); OPT[k] = int(v)
    A = Asm()
    A.raw("; out = x + MHA(LN x) * silu(gMLP(LN x)) as one persistent dataflow kernel (one 8-wave workgroup per CU); generated by gen/fused.py\n"
          f"; @launch grid=(256,1,1) block=(512,1,1) lds={LDS}\n" '.amdgcn_target "amdgcn-amd-amdhsa--gfx950"\n.text')
    gen(A)
    t = A.text()
    errs = check_hazards(t)
    for e in errs[:30]: print("HAZARD", e, file=sys.stderr)
    open(out, "w").write(t)
```

```python
import sys, re
from common import *
import common
from k_g1 import gelu_pairs, reduce4, bcast4, stats_combine, QSCALE, GC0, GC1

OPT = {"pa1": 3, "pa1b": 1, "pb1": 2, "pb2": 2, "pb2e": 2, "pb3": 0, "pa2": 3, "mw": 0, "pgB": 1, "me": 1, "mz": 0}
_stamp = stamp
def stamp(A, k, real=False, force=False):
    if OPT.get("hs") and k in (7, 8, 9) and not force: return
    if OPT.get("span") and k not in (0, 10): return
    _stamp(A, k, not OPT.get('cyc'))
NAME = "recurrent_scan__mha_block__mixer_gmlp__prompt_kernel"
XSLOT = 32768; WSLOT = 13312; WRING = 3 * XSLOT; WBO = 6144
AREG = 0; KV_SLOT = 16384
BREG = 49152; SP_SLOT = 36864; SPW = 28672
FREG = {"A": 0, "B": 49152}; SPX = 49152; XCH = {"A": 32768, "B": 114688}
FLG = BREG + 3 * SP_SLOT
NONCE = FLG + 2048
LDS = FLG + 2048 + 64
LANE, VF_, VG, VP, VT, L16 = 250, 246, 247, 248, 249, 245
PT = dict(x=48, wqkv=50, wo=52, win=56, wsp=58, bsp=60, wout=62, out=44, dbg=46, ws=4)
SC = "sc1"
LOG2E = 1.4426950408889634
COLD = []
def FL(k): return ("", "sc1 ", "nt ", "sc0 ")[OPT.get(k, 0)]

def align(A, key):
    v = OPT.get("al" + key, OPT.get("al"))
    if v is None: return
    A.raw(".p2align 6, 0xbf800000" if False else ".p2align 6")
    for i in range(v): A("s_nop 0")
def itr0(A, key):
    if OPT.get("itr") == key or (key == 3 and OPT.get("itr") == 2): A("s_memtime s[92:93]\ns_waitcnt lgkmcnt(0)\ns_mov_b32 s90, 0\nv_writelane_b32 v244, s92, 0")
def itr(key):
    if OPT.get("itr") == key or (key == 3 and OPT.get("itr") == 2):
        return ["s_memtime s[92:93]", "s_waitcnt lgkmcnt(0)", "s_add_u32 s90, s90, 1", "s_mov_b32 s91, m0", "s_mov_b32 m0, s90", "v_writelane_b32 v244, s92, m0", "s_mov_b32 m0, s91"]
    return []
def arrive(): return ["s_add_u32 s88, s88, 1", f"ds_add_u32 v{VF_}, v{VP}"]
def poll_issue(): return [f"ds_read_b32 v{VT}, v{VG}"]
def poll_check(A, slp=0, G=None, P=None):
    G = VG if G is None else G; P = "s88" if P is None else P
    L, Lok = A.label("spin"), A.label("ok")
    cmpi = f"v_cmp_gt_u32 vcc, {P}, v{VT}"
    COLD.extend([f"{L}:", "s_mov_b32 s97, 0x40000", f"{L}b:"] + ([f"s_sleep {slp}"] if slp else []) +
                [f"ds_read_b32 v{VT}, v{G}", "s_sub_u32 s97, s97, 1", "s_cmp_eq_u32 s97, 0", f"s_cbranch_scc1 {Lok}",
                 "s_waitcnt lgkmcnt(0)", cmpi, f"s_cbranch_vccnz {L}b", f"s_branch {Lok}"])
    return ["s_waitcnt lgkmcnt(0)", cmpi, f"s_cbranch_vccnz {L}", f"{Lok}:"]
def poll_split(A):
    c = poll_check(A)
    return c[:2], c[2:]
def gsync(A, slp=0):
    A.extend(arrive()); A.extend(poll_issue()); A.extend(poll_check(A, slp))
def rot3(s, size, base=0, n=3):
    return [f"s_add_u32 s{s}, s{s}, {size}", f"s_cmp_eq_u32 s{s}, {base + n * size}", f"s_cmov_b32 s{s}, {base}"]

def flag_wait(A, soff, lanes, tag):
    L, Ld = A.label("gp"), A.label("gpd")
    A(f"v_and_b32 v244, {lanes-1}, v{LANE}\nv_lshlrev_b32 v244, 7, v244\ns_mov_b32 s97, 0x8000")
    if tag == "o": A(f"v_mov_b32 v240, {NONCE + 4}")
    A(L + ":")
    A(f"buffer_load_dword v242, v244, s[32:35], s{soff} offen {SC}")
    if tag == "o": A("ds_read_b32 v243, v240")
    A(f"s_waitcnt vmcnt(0) lgkmcnt(0)\nv_cmp_ne_u32 vcc, s31, v242\ns_cbranch_vccz {Ld}\ns_sleep {OPT.get('slp' + tag, 4)}")
    if tag == "o": A(f"v_readfirstlane_b32 s3, v243\ns_nop 0\ns_cmp_eq_u32 s3, s31\ns_cbranch_scc1 {L}s\ns_sleep {OPT.get('slpl', 48)}\n{L}s:")
    A(f"s_sub_u32 s97, s97, 1\ns_cmp_lg_u32 s97, 0\ns_cbranch_scc1 {L}\n{Ld}:")
def handoff(A, sset, swait, lanes, between=None, slp=2, tag="", after=None, presync=False):
    Ls = A.label("fw")
    if between: A("s_nop 1"); between(A)
    dbg = OPT.get("hs") and tag == "xkzou......"[OPT["hs"] - 1]
    if dbg: stamp(A, 7, force=True)
    n = 0
    if OPT.get("early", 1) and after:
        if presync: gsync(A)
        n = after(A); after = None; presync = False
    A(f"s_waitcnt vmcnt({n})")
    if dbg: stamp(A, 8, force=True)
    A.extend(arrive())
    if presync: A.extend(poll_issue()); A.extend(poll_check(A))
    A(f"s_cmp_lg_u32 s21, 0\ns_cbranch_scc1 {Ls}")
    if not presync: A.extend(poll_issue()); A.extend(poll_check(A))
    if dbg: stamp(A, 9, force=True)
    A(f"""
    v_mov_b32 v242, 0
    v_mov_b32 v243, s31
    s_mov_b64 exec, 1
    buffer_store_dword v243, v242, s[32:35], s{sset} offen {SC}
    s_mov_b64 exec, -1
    """)
    if after:
        L2 = A.label("fw")
        A(f"{Ls}:"); after(A); Ls = L2
        A(f"s_cmp_lg_u32 s21, 0\ns_cbranch_scc1 {Ls}")
    flag_wait(A, swait, lanes, tag)
    A(f"{Ls}:")
    gsync(A, slp)

def start(A):
    A(f"""
    s_cmp_ge_u32 s2, 256
    s_cbranch_scc1 L_end
    s_load_dwordx16 s[48:63], s[0:1], 0
    s_load_dwordx4 s[44:47], s[0:1], 64
    s_load_dwordx2 s[4:5], s[0:1], 80
    v_lshrrev_b32 v1, 6, v0
    v_and_b32 v{LANE}, 63, v0
    v_readfirstlane_b32 s20, v1
    {"s_lshr_b32 s23, s2, 5" if OPT.get("badmap") else "s_and_b32 s23, s2, 7"}
    {"s_and_b32 s36, s2, 31" if OPT.get("badmap") else "s_lshr_b32 s36, s2, 3"}
    s_and_b32 s22, s36, 7
    s_lshr_b32 s24, s36, 3
    s_lshl_b32 s25, s23, 2
    s_add_u32 s25, s25, s24
    s_and_b32 s21, s20, 3
    s_and_b32 s37, s21, 1
    s_lshr_b32 s38, s21, 1
    s_lshr_b32 s100, s23, 1
    s_lshl_b32 s100, s100, 2
    s_and_b32 s3, s36, 3
    s_add_u32 s100, s100, s3
    s_and_b32 s101, s23, 1
    s_lshl_b32 s101, s101, 3
    s_lshr_b32 s3, s36, 2
    s_add_u32 s101, s101, s3
    v_lshlrev_b32 v{L16}, 4, v{LANE}
    s_lshl_b32 s3, s20, 8
    s_add_u32 s3, s3, {FLG}
    v_lshlrev_b32 v{VF_}, 2, v{LANE}
    v_and_b32 v{VG}, 3, v{LANE}
    v_lshlrev_b32 v{VG}, 8, v{VG}
    v_add_u32 v{VG}, v{VG}, v{VF_}
    v_add_u32 v{VF_}, s3, v{VF_}
    s_and_b32 s3, s20, 4
    s_lshl_b32 s3, s3, 8
    s_add_u32 s3, s3, {FLG}
    v_add_u32 v{VG}, s3, v{VG}
    v_mov_b32 v{VP}, 0
    ds_write_b32 v{VF_}, v{VP}
    v_mov_b32 v{VP}, 1
    s_mov_b32 s88, 0
    s_waitcnt lgkmcnt(0)
    s_barrier
    """)
    if OPT.get("wso"): A(f"s_add_u32 s4, s4, {OPT['wso'] << 20}\ns_addc_u32 s5, s5, 0")
    srd(A, 32, PT["ws"], FLAGS, FBYTES)
    Ln = A.label("non")
    A(f"s_lshl_b32 s3, s2, 3\ns_add_u32 s3, s3, s20\ns_cmp_lg_u32 s3, 4\ns_cbranch_scc1 {Ln}")
    srd(A, 16, PT["dbg"], 0, 256)
    A(f"""
    s_memrealtime s[6:7]
    s_waitcnt lgkmcnt(0)
    s_or_b32 s3, s6, 1
    v_mov_b32 v1, s3
    v_mov_b32 v2, 0
    s_mov_b64 exec, 1
    buffer_store_dword v1, v2, s[16:19], 0 offen {SC}
    s_mov_b64 exec, -1
    {Ln}:
    """)

def ln_loads(A):
    srd(A, 8, PT["x"], 0, 4 * MB); srd(A, 16, PT["dbg"], 0, 256)
    A(f"""
    s_lshl_b32 s3, s22, 8
    s_lshl_b32 s6, s25, 3
    s_add_u32 s3, s3, s6
    s_lshl_b32 s6, s21, 1
    s_add_u32 s39, s3, s6
    s_lshl_b32 s3, s39, 11
    v_mov_b32 v242, 0
    """)
    for rr in range(2):
        for q in range(2): A(f"buffer_load_dwordx4 {vr(8+40*rr+4*q,4)}, v{L16}, s[8:11], s3 offen offset:{2048*rr+1024*q}")
    A(f"buffer_load_dword v243, v242, s[16:19], 0 offen {SC}")

def ln_stats(A, younger):
    A(f"s_waitcnt vmcnt({younger})")
    streams = []
    for rr in range(2):
        B = Asm(); o = 40 * rr
        for i in range(8): B(f"v_lshlrev_b32 v{o+16+2*i}, 16, v{o+8+i}\nv_and_b32 v{o+17+2*i}, 0xffff0000, v{o+8+i}")
        for i in range(8): B(f"v_add_f32 v{o+32+i}, v{o+16+2*i}, v{o+17+2*i}")
        for i in range(4): B(f"v_add_f32 v{o+32+i}, v{o+32+i}, v{o+36+i}")
        B(f"v_add_f32 v{o+32}, v{o+32}, v{o+34}\nv_add_f32 v{o+33}, v{o+33}, v{o+35}\nv_add_f32 v{o+32}, v{o+32}, v{o+33}")
        wave_sum(B, o + 32, o + 33)
        B(f"v_mul_f32 v{o+32}, {fhex(1/1024)}, v{o+32}")
        for i in range(16): B(f"v_sub_f32 v{o+16+i}, v{o+16+i}, v{o+32}")
        B(f"v_mul_f32 v{o+34}, v{o+16}, v{o+16}\nv_mul_f32 v{o+35}, v{o+17}, v{o+17}")
        for i in range(2, 16): B(f"v_fmac_f32 v{o+34+(i&1)}, v{o+16+i}, v{o+16+i}")
        B(f"v_add_f32 v{o+34}, v{o+34}, v{o+35}")
        wave_sum(B, o + 34, o + 33)
        B(f"v_mul_f32 v{o+34}, {fhex(1/1024)}, v{o+34}")
        bf16_round(B, o + 32, o + 32); bf16_round(B, o + 34, o + 34)
        B(f"v_add_f32 v{o+34}, {fhex(1e-5)}, v{o+34}")
        bf16_round(B, o + 34, o + 34)
        B(f"v_sqrt_f32 v{o+34}, v{o+34}\ns_nop 0")
        bf16_round(B, o + 34, o + 34)
        B(f"v_rcp_f32 v{o+34}, v{o+34}\ns_nop 0")
        B(f"v_mul_f32 v{o+32}, v{o+32}, v{o+34}")
        streams.append([l.strip().replace("s_nop 1", "s_nop 0") for l in B.lines])
    for a_, b_ in zip(*streams):
        A(a_)
        if not (a_.startswith("s_nop") and b_.startswith("s_nop")): A(b_)
    L, Ld = A.label("nn"), A.label("nnd")
    COLD.extend([f"{L}:", "s_mov_b32 s97, 0x8000", f"{L}b:", "s_sleep 4", f"buffer_load_dword v243, v242, s[16:19], 0 offen {SC}", "s_waitcnt vmcnt(0)",
                 "v_readfirstlane_b32 s31, v243", "s_sub_u32 s97, s97, 1", "s_cmp_eq_u32 s97, 0", f"s_cbranch_scc1 {Ld}",
                 "s_cmp_eq_u32 s31, 0", f"s_cbranch_scc1 {L}b", f"s_branch {Ld}"])
    A(f"""
    v_readfirstlane_b32 s31, v243
    v_cmp_eq_u32 vcc, 0, v{LANE}
    s_cmp_eq_u32 s31, 0
    s_cbranch_scc1 {L}
    {Ld}:
    v_mov_b32 v242, {NONCE}
    ds_write_b32 v242, v243
    v_cndmask_b32 v4, v74, v34, vcc
    v_cndmask_b32 v6, v72, v32, vcc
    v_mov_b32 v5, s31
    v_sub_f32 v6, 0, v6
    v_mov_b32 v7, s31
    s_lshl_b32 s3, s39, 4
    """)
    srd(A, 12, PT["ws"], RS, 2048 * 16)
    A(f"s_mov_b64 exec, 3\nbuffer_store_dwordx4 v[4:7], v{L16}, s[12:15], s3 offen {SC}\ns_mov_b64 exec, -1\ns_nop 0")

GA = dict(frag=96, xr=176, xa=180, wr=184, wa=185, dv=186, cs=192, one=204, idx=208, ns=3, sel=0, tab=36864, rs=176)
GB = dict(frag=112, xr=200, xa=202, wr=204, wa=205, dv=206, cs=216, one=232, idx=236, ns=4, sel=1, tab=49152, rs=212)
ROWT = 37888

def g1_dma(role, par, R, touch=False, pro=False):
    g = []
    for j in range(4):
        ins = []
        if role == "A":
            if j == 0 and pro: ins += [f"s_add_u32 m0, s94, s28" if par else "s_add_u32 m0, s94, s30", "s_nop 0"]
            ins.append(f"buffer_load_dwordx4 v{R['dv']+j}, s[8:11], {'s26' if par else 's27'} offen offset:{j*1024} lds")
            if j == 3: ins += ["s_add_u32 s26, s26, 128"] if par else ["s_add_u32 s27, s27, 128"] + (rot3(94, XSLOT) if pro else [])
        else:
            if j == 0 and pro: ins += ["s_add_u32 m0, s94, s28", "s_nop 0"]
            if j == 3: ins.append("s_mov_b64 exec, s[98:99]")
            ins.append(f"buffer_load_dwordx4 v{R['dv']+j}, s[8:11], s26 offen offset:{j*1024} lds")
            if j == 3:
                ins += ["s_mov_b64 exec, -1", "s_add_u32 s26, s26, s27"] + (rot3(94, WSLOT, WRING, 4) if pro else [])
                if touch: ins += ["buffer_load_dword v211, v210, s[16:19], s30 offen", "s_add_u32 s30, s30, 1024"]
        g.append(ins)
    return g

def g1_addr(role, par, R, dma=False):
    o = []
    if dma and role == "B": o.append("s_add_u32 m0, s95, s28")
    if dma and role == "A": o.append("s_add_u32 m0, s96, s28" if par else "s_add_u32 m0, m0, 4096")
    w = rot3(95, WSLOT, WRING, 4) + [f"v_add_u32 v{R['wa']}, s95, v{R['wr']}"]
    x = []
    if par:
        x = rot3(96, XSLOT)
        for i in range(4 if role == "A" else 2): x.append(f"v_add_u32 v{R['xa']+i}, s96, v{R['xr']+i}")
    return o, x, w

def g1_step(role, par, dma, reads, R):
    cur = par; nxt = par ^ 1
    mf, rd = [], []
    if role == "A":
        fb = lambda buf: R["frag"] + 40 * buf
        xf = lambda buf, ks, rb: fb(buf) + 8 * ks + 4 * rb
        wf = lambda buf, ks, b: fb(buf) + 16 + 8 * b + 4 * ks
        for ks in range(2):
            for rb in range(2):
                for b in range(3):
                    acc = vr((rb * 3 + b) * 16, 16)
                    x_, w_ = vr(xf(cur, ks, rb), 4), vr(wf(cur, ks, b), 4)
                    if OPT.get("x16"):
                        for q in range(2):
                            a4 = vr((rb * 3 + b) * 16 + 8 * ks + 4 * q, 4)
                            mf.append(f"v_mfma_f32_16x16x32_bf16 {a4}, {w_}, {vr(xf(cur, ks ^ q, rb ^ q), 4)}, {a4}")
                        continue
                    mf.append(f"v_mfma_f32_32x32x16_bf16 {acc}, {w_}, {x_}, {acc}" if b < 2 else f"v_mfma_f32_32x32x16_bf16 {acc}, {x_}, {w_}, {acc}")
        for ks in range(2):
            for rb in range(2):
                rd.append(f"ds_read_b128 {vr(xf(nxt, ks, rb), 4)}, v{R['xa'] + 2 * nxt + ks} offset:{rb * 4096}")
            for b in range(3):
                for hf in range(2):
                    rd.append(f"ds_read_b64_tr_b16 {vr(wf(nxt, ks, b) + 2 * hf, 2)}, v{R['wa']} offset:{(16 * ks + 4 * hf) * 192 + 64 * b}")
    else:
        fb = lambda buf: R["frag"] + 44 * buf
        xf = lambda buf, st: fb(buf) + 4 * st
        wf = lambda buf, ft: fb(buf) + 16 + 4 * ft
        for ft in range(7):
            for st in range(4):
                acc = vr((st * 7 + ft) * 4, 4)
                mf.append(f"v_mfma_f32_16x16x32_bf16 {acc}, {vr(wf(cur, ft), 4)}, {vr(xf(cur, st), 4)}, {acc}")
        for st in range(4):
            rd.append(f"ds_read_b128 {vr(xf(nxt, st), 4)}, v{R['xa'] + nxt} offset:{st * 2048}")
        for ft in range(7):
            for hf in range(2):
                rd.append(f"ds_read_b64_tr_b16 {vr(wf(nxt, ft) + 2 * hf, 2)}, v{R['wa']} offset:{WBO + hf * 8 * 224 + 32 * ft}")
    if not reads: return mf, []
    o, x, w = g1_addr(role, par, R, dma)
    dm = g1_dma(role, par, R, OPT.get('mw')) if dma and not OPT.get("g_nodma" + role) else []
    if OPT.get("g_nord" + role): rd = rd[:4]
    if OPT.get("g_dupx") and role == "A": rd = [r for r in rd if "b128" not in r]
    nx = 2 if role == "A" else 4
    xs = [[i] for i in o + x[:3]] + ([x[3:]] if x else [])
    rds = rd[:nx] + [None] + rd[nx:]
    fill = list(xs)
    k = 0; step = max(1, len(rd) // max(1, len(dm))); i = 0
    wq = [[q] for q in w]
    for r_ in rd[:nx]:
        fill.append(r_); fill += wq[:2] if role == "A" else wq[:1]; wq = wq[2:] if role == "A" else wq[1:]
    fill += wq
    for i, r_ in enumerate(rd[nx:]):
        fill.append(r_)
        if (i + 1) % step == 0 and k < len(dm): fill.append(dm[k]); k += 1
    fill += dm[k:]
    nlast = OPT.get("nl" + role, 2 if role == "A" else 5)
    st0 = OPT.get("st" + role, 0)
    return interleave(mf[:-nlast], fill, start=st0) + mf[-nlast:], x + w + rd

def g1_setup_A(A):
    R = GA
    A(f"""
    s_mov_b32 s26, 0
    s_mov_b32 s27, 65536
    s_lshl_b32 s28, s21, 13
    s_add_u32 s30, s28, 4096
    s_mov_b32 s94, 0
    v_lshrrev_b32 v1, 3, v{LANE}
    s_lshl_b32 s3, s22, 8
    s_lshl_b32 s6, s21, 6
    s_add_u32 s3, s3, s6
    v_add_u32 v1, s3, v1
    v_lshlrev_b32 v1, 11, v1
    v_lshrrev_b32 v2, 4, v{LANE}
    v_and_b32 v3, 7, v{LANE}
    v_xor_b32 v4, v2, v3
    v_xor_b32 v5, 4, v4
    v_lshl_add_u32 v4, v4, 4, v1
    v_lshl_add_u32 v5, v5, 4, v1
    v_mov_b32 v{R['dv']}, v4
    v_add_u32 v{R['dv']+1}, {16384-1024}, v5
    v_add_u32 v{R['dv']+2}, {2*(16384-1024)}, v4
    v_add_u32 v{R['dv']+3}, {3*(16384-1024)}, v5
    v_lshrrev_b32 v2, 5, v{LANE}
    v_and_b32 v1, 31, v{LANE}
    v_bfe_u32 v3, v{LANE}, 1, 3
    v_xor_b32 v3, v3, v2
    v_add_u32 v1, s6, v1
    v_lshlrev_b32 v1, 7, v1
    v_lshl_add_u32 v{R['xr']}, v3, 4, v1
    v_xor_b32 v{R['xr']+1}, 32, v{R['xr']}
    v_xor_b32 v{R['xr']+2}, 64, v{R['xr']}
    v_xor_b32 v{R['xr']+3}, 96, v{R['xr']}
    v_bfe_u32 v1, v{LANE}, 2, 2
    v_lshl_add_u32 v1, v2, 3, v1
    v_mul_u32_u24 v1, 192, v1
    v_bfe_u32 v3, v{LANE}, 4, 1
    v_lshl_add_u32 v1, v3, 5, v1
    v_and_b32 v3, 3, v{LANE}
    v_lshl_add_u32 v{R['wr']}, v3, 3, v1
    """)

def g1_setup_B(A):
    R = GB
    m12, s12 = magic_div(12, 511); m14, s14 = magic_div(14, 511)
    LB, LE = A.label("sB"), A.label("sE")
    A(f"""
    s_mov_b32 s26, 0
    s_mov_b32 s94, {WRING}
    s_cmp_eq_u32 s21, 2
    s_cselect_b32 s98, -1, 0
    s_mov_b32 s99, s98
    s_cmp_ge_u32 s21, 2
    s_cselect_b32 s8, s{PT['win']}, s{PT['wqkv']}
    s_cselect_b32 s9, s{PT['win']+1}, s{PT['wqkv']+1}
    s_mov_b32 s10, {1024*6144}
    s_cmov_b32 s10, {1024*7168}
    s_mov_b32 s11, 0x00020000
    s_mov_b32 s27, {32*6144}
    s_cmov_b32 s27, {32*7168}
    s_cbranch_scc1 {LB}
    s_mul_i32 s3, s21, 3
    s_lshl_b32 s28, s3, 10
    s_lshl_b32 s3, s3, 6
    s_lshl_b32 s39, s25, 6
    """)
    for j in range(4):
        A(f"""
        v_add_u32 v1, s3, v{LANE}
        v_add_u32 v1, {64*j}, v1
        v_mul_u32_u24 v2, {m12}, v1
        v_lshrrev_b32 v2, {s12}, v2
        v_mul_u32_u24 v3, 12, v2
        v_sub_u32 v3, v1, v3
        v_mul_u32_u24 v2, 6144, v2
        v_lshrrev_b32 v4, 2, v3
        v_lshl_add_u32 v2, v4, 11, v2
        v_and_b32 v3, 3, v3
        v_lshl_add_u32 v2, v3, 4, v2
        v_add_u32 v2, s39, v2
        v_subrev_u32 v{R['dv']+j}, {1024*j}, v2
        """)
    A(f"""
    s_add_u32 s40, s39, 2048
    s_add_u32 s41, s39, 4096
    s_branch {LE}
    {LB}:
    s_sub_u32 s3, s21, 2
    s_lshl_b32 s3, s3, 2
    s_lshl_b32 s28, s3, 10
    s_add_u32 s28, s28, {WBO}
    s_lshl_b32 s3, s3, 6
    s_lshr_b32 s39, s24, 1
    s_mul_i32 s39, s39, 3584
    s_mul_i32 s7, s23, 448
    s_add_u32 s39, s39, s7
    s_and_b32 s7, s24, 1
    s_mul_i32 s7, s7, 224
    s_add_u32 s39, s39, s7
    """)
    for j in range(4):
        A(f"""
        v_add_u32 v1, s3, v{LANE}
        v_add_u32 v1, {64*j}, v1
        v_mul_u32_u24 v2, {m14}, v1
        v_lshrrev_b32 v2, {s14}, v2
        v_mul_u32_u24 v3, 14, v2
        v_sub_u32 v3, v1, v3
        v_and_b32 v4, 0x13, v2
        v_bfe_u32 v5, v2, 2, 1
        v_lshl_add_u32 v4, v5, 3, v4
        v_bfe_u32 v5, v2, 3, 1
        v_lshl_add_u32 v4, v5, 2, v4
        v_mul_u32_u24 v4, 7168, v4
        v_lshl_add_u32 v4, v3, 4, v4
        v_add_u32 v4, s39, v4
        v_subrev_u32 v{R['dv']+j}, {1024*j}, v4
        """)
    A(f"s_add_u32 s40, s39, 128\ns_add_u32 s41, s39, 220\n{LE}:")

def g1_setup_B2(A):
    R = GB
    A(f"""
    v_and_b32 v1, 15, v{LANE}
    v_lshrrev_b32 v2, 4, v{LANE}
    v_lshrrev_b32 v3, 1, v1
    v_xor_b32 v4, v3, v2
    s_lshl_b32 s6, s21, 6
    v_add_u32 v1, s6, v1
    v_lshlrev_b32 v1, 7, v1
    v_lshl_add_u32 v{R['xr']}, v4, 4, v1
    v_xor_b32 v{R['xr']+1}, 64, v{R['xr']}
    v_bfe_u32 v1, v{LANE}, 2, 2
    v_bfe_u32 v3, v{LANE}, 4, 1
    v_lshl_add_u32 v1, v3, 2, v1
    v_lshrrev_b32 v3, 5, v{LANE}
    v_lshl_add_u32 v1, v3, 4, v1
    v_mul_u32_u24 v1, 224, v1
    v_and_b32 v3, 3, v{LANE}
    v_lshl_add_u32 v{R['wr']}, v3, 3, v1
    """)

def w_touch(A):
    L = A.label("wt")
    A(f"""
    s_lshl_b32 s3, s37, 9
    s_lshl_b32 s6, s22, 6
    s_add_u32 s3, s3, s6
    v_add_u32 v214, s3, v{LANE}
    s_lshr_b32 s3, s27, 5
    v_mul_lo_u32 v214, v214, s3
    v_add_u32 v214, s39, v214
    s_sub_u32 s14, s40, s39
    s_sub_u32 s15, s41, s39
    v_add_u32 v215, s14, v214
    v_add_u32 v237, s15, v214
    s_and_b32 s39, s36, 3
    s_cmp_eq_u32 s37, 1
    s_cbranch_scc1 {L}
    s_mov_b32 s39, 99
    """)
    A.extend(w_touch_loads())
    A(L + ":")
    return 0
def w_touch_loads(): return [f"buffer_load_dword v213, v{r}, s[8:11], 0 offen" for r in (214, 215, 237)]

def ones_setup(A, R, role):
    t = 1
    sel = "v_lshrrev_b32 v3, 1, v1" if role == "A" else f"v_lshrrev_b32 v3, 5, v{LANE}\nv_lshrrev_b32 v4, 1, v1\nv_xor_b32 v3, v3, v4"
    A(f"""
    v_and_b32 v1, 15, v{LANE}
    v_mov_b32 v2, 0x3f803f80
    {sel}
    v_cmp_eq_u32 vcc, 0, v3
    v_and_b32 v5, 1, v1
    v_mul_u32_u24 v5, 0xaaaa, v5
    v_cndmask_b32 v{R['one']}, 0, v2, vcc
    v_cndmask_b32 v{R['one']+1}, 0, v2, vcc
    """)
    if role == "A": A("v_cmp_eq_u32 vcc, 1, v3\ns_nop 1")
    A(f"v_cndmask_b32 v{R['one']+2}, 0, v2, vcc\nv_cndmask_b32 v{R['one']+3}, 0, v2, vcc\nv_add_u32 v{R['idx']}, 0x4444, v5")
    for i in range(4 * R["ns"]): A(f"v_mov_b32 v{R['cs']+i}, 0")
    A(f"s_cmp_eq_u32 s21, {R['sel']}\ns_cselect_b32 s42, s22, 99\ns_mov_b32 s41, 0\ns_mov_b32 s40, 0\nv_mov_b32 v240, 0\nv_mov_b32 v241, 0")
    srd(A, 12, PT["ws"], CSP, 32 * 8 * 2048)

def cs_sums(role, R):
    c = R["cs"]; ins = []; regs = []
    for i in range(R["ns"]):
        if role == "B" and i == 3: ins.append(f"v_add_f32 v{c+12}, v{c+12}, v{c+14}"); regs.append(c + 12)
        else: ins += [f"v_add_f32 v{c+4*i}, v{c+4*i}, v{c+4*i+1}", f"v_add_f32 v{c+4*i+2}, v{c+4*i+2}, v{c+4*i+3}"]; regs += [c + 4 * i, c + 4 * i + 2]
    return regs, ins

GTAB = 40960
def cs_hook(A, role, R, par, kind):
    L = A.label("cs")
    B = Asm(); B._lab = A._lab * 100
    B(L + ":")
    w0 = R["frag"] + (40 if role == "A" else 44) * par + 16
    for i in range(3): B(f"v_smfmac_f32_16x16x64_bf16 {vr(R['cs']+4*i,4)}, {vr(R['one'],4)}, {vr(w0+8*i,8)}, v{R['idx']}")
    if role == "B": B(f"v_mfma_f32_16x16x32_bf16 {vr(R['cs']+12,4)}, {vr(R['one'],4)}, {vr(w0+24,4)}, {vr(R['cs']+12,4)}")
    so = 0 if role == "A" else 1024
    if kind == "share" and par == 1:
        B(f"s_bitcmp1_b32 s41, 0\ns_cbranch_scc0 {L}r\ns_nop 7")
        B.extend(cs_sums(role, R)[1])
        B("s_lshl_b32 s3, s25, 3\ns_add_u32 s3, s3, s22\ns_lshl_b32 s3, s3, 11")
        for i in range(R["ns"]): B(f"v_mov_b32 v{R['cs']+4*i+1}, s31\nv_mov_b32 v{R['cs']+4*i+3}, s31")
        B("s_mov_b64 exec, 0xffff")
        for i in range(R["ns"]): B(f"buffer_store_dwordx4 {vr(R['cs']+4*i,4)}, v{L16}, s[12:15], s3 offen offset:{so+256*i} {SC}")
        B("s_mov_b64 exec, -1\ns_nop 0")
        for i in range(4 * R["ns"]): B(f"v_mov_b32 v{R['cs']+i}, 0")
    if kind == "last":
        regs, ins = cs_sums(role, R)
        G = R["frag"]
        B(f"v_lshlrev_b32 v238, 2, v{LANE}\nv_and_b32 v238, 63, v238\nv_add_u32 v237, {GTAB + (0 if role == 'A' else 512)}, v238\nv_add_u32 v238, {R['tab']}, v238")
        for k in range(len(regs)): B(f"ds_read_b32 v{G+k}, v237 offset:{64*k}")
        B.extend(ins)
        B("s_waitcnt lgkmcnt(0)")
        for k, r_ in enumerate(regs): B(f"v_add_f32 v{G+k}, v{G+k}, v{r_}")
        B("s_mov_b64 exec, 0xffff")
        for k in range(len(regs)): B(f"ds_write_b32 v238, v{G+k} offset:{64*k}")
        B("s_mov_b64 exec, -1\ns_waitcnt lgkmcnt(0)")
    B(f"s_branch {L}r")
    COLD.extend(l.strip() for l in B.lines)
    return [f"s_cbranch_vccnz {L}", f"{L}r:"]

GG = 210
def gather_regs(): return [210 + 4 * i for i in range(7)] + [186]
def gather_issue(A):
    L = A.label("ga"); B = Asm()
    B(f"""
    {L}:
    s_lshl_b32 s40, s25, 14
    s_lshl_b32 s3, s37, 10
    s_add_u32 s40, s40, s3
    v_lshrrev_b32 v241, 4, v{LANE}
    v_and_b32 v240, 15, v{LANE}
    v_lshlrev_b32 v240, 4, v240
    v_lshl_add_u32 v240, v241, 11, v240
    v_cmp_lt_u32 vcc, 1, v241
    v_add_u32 v241, 8192, v240
    v_mov_b32 v239, 1.0
    v_cndmask_b32 v241, v241, v240, vcc
    v_cndmask_b32_e64 v239, v239, 0, vcc
    """)
    B.extend(gather_loads()); B(f"s_mov_b64 vcc, 0\ns_branch {L}r")
    COLD.extend(l.strip() for l in B.lines)
    return ["s_cmp_ge_u32 s21, 2", f"s_cbranch_scc1 {L}", f"{L}r:"]
def gather_loads():
    g = gather_regs()
    return [f"buffer_load_dwordx4 {vr(g[4*u+i],4)}, v{240+u}, s[12:15], s40 offen offset:{256*i} {SC}" for u in range(2) for i in range(4)]
def gather_finish(A):
    L = A.label("gf"); B = Asm(); g = gather_regs()
    B(f"{L}:\ns_mov_b32 s97, 0x8000\n{L}p:\ns_waitcnt vmcnt(0)\nv_xor_b32 v238, s31, v{g[0]+1}")
    for i in range(8):
        for u in (1, 3):
            if i & 3 == 3: continue
            if i or u == 3: B(f"v_xor_b32 v209, s31, v{g[i]+u}\nv_or_b32 v238, v238, v209")
    B(f"v_xor_b32 v209, s31, v{g[3]+1}\nv_xor_b32 v{g[3]+3}, s31, v{g[7]+1}\nv_or_b32 v209, v209, v{g[3]+3}\nv_mul_lo_u32 v209, v209, s37\nv_or_b32 v238, v238, v209")
    B(f"v_cmp_ne_u32 vcc, 0, v238\ns_sub_u32 s97, s97, 1\ns_cbranch_vccz {L}q\ns_cmp_eq_u32 s97, 0\ns_cbranch_scc1 {L}q\ns_sleep 2")
    B.extend(gather_loads())
    B(f"s_branch {L}p\n{L}q:")
    vals = [g[k // 2] + 2 * (k & 1) for k in range(7)]
    for k, v in enumerate(vals): B(f"v_fmac_f32 v{v}, v239, v{g[4 + k // 2] + 2 * (k & 1)}")
    for sw in ("v_permlane16_swap_b32", "v_permlane32_swap_b32"):
        for v in vals: B(f"v_mov_b32 v{v+1}, v{v}")
        B("s_nop 0")
        for v in vals: B(f"{sw} v{v}, v{v+1}")
        for v in vals: B(f"v_add_f32 v{v}, v{v}, v{v+1}")
    B(f"s_lshl_b32 s3, s37, 9\ns_add_u32 s3, s3, {GTAB}\nv_lshlrev_b32 v238, 2, v{LANE}\nv_add_u32 v238, s3, v238\ns_mov_b64 exec, 0xffff")
    for k, v in enumerate(vals): B(f"ds_write_b32 v238, v{v} offset:{64*k}")
    B(f"s_mov_b64 exec, -1\ns_mov_b64 vcc, 0\ns_branch {L}r")
    COLD.extend(l.strip() for l in B.lines)
    return ["s_cmp_ge_u32 s21, 2", f"s_cbranch_scc1 {L}", f"{L}r:"]

def rs_load(role, R):
    return [f"buffer_load_dwordx4 {vr(R['rs'],4)}, v{L16}, s[16:19], s39 offen {SC}"]
def rs_wait(A, role, R):
    L = A.label("rs"); g = R["rs"]
    chk = ["s_waitcnt vmcnt(0)", f"v_cmp_ne_u32 vcc, s31, v{g+1}", f"v_cmp_ne_u32 s[40:41], s31, v{g+3}", "s_nop 0", "s_or_b64 vcc, vcc, s[40:41]"]
    COLD.extend([f"{L}:", "s_mov_b32 s97, 0x8000", f"{L}b:", "s_sleep 2"] + rs_load(role, R) + ["s_sub_u32 s97, s97, 1", "s_cmp_eq_u32 s97, 0", f"s_cbranch_scc1 {L}t"] + chk +
                [f"s_cbranch_vccnz {L}b", f"{L}t:", "s_waitcnt vmcnt(0)", f"s_branch {L}r"])
    A.extend(chk + [f"s_cbranch_vccnz {L}", f"{L}r:"])

def g1_main(A, role, R, nacc, extra):
    A(f"s_mov_b32 s95, {WRING + 3*WSLOT}\ns_mov_b32 s96, {2*XSLOT}")
    prio(A, "pg" + role)
    ones_setup(A, R, role)
    for i in range(nacc): A(f"v_mov_b32 v{i}, 0")
    A(f"s_waitcnt vmcnt({12 + extra}) lgkmcnt(0)\ns_barrier")
    stamp(A, 1)
    if role == "B": A(f"v_mov_b32 v242, {NONCE}\nds_read_b32 v243, v242")
    A.extend(g1_step(role, 1, False, True, R)[1])
    A(f"s_waitcnt vmcnt({8 + extra}) lgkmcnt(0)" if role == "B" else "s_waitcnt lgkmcnt(0)")
    if role == "B": A("v_readfirstlane_b32 s31, v243")
    nl = OPT.get("nt" + role, 1 if role == "A" else 2)
    flag = {"share": ["s_lshr_b32 s3, s41, 1", "s_cmp_eq_u32 s3, s42", "s_cselect_b64 vcc, -1, 0"],
            "own": [f"s_cmp_eq_u32 s21, {R['sel']}", "s_cselect_b64 vcc, -1, 0"]}
    def step(par, dma, vm, kind, reads=1, pre=(), book=(), cut=False):
        body = g1_step(role, par, dma, reads, R)[0]
        A("s_barrier"); A(body[0])
        A.extend(cs_hook(A, role, R, par, kind)); A.extend(pre)
        A.extend(body[1:-nl]); A.extend(book)
        w = ([f"vmcnt({vm})"] if vm is not None else []) + (["lgkmcnt(0)"] if reads else [])
        end = body[-nl:] + (["s_waitcnt " + " ".join(w)] if w else [])
        if cut: return end
        A.extend(end)
    ev = []
    if role == "B":
        if OPT.get("me"):
            Lw = A.label("mw")
            ev += ["s_cmp_eq_u32 s41, s43", f"s_cbranch_scc1 {Lw}", f"{Lw}r:"]
            COLD.extend([f"{Lw}:", "buffer_load_dword v211, v210, s[16:19], s30 offen", "s_add_u32 s30, s30, 8192", f"s_add_u32 s43, s43, {OPT.get('mp', 5)}", f"s_branch {Lw}r"])
        Lw = A.label("w2")
        ev += ["s_cmp_eq_u32 s41, s39", f"s_cbranch_scc1 {Lw}", f"{Lw}r:"]
        COLD.extend([f"{Lw}:"] + w_touch_loads() + [f"s_branch {Lw}r"])
    v0, v1 = (8, None) if role == "A" else (8, 8)
    L = A.label("g1" + role)
    if role == "A": itr0(A, 1)
    A.extend(flag["share"])
    A(f"s_branch {L}m")
    S = Asm(); cold_n = len(COLD)
    odd_end = g1_step(role, 1, 1, 1, R)[0][-nl:] + ["s_waitcnt " + " ".join(([f"vmcnt({v1})"] if v1 is not None else []) + ["lgkmcnt(0)"])]
    A(L + ":"); A.extend(odd_end); A(L + "m:")
    step(0, 1, v0, "share", book=ev)
    end = step(1, 1, v1, "share", cut=True,
               book=(itr(1) if role == "A" else []) + ["s_add_u32 s41, s41, 1"] + flag["share"] + ["s_cmp_lt_u32 s41, 12", f"s_cbranch_scc1 {L}"])
    A.extend(flag["own"]); A.extend(end)
    if OPT.get("hs") == 9: stamp(A, 7, force=True)
    B = Asm(); srd(B, 16, PT["ws"], RS, 2048 * 16); B("s_lshl_b32 s39, s22, 2\ns_add_u32 s39, s39, s21\ns_lshl_b32 s39, s39, 10")
    rsl = [l.strip() for l in B.lines] + rs_load(role, R)
    tr = itr(1) if role == "A" else []
    if role == "A":
        step(0, 1, 8, "own"); step(1, 1, None, "own", book=tr)
        step(0, 1, 8, "own"); step(1, 0, None, "own", pre=gather_issue(A) + flag["own"], book=tr)
        step(0, 0, 0, "own"); step(1, 0, None, "own", pre=gather_finish(A) + flag["own"], book=tr)
    else:
        step(0, 1, 8, "own"); step(1, 1, 8, "own"); step(0, 1, 8, "own"); step(1, 1, 8, "own")
        step(0, 0, 4, "own"); step(1, 0, 0, "own")
    step(0, 0, None, "own", pre=rsl); step(1, 0, None, "last", reads=0, book=tr)
    if OPT.get("hs") == 9: stamp(A, 8, force=True)
    rs_wait(A, role, R)
    if OPT.get("hs") == 9: stamp(A, 9, force=True)
    A("s_barrier")

RA = dict(O=0, S=32, Pk=64, Q=96, K=112, V=120, L=128, ONE=136, IDX=140, cur=141, nxt=142, dk=143, dv=144, tmp=148)

def epi_A(A):
    R = RA; g = 198
    CS, RW, T = 144, 160, 176
    A("v_mov_b32 v198, v176\nv_mov_b32 v199, v178")
    srd(A, 8, PT["ws"], KF, 8 * MB)
    A(f"""
    s_lshl_b32 s3, s21, 9
    s_add_u32 s3, s3, {ROWT}
    v_lshlrev_b32 v192, 2, v{LANE}
    v_add_u32 v193, s3, v192
    ds_write_b32 v193, v{g}
    ds_write_b32 v193, v{g+1} offset:256
    v_lshrrev_b32 v194, 5, v{LANE}
    v_lshlrev_b32 v194, 4, v194
    v_add_u32 v195, s3, v194
    v_add_u32 v194, {GA['tab']}, v194
    v_and_b32 v192, 127, v192
    v_add_u32 v192, {GA['tab']+256}, v192
    ds_read_b32 v196, v192
    """)
    for q in range(4): A(f"ds_read_b128 {vr(CS+4*q,4)}, v194 offset:{128+32*q}")
    A(f"""
    v_mov_b32 v200, v{g}
    v_mov_b32 v202, v{g}
    v_mov_b32 v204, v{g+1}
    v_mov_b32 v206, v{g+1}
    s_lshl_b32 s3, s25, 6
    s_lshl_b32 s6, s22, 3
    v_permlane32_swap_b32 v200, v202
    v_permlane32_swap_b32 v204, v206
    s_add_u32 s3, s3, s6
    s_lshl_b32 s6, s21, 1
    s_add_u32 s3, s3, s6
    s_lshl_b32 s6, s3, 11
    s_add_u32 s7, s6, {4*MB}
    v_mov_b32 v201, v200
    v_mov_b32 v203, v202
    v_mov_b32 v205, v204
    v_mov_b32 v207, v206
    """)
    def fix_rowlane(a0, rb):
        for q in range(8): A(f"v_pk_mul_f32 {vr(T+2*q,2)}, {vr(CS+2*q,2)}, {vr(204+2*rb,2)}")
        for q in range(8): A(f"v_pk_fma_f32 {vr(a0+2*q,2)}, {vr(a0+2*q,2)}, {vr(200+2*rb,2)}, {vr(T+2*q,2)}")
    def pack_store(a0, d0, so, rb):
        for i in range(8): A(f"v_cvt_pk_bf16_f32 v{d0+i}, v{a0+2*i}, v{a0+2*i+1}")
        for f in range(2): A(f"buffer_store_dwordx4 {vr(d0+4*f,4)}, v{L16}, s[8:11], {so} offen offset:{(rb*2+f)*1024} {SC}")
    def rowreads(rb):
        for q in range(4): A(f"ds_read_b128 {vr(RW+4*q,4)}, v195 offset:{128*rb+32*q}")
        for q in range(4): A(f"ds_read_b128 {vr(208+4*q,4)}, v195 offset:{256+128*rb+32*q}")
    rowreads(0)
    A("s_waitcnt lgkmcnt(8)\nv_mov_b32 v197, v196")
    for rb in range(2): fix_rowlane((rb * 3 + 1) * 16, rb); pack_store((rb * 3 + 1) * 16, 112 + 8 * rb, "s6", rb)
    for q in range(4): A(f"ds_read_b128 {vr(CS+4*q,4)}, v194 offset:{32*q}")
    for rb in range(2):
        a0 = (rb * 3 + 2) * 16
        A(f"s_waitcnt lgkmcnt({4 if rb == 0 else 0})")
        for q in range(8): A(f"v_pk_mul_f32 {vr(T+2*q,2)}, {vr(208+2*q,2)}, v[196:197]")
        for q in range(8): A(f"v_pk_fma_f32 {vr(a0+2*q,2)}, {vr(a0+2*q,2)}, {vr(RW+2*q,2)}, {vr(T+2*q,2)}")
        if rb == 0: rowreads(1)
        pack_store(a0, 128 + 8 * rb, "s7", rb)
    for i in range(8): A(f"v_mul_f32 v{200+i}, {fhex(QSCALE)}, v{200+i}")
    for rb in range(2):
        fix_rowlane(rb * 48, rb)
        for i in range(8): A(f"v_cvt_pk_bf16_f32 v{R['Q']+8*rb+i}, v{rb*48+2*i}, v{rb*48+2*i+1}")
    A(f"s_lshl_b32 s43, s25, 10\ns_add_u32 s43, s43, {FKV}\ns_lshl_b32 s42, s22, 7\ns_add_u32 s42, s42, s43")

def attn_slot(n, sl, extra_mid=None, extra_end=None):
    R = RA; cur = AREG + sl * KV_SLOT; nxt = AREG + (sl + 1) % 3 * KV_SLOT
    qb = n & 1; b = n >> 1
    S = R["S"] + 16 * qb; Sn = R["S"] + 16 * (qb ^ 1)
    P = R["Pk"] + 8 * qb; Pp = R["Pk"] + 8 * (qb ^ 1)
    qn = qb ^ 1
    K, V, Q, O, L = R["K"], R["V"], R["Q"] + 8 * qn, R["O"] + 16 * qn, R["L"] + 4 * qn
    valu = []
    head = [f"v_cvt_pk_bf16_f32 v{Pp+7}, v{Sn+14}, v{Sn+15}"]
    for i in range(16):
        valu.append(f"v_exp_f32 v{S+i}, v{S+i}")
        p2 = i - 3
        if p2 >= 0 and p2 % 2 == 0: valu.append(f"v_cvt_pk_bf16_f32 v{P+p2//2}, v{S+p2}, v{S+p2+1}")
    M = [f"v_mfma_f32_32x32x16_bf16 {vr(Sn,16)}, {vr(K,4)}, {vr(Q,4)}, 0",
         f"v_mfma_f32_32x32x16_bf16 {vr(Sn,16)}, {vr(K+4,4)}, {vr(Q+4,4)}, {vr(Sn,16)}",
         f"v_mfma_f32_32x32x16_bf16 {vr(O,16)}, {vr(V,4)}, {vr(Pp,4)}, {vr(O,16)}",
         f"v_mfma_f32_32x32x16_bf16 {vr(O,16)}, {vr(V+4,4)}, {vr(Pp+4,4)}, {vr(O,16)}",
         f"v_smfmac_f32_16x16x64_bf16 {vr(L,4)}, {vr(R['ONE'],4)}, {vr(Pp,8)}, v{R['IDX']}"]
    pre = [[] for _ in range(5)]; post = [[] for _ in range(5)]
    if qb == 1: pre[0].append("s_waitcnt lgkmcnt(0)")
    if qb == 0:
        ko = cur + (b + 1) * 4096 if b < 3 else nxt
        post[1] += [f"ds_read_b128 {vr(K,4)}, v{L16} offset:{ko}", f"ds_read_b128 {vr(K+4,4)}, v{L16} offset:{ko+1024}"]
        post[3] += [f"ds_read_b128 {vr(V,4)}, v{L16} offset:{cur+b*4096+2048}", f"ds_read_b128 {vr(V+4,4)}, v{L16} offset:{cur+b*4096+3072}"]
    if extra_mid:
        for k, v in extra_mid.items(): post[k] += v
    out = list(head)
    cuts = {0: [0, 4, 9, 14, 19], 1: [0, 0, 10, 10, 19], 2: [0, 0, 9, 9, 9], 3: [0, 7, 7, 14, 14], 4: [0, 0, 8, 8, 16]}[OPT.get("av", 0)] + [len(valu)]
    for g in range(5): out += pre[g] + [M[g]] + post[g] + valu[cuts[g]:cuts[g + 1]]
    return out + (extra_end or [])

def kv_dma(sl):
    R = RA
    return [[f"s_add_u32 m0, s28, {AREG + sl * KV_SLOT}"], [f"buffer_load_dwordx4 v{R['dk']}, s[8:11], s26 offen {SC} lds"],
            [f"buffer_load_dwordx4 v{R['dk']}, s[8:11], s26 offen offset:1024 {SC} lds"],
            [f"buffer_load_dwordx4 v{R['dv']}, s[8:11], s26 offen offset:2048 {SC} lds"],
            [f"buffer_load_dwordx4 v{R['dv']}, s[8:11], s26 offen offset:3072 {SC} lds", "s_add_u32 s26, s26, 8192"]]

def attn_setup(A):
    R = RA; t = R["tmp"]
    for i in range(32): A(f"v_mov_b32 v{R['O']+i}, 0")
    for i in range(16): A(f"v_mov_b32 v{R['Pk']+i}, 0\nv_mov_b32 v{R['S']+16+i}, 0")
    for i in range(8): A(f"v_mov_b32 v{R['V']+i}, 0\nv_mov_b32 v{R['L']+i}, 0")
    A(f"""
    v_and_b32 v{t}, 15, v{LANE}
    v_mov_b32 v{t+1}, 0x3f803f80
    v_cmp_gt_u32 vcc, 2, v{t}
    v_lshrrev_b32 v{t+2}, 1, v{t}
    s_nop 0
    v_cndmask_b32 v{R['ONE']}, 0, v{t+1}, vcc
    v_cndmask_b32 v{R['ONE']+1}, 0, v{t+1}, vcc
    v_cmp_eq_u32 vcc, 1, v{t+2}
    v_and_b32 v{t}, 1, v{t}
    v_mul_u32_u24 v{t}, 0xaaaa, v{t}
    v_cndmask_b32 v{R['ONE']+2}, 0, v{t+1}, vcc
    v_cndmask_b32 v{R['ONE']+3}, 0, v{t+1}, vcc
    v_add_u32 v{R['IDX']}, 0x4444, v{t}
    s_lshl_b32 s3, s25, 17
    s_lshl_b32 s6, s21, 11
    s_add_u32 s6, s6, s3
    v_add_u32 v{R['dk']}, s6, v{L16}
    v_add_u32 v{R['dv']}, {4*MB-2048}, v{R['dk']}
    s_mov_b32 s26, 0
    s_lshl_b32 s28, s21, 12
    """)

def attn_main(A):
    R = RA
    for c in range(2):
        d = kv_dma(c); A.extend(d[0] + ["s_nop 0"] + sum(d[1:], []))
    A("s_waitcnt vmcnt(4)")
    gsync(A)
    K, Q, S = R["K"], R["Q"], R["S"]
    A(f"""
    ds_read_b128 {vr(K,4)}, v{L16} offset:{AREG}
    ds_read_b128 {vr(K+4,4)}, v{L16} offset:{AREG+1024}
    s_waitcnt lgkmcnt(0)
    v_mfma_f32_32x32x16_bf16 {vr(S,16)}, {vr(K,4)}, {vr(Q,4)}, 0
    v_mfma_f32_32x32x16_bf16 {vr(S,16)}, {vr(K+4,4)}, {vr(Q+4,4)}, {vr(S,16)}
    s_mov_b32 s29, 0
    s_nop 7
    s_nop 2
    """)
    stamp(A, 5)
    def chunk(sl, dma, sync, end7=()):
        d = kv_dma((sl + 2) % 3)
        for n in range(8):
            mid, end = None, None
            if n == 4 and sync: mid = {4: ["s_waitcnt vmcnt(0)"] + arrive()}
            if n == 5 and sync:
                c1, c2 = poll_split(A)
                mid = {1: poll_issue(), 3: d[0] if dma else [], 4: c1}; end = c2
            if dma == "test" and n == 6:
                Ls = A.label("kd")
                mid = {0: ["s_cmp_eq_u32 s29, 4", f"s_cbranch_scc1 {Ls}"] + sum(d[1:], []) + [Ls + ":"]}
            elif dma is True:
                if n == 6: mid = {0: d[1], 2: d[2], 4: d[3]}
                if n == 7: mid = {1: d[4]}
            if n == 7: end = list(end7)
            A.extend(attn_slot(n, sl, mid, end))
    L = A.label("att")
    A(L + ":")
    chunk(0, True, True); chunk(1, True, True)
    chunk(2, "test", True, ["s_add_u32 s29, s29, 1", "s_cmp_lt_u32 s29, 5", f"s_cbranch_scc1 {L}"])
    chunk(0, False, False)
    V, Pp, O, Lq = R["V"], R["Pk"] + 8, R["O"] + 16, R["L"] + 4
    A(f"""
    v_cvt_pk_bf16_f32 v{Pp+7}, v{S+30}, v{S+31}
    s_nop 1
    v_mfma_f32_32x32x16_bf16 {vr(O,16)}, {vr(V,4)}, {vr(Pp,4)}, {vr(O,16)}
    v_mfma_f32_32x32x16_bf16 {vr(O,16)}, {vr(V+4,4)}, {vr(Pp+4,4)}, {vr(O,16)}
    v_smfmac_f32_16x16x64_bf16 {vr(Lq,4)}, {vr(R['ONE'],4)}, {vr(Pp,8)}, v{R['IDX']}
    s_nop 7
    s_nop 3
    """)

def attn_finish(A):
    R = RA; t = R["tmp"]; O = R["O"]
    for qb in range(2):
        L = R["L"] + 4 * qb
        A(f"""
        v_add_f32 v{L}, v{L}, v{L+1}
        v_add_f32 v{L+2}, v{L+2}, v{L+3}
        s_nop 1
        v_permlane16_swap_b32 v{L}, v{L+2}
        v_mov_b32 v{t+qb}, v{L}
        s_nop 1
        v_permlane32_swap_b32 v{t+qb}, v{L}
        """)
    LS, LD = A.label("slow"), A.label("fin")
    A(f"v_mov_b32 v{t+8}, 0\nv_mov_b32 v{t+9}, 0\nv_pk_mul_f32 {vr(t+2,2)}, {vr(O,2)}, {vr(t+8,2)}")
    for i in range(1, 16): A(f"v_pk_fma_f32 {vr(t+2,2)}, {vr(O+2*i,2)}, {vr(t+8,2)}, {vr(t+2,2)}")
    A(f"v_add_f32 v{t+2}, v{t+2}, v{t+3}")
    A(f"""
    v_min_f32 v{t+3}, v{t}, v{t+1}
    v_max_f32 v{t+4}, v{t}, v{t+1}
    v_add_f32 v{t+3}, v{t+3}, v{t+2}
    v_add_f32 v{t+4}, v{t+4}, v{t+2}
    v_cmp_nle_f32 vcc, {fhex(2.0**-60)}, v{t+3}
    s_mov_b32 s42, {fhex(2.0**60)}
    v_cmp_nge_f32 s[40:41], s42, v{t+4}
    v_cmp_u_f32 s[42:43], v{t}, v{t+1}
    s_nop 1
    s_or_b64 vcc, vcc, s[40:41]
    s_or_b64 vcc, vcc, s[42:43]
    s_cbranch_vccnz {LS}
    {LD}:
    """)
    B = Asm(); B._lab = 9000
    B(LS + ":"); attn_slow(B); B(f"s_branch {LD}")
    COLD.extend(l.strip() for l in B.lines)
    srd(A, 12, PT["ws"], OF, 4 * MB)
    A(f"""
    v_rcp_f32 v{t+2}, v{t}
    v_rcp_f32 v{t+3}, v{t}
    v_rcp_f32 v{t+4}, v{t+1}
    v_rcp_f32 v{t+5}, v{t+1}
    s_lshl_b32 s6, s22, 3
    s_lshl_b32 s7, s21, 1
    s_add_u32 s6, s6, s7
    s_lshl_b32 s6, s6, 5
    s_add_u32 s6, s6, s25
    s_lshl_b32 s6, s6, 11
    s_add_u32 s7, s6, {32*2048}
    """)
    for qb in range(2):
        for i in range(8): A(f"v_pk_mul_f32 {vr(O+16*qb+2*i,2)}, {vr(O+16*qb+2*i,2)}, {vr(t+2+2*qb,2)}")
        d = R["Pk"] + 8 * qb
        for i in range(8): A(f"v_cvt_pk_bf16_f32 v{d+i}, v{O+16*qb+2*i}, v{O+16*qb+2*i+1}")
        for f in range(2): A(f"buffer_store_dwordx4 {vr(d+4*f,4)}, v{L16}, s[12:15], s{6+qb} offen offset:{1024*f} {SC}")
    A(f"""
    s_lshl_b32 s42, s22, 5
    s_add_u32 s42, s42, s25
    s_lshl_b32 s42, s42, 7
    s_add_u32 s42, s42, {FO}
    s_lshr_b32 s43, s100, 1
    s_lshl_b32 s43, s43, 12
    s_add_u32 s43, s43, {FO}
    """)

def attn_slow(A):
    R = RA; t = R["tmp"]; O, S, P, K, V, Q = R["O"], R["S"], R["Pk"], R["K"], R["V"], R["Q"]
    m = t + 4; al = t + 6; u = t + 7
    L = A.label("sl")
    for i in range(32): A(f"v_mov_b32 v{O+i}, 0")
    A(f"""
    v_mov_b32 v{t}, 0
    v_mov_b32 v{t+1}, 0
    v_mov_b32 v{m}, {fhex(-3.0e38)}
    v_mov_b32 v{m+1}, {fhex(-3.0e38)}
    s_lshl_b32 s26, s25, 17
    s_add_u32 s27, s26, {4*MB}
    s_mov_b32 s29, 64
    {L}:
    buffer_load_dwordx4 {vr(K,4)}, v{L16}, s[8:11], s26 offen {SC}
    buffer_load_dwordx4 {vr(K+4,4)}, v{L16}, s[8:11], s26 offen offset:1024 {SC}
    buffer_load_dwordx4 {vr(V,4)}, v{L16}, s[8:11], s27 offen {SC}
    buffer_load_dwordx4 {vr(V+4,4)}, v{L16}, s[8:11], s27 offen offset:1024 {SC}
    s_add_u32 s26, s26, 2048
    s_add_u32 s27, s27, 2048
    s_waitcnt vmcnt(0)
    """)
    for qb in range(2):
        Oq = O + 16 * qb
        A(f"""
        v_mfma_f32_32x32x16_bf16 {vr(S,16)}, {vr(K,4)}, {vr(Q+8*qb,4)}, 0
        v_mfma_f32_32x32x16_bf16 {vr(S,16)}, {vr(K+4,4)}, {vr(Q+8*qb+4,4)}, {vr(S,16)}
        s_nop 7
        s_nop 3
        v_max3_f32 v{u}, v{S}, v{S+1}, v{m+qb}
        """)
        for i in range(2, 16, 2): A(f"v_max3_f32 v{u}, v{S+i}, v{S+i+1}, v{u}")
        A(f"""
        v_mov_b32 v{al}, v{u}
        s_nop 1
        v_permlane32_swap_b32 v{al}, v{u}
        v_max_f32 v{u}, v{u}, v{al}
        v_sub_f32 v{al}, v{m+qb}, v{u}
        v_exp_f32 v{al}, v{al}
        v_mov_b32 v{m+qb}, v{u}
        """)
        for i in range(16): A(f"v_sub_f32 v{S+i}, v{S+i}, v{u}")
        for i in range(16): A(f"v_exp_f32 v{S+i}, v{S+i}")
        A(f"v_mul_f32 v{t+qb}, v{t+qb}, v{al}")
        for i in range(16): A(f"v_mul_f32 v{Oq+i}, v{Oq+i}, v{al}")
        for i in range(16): A(f"v_add_f32 v{t+qb}, v{t+qb}, v{S+i}")
        for i in range(8): A(f"v_cvt_pk_bf16_f32 v{P+i}, v{S+2*i}, v{S+2*i+1}")
        A(f"""
        s_nop 1
        v_mfma_f32_32x32x16_bf16 {vr(Oq,16)}, {vr(V,4)}, {vr(P,4)}, {vr(Oq,16)}
        v_mfma_f32_32x32x16_bf16 {vr(Oq,16)}, {vr(V+4,4)}, {vr(P+4,4)}, {vr(Oq,16)}
        """)
    A(f"s_sub_u32 s29, s29, 1\ns_cmp_lg_u32 s29, 0\ns_nop 7\ns_cbranch_scc1 {L}\ns_nop 3")
    for qb in range(2):
        A(f"v_mov_b32 v{u}, v{t+qb}\ns_nop 1\nv_permlane32_swap_b32 v{u}, v{t+qb}\nv_add_f32 v{t+qb}, v{t+qb}, v{u}")

def pack2(A, d, a, b, swap):
    A(f"v_cvt_pk_bf16_f32 v{d}, v{a}, v{a+1}\nv_cvt_pk_bf16_f32 v{d+1}, v{a+2}, v{a+3}")
    A(f"v_cvt_pk_bf16_f32 v{d+2}, v{b}, v{b+1}\nv_cvt_pk_bf16_f32 v{d+3}, v{b+2}, v{b+3}")
    A(f"s_nop 1\n{swap} v{d}, v{d+2}\n{swap} v{d+1}, v{d+3}")

def epi_B(A):
    LZ2, LH1, LEND = A.label("z2"), A.label("h1"), A.label("eB")
    CS, TM = 112, 120
    A(f"v_lshrrev_b32 v204, 4, v{LANE}\nv_lshlrev_b32 v204, 4, v204\nv_add_u32 v204, {GB['tab']}, v204")
    for ft in range(7): A(f"ds_read_b128 {vr(160+4*ft,4)}, v204 offset:{64*ft}")
    bcast4(A, 212, 188); bcast4(A, 214, 196)
    A("s_waitcnt lgkmcnt(0)")
    for st in range(4):
        for i in range(14): A(f"v_pk_mul_f32 {vr(120+2*i,2)}, {vr(160+2*i,2)}, {vr(196+2*st,2)}")
        for i in range(14): A(f"v_pk_fma_f32 {vr(st*28+2*i,2)}, {vr(st*28+2*i,2)}, {vr(188+2*st,2)}, {vr(120+2*i,2)}")
    for i, c in enumerate((GC0, GC0, GC1, GC1)): A(f"v_mov_b32 v{CS+i}, {fhex(c)}")
    A(f"v_mov_b32 v{CS+4}, 1.0\nv_mov_b32 v{CS+5}, 1.0\ns_nop 1")
    gelu_pairs(A, list(range(0, 112, 2)), TM, CS)
    stamp(A, 3)
    A(f"s_mov_b32 s16, 4096\ns_mov_b32 s17, 8192\ns_mov_b32 s18, 12288\ns_cmp_ge_u32 s24, 2\ns_cbranch_scc1 {LZ2}")
    so = lambda k: ("0", "s16", "s17", "s18")[k >> 2]
    srd(A, 12, PT["ws"], Z1F, ZBYTES)
    A(f"""
    v_and_b32 v130, 15, v{LANE}
    v_lshrrev_b32 v131, 5, v{LANE}
    v_lshl_add_u32 v130, v131, 4, v130
    v_bfe_u32 v131, v{LANE}, 4, 1
    v_lshl_add_u32 v130, v131, 5, v130
    v_lshlrev_b32 v130, 4, v130
    s_lshl_b32 s3, s23, 6
    s_lshl_b32 s6, s22, 3
    s_add_u32 s3, s3, s6
    s_lshl_b32 s6, s21, 1
    s_add_u32 s3, s3, s6
    s_lshl_b32 s3, s3, 1
    s_add_u32 s3, s3, s24
    s_mul_i32 s3, s3, 7168
    v_add_u32 v130, s3, v130
    v_add_u32 v131, {7*2048}, v130
    """)
    k = 0
    for sp in range(2):
        for ft in range(7):
            d = 136 + 4 * (k % 4); k += 1
            pack2(A, d, ((2 * sp) * 7 + ft) * 4, ((2 * sp + 1) * 7 + ft) * 4, "v_permlane32_swap_b32")
            A(f"buffer_store_dwordx4 {vr(d,4)}, v{130+sp}, s[12:15], {so(ft)} offen offset:{(ft&3)*1024} {SC}")
    A(f"s_branch {LEND}\n{LZ2}:")
    S = 128
    for st in range(4): A(f"v_pk_add_f32 {vr(S+2*st,2)}, {vr(st*28,2)}, {vr(st*28+2,2)}")
    for i in range(2, 14):
        for st in range(4): A(f"v_pk_add_f32 {vr(S+2*st,2)}, {vr(S+2*st,2)}, {vr(st*28+2*i,2)}")
    for st in range(4): A(f"v_add_f32 v{136+st}, v{S+2*st}, v{S+2*st+1}")
    reduce4(A, 136)
    A(f"v_mul_f32 v137, {fhex(-1/112)}, v136")
    bcast4(A, 137, 140)
    for i in range(14):
        for st in range(4): A(f"v_pk_add_f32 {vr(148+2*st,2)}, {vr(st*28+2*i,2)}, {vr(140+2*st,2)}")
        for st in range(4):
            if i == 0: A(f"v_pk_mul_f32 {vr(S+2*st,2)}, {vr(148+2*st,2)}, {vr(148+2*st,2)}")
            else: A(f"v_pk_fma_f32 {vr(S+2*st,2)}, {vr(148+2*st,2)}, {vr(148+2*st,2)}, {vr(S+2*st,2)}")
    for st in range(4): A(f"v_add_f32 v{156+st}, v{S+2*st}, v{S+2*st+1}")
    reduce4(A, 156)
    if OPT.get("hs") == 10: stamp(A, 7, force=True)
    srd(A, 12, PT["ws"], STAT, 16 * 2048 * 16)
    Lp, Lpd = A.label("stp"), A.label("std")
    A(f"""
    v_mov_b32 v137, s31
    v_mov_b32 v138, v156
    v_mov_b32 v139, s31
    s_lshl_b32 s6, s22, 8
    s_lshl_b32 s7, s21, 6
    s_add_u32 s6, s6, s7
    s_lshl_b32 s6, s6, 4
    v_add_u32 v160, s6, v{L16}
    s_lshl_b32 s3, s23, 1
    s_add_u32 s3, s3, s24
    s_sub_u32 s3, s3, 2
    s_lshl_b32 s3, s3, 15
    buffer_store_dwordx4 v[136:139], v160, s[12:15], s3 offen {SC}
    s_mov_b32 s97, 0x8000
    v_and_b32 v161, 15, v{LANE}
    v_lshlrev_b32 v161, 15, v161
    s_add_u32 s6, s6, {63*16+12}
    {Lp}:
    buffer_load_dword v162, v161, s[12:15], s6 offen {SC}
    s_sub_u32 s97, s97, 1
    s_cmp_eq_u32 s97, 0
    s_cbranch_scc1 {Lpd}
    s_waitcnt vmcnt(0)
    v_cmp_ne_u32 vcc, s31, v162
    s_cbranch_vccz {Lp}f
    s_sleep 4
    s_branch {Lp}
    {Lp}f:
    """)
    G = 164
    if OPT.get("hs") == 10: stamp(A, 8, force=True)
    for ct in range(16): A(f"s_mov_b32 s3, {ct*32768}\nbuffer_load_dwordx4 {vr(G+4*ct,4)}, v160, s[12:15], s3 offen {SC}")
    A("s_waitcnt vmcnt(0)")
    A(f"v_xor_b32 v163, s31, v{G+1}")
    for ct in range(16):
        for u in (1, 3):
            if ct or u == 3: A(f"v_xor_b32 v162, s31, v{G+4*ct+u}\nv_or_b32 v163, v163, v162")
    A(f"""
    v_cmp_ne_u32 vcc, 0, v163
    s_cbranch_vccnz {Lp}
    {Lpd}:
    s_waitcnt vmcnt(0)
    """)
    if OPT.get("hs") == 10: stamp(A, 9, force=True)
    for ct in range(16): A(f"v_mov_b32 v{128+2*ct}, v{G+4*ct}\nv_mov_b32 v{129+2*ct}, v{G+4*ct+2}")
    stats_combine(A, 128, 160)
    A("v_mul_f32 v160, v160, v161\nv_sub_f32 v160, 0, v160")
    bcast4(A, 161, 128); bcast4(A, 160, 136)
    for i in range(14):
        for st in range(4): A(f"v_pk_fma_f32 {vr(st*28+2*i,2)}, {vr(st*28+2*i,2)}, {vr(128+2*st,2)}, {vr(136+2*st,2)}")
    srd(A, 12, PT["ws"], Z2N, ZBYTES)
    A(f"""
    s_lshl_b32 s3, s23, 5
    s_lshl_b32 s6, s22, 2
    s_add_u32 s3, s3, s6
    s_add_u32 s3, s3, s21
    s_lshl_b32 s3, s3, 1
    s_and_b32 s6, s24, 1
    s_add_u32 s3, s3, s6
    s_mul_i32 s3, s3, 14336
    v_lshrrev_b32 v146, 4, v{LANE}
    v_lshlrev_b32 v146, 6, v146
    v_xor_b32 v146, v146, v{L16}
    v_add_u32 v146, s3, v146
    v_bfe_u32 v147, v{LANE}, 4, 1
    v_lshrrev_b32 v148, 5, v{LANE}
    v_lshl_add_u32 v147, v147, 1, v148
    v_lshlrev_b32 v147, 6, v147
    v_xor_b32 v147, v147, v{L16}
    v_add_u32 v147, s3, v147
    s_cmp_eq_u32 s24, 3
    s_cbranch_scc1 {LH1}
    """)
    for half in range(2):
        n = 0
        for st in range(4):
            for p in range(3):
                ft = 2 * p + half; k = st * 3 + p; d = 148 + 4 * (n % 4); n += 1
                pack2(A, d, (st * 7 + ft) * 4, (st * 7 + ft + 1) * 4, "v_permlane16_swap_b32")
                A(f"buffer_store_dwordx4 {vr(d,4)}, v146, s[12:15], {so(k)} offen offset:{(k&3)*1024} {SC}")
            if st & 1:
                ft = 6 if half == 0 else 0; k = 12 + st // 2; d = 148 + 4 * (n % 4); n += 1
                pack2(A, d, ((st - 1) * 7 + ft) * 4, (st * 7 + ft) * 4, "v_permlane16_swap_b32")
                A(f"buffer_store_dwordx4 {vr(d,4)}, v147, s[12:15], {so(k)} offen offset:{(k&3)*1024} {SC}")
        if half == 0: A(f"s_branch {LEND}\n{LH1}:")
    A(f"""
    {LEND}:
    s_lshl_b32 s43, s23, 12
    s_add_u32 s43, s43, {FZ}
    s_lshl_b32 s42, s36, 7
    s_add_u32 s42, s42, s43
    """)

ZS = 14336; WS_ = 16384; SPZ = BREG; SPWR = BREG + 4 * ZS
RB = dict(fr=56, za=232, wa=236, w16=240, dz=251, dw=252, tmp=64)

def sp_dma_w(slot):
    R = RB
    g = [[f"buffer_load_dwordx4 v{R['dw']+j}, s[12:15], s27 offen offset:{j*1024} lds"] for j in range(4)]
    g[0] = [f"s_add_u32 m0, s30, {SPWR + slot * WS_}", "s_nop 0"] + g[0]
    g[3] += ["s_add_u32 s27, s27, 128"]
    return g
def sp_dma_z(slot):
    R = RB
    g = [[f"buffer_load_dwordx4 v{R['dz']}, s[8:11], s26 offen offset:{j*1024} {SC} lds"] for j in range(4)]
    g[0] = [f"s_add_u32 m0, s28, {SPZ + slot * ZS}", "s_nop 0"] + g[0]
    g[3] = ["s_mov_b64 exec, s[98:99]"] + g[3] + ["s_mov_b64 exec, -1", "s_add_u32 s26, s26, 28672"]
    return g
def sp_reads(t):
    R = RB; f = R["fr"] + 88 * (t & 1); rd = []; zo = (t & 3) * ZS; wo = (t % 3) * WS_
    for ks in range(4):
        rd.append(f"ds_read_b128 {vr(f+4*ks,4)}, v{R['wa']+ks} offset:{wo}")
        for p in range(3):
            for hf in range(2): rd.append(f"ds_read_b64_tr_b16 {vr(f+16+12*ks+4*p+2*hf,2)}, v{R['za']+hf} offset:{zo+(3*ks+p)*1024}")
        if ks & 1:
            u = ks >> 1
            for hf in range(2): rd.append(f"ds_read_b64_tr_b16 {vr(f+64+4*u+2*hf,2)}, v{R['za']+2+hf} offset:{zo+(12+u)*1024}")
            for a in range(2): rd.append(f"ds_read_b128 {vr(f+72+8*u+4*a,4)}, v{R['w16']+u} offset:{wo+2048*a}")
    return rd
def sp_mfma(buf):
    f = RB["fr"] + 88 * buf
    big = lambda ks, p: [f"v_mfma_f32_32x32x16_bf16 {vr(16*p,16)}, {vr(f+16+12*ks+4*p,4)}, {vr(f+4*ks,4)}, {vr(16*p,16)}"]
    sm = lambda u, a: [f"v_mfma_f32_16x16x32_bf16 {vr(48+4*a,4)}, {vr(f+64+4*u,4)}, {vr(f+72+8*u+4*a,4)}, {vr(48+4*a,4)}"]
    if OPT.get("smp"): return [big(0, 0), big(0, 1), big(0, 2), big(1, 0), sm(0, 0) + sm(0, 1), [], big(1, 1), big(1, 2), big(2, 0), big(2, 1), big(2, 2), sm(1, 0) + sm(1, 1), [], big(3, 0), big(3, 1), big(3, 2)]
    return [big(0, 0), big(0, 1), big(0, 2), sm(0, 0), big(1, 0), big(1, 1), big(1, 2), sm(0, 1), big(2, 0), big(2, 1), big(2, 2), sm(1, 0), big(3, 0), big(3, 1), sm(1, 1), big(3, 2)]

def sp_setup(A):
    R = RB; t = R["tmp"]; za = R["za"]
    srd(A, 8, PT["ws"], Z2N, ZBYTES); srd(A, 12, PT["wsp"], 0, 2048 * 4096)
    A(f"""
    s_and_b32 s39, s36, 1
    s_lshr_b32 s40, s36, 1
    s_lshl_b32 s40, s40, 2
    s_add_u32 s40, s40, s21
    s_lshl_b32 s28, s21, 12
    s_cmp_eq_u32 s21, 3
    s_cmov_b32 s28, {11*1024}
    s_cmp_lt_u32 s21, 2
    s_cselect_b32 s98, -1, 0
    s_mov_b32 s99, s98
    s_mul_i32 s3, s23, {32*28672}
    s_mul_i32 s6, s39, {ZS}
    s_add_u32 s3, s3, s6
    s_add_u32 s3, s3, s28
    v_add_u32 v{R['dz']}, s3, v{L16}
    s_lshl_b32 s3, s40, 5
    v_lshrrev_b32 v{t}, 3, v{LANE}
    v_add_u32 v{t}, s3, v{t}
    v_lshlrev_b32 v{t}, 12, v{t}
    v_lshrrev_b32 v{t+1}, 4, v{LANE}
    v_and_b32 v{t+2}, 7, v{LANE}
    v_xor_b32 v{t+1}, v{t+1}, v{t+2}
    v_lshl_add_u32 v{R['dw']}, v{t+1}, 4, v{t}
    v_xor_b32 v{t+1}, 4, v{t+1}
    v_lshl_add_u32 v{R['dw']+1}, v{t+1}, 4, v{t}
    v_add_u32 v{R['dw']+2}, {2*(8*4096-1024)}, v{R['dw']}
    v_add_u32 v{R['dw']+3}, {3*(8*4096-1024)}, v{R['dw']+1}
    v_add_u32 v{R['dw']+1}, {8*4096-1024}, v{R['dw']+1}
    s_lshl_b32 s30, s21, 12
    s_mov_b32 s26, 0
    s_mov_b32 s27, 0
    v_lshrrev_b32 v{t}, 5, v{LANE}
    v_bfe_u32 v{t+1}, v{LANE}, 2, 2
    v_lshl_add_u32 v{t+1}, v{t}, 3, v{t+1}
    v_bfe_u32 v{t+2}, v{LANE}, 4, 1
    v_bfe_u32 v{t+3}, v{LANE}, 1, 1
    v_lshl_add_u32 v{t+4}, v{t+3}, 1, v{t+2}
    v_lshlrev_b32 v{t+5}, 2, v{t+4}
    v_xor_b32 v{t+5}, v{t+5}, v{t+1}
    v_lshlrev_b32 v{t+5}, 4, v{t+5}
    v_and_b32 v{t+6}, 1, v{LANE}
    v_lshl_add_u32 v{t+5}, v{t+6}, 3, v{t+5}
    v_lshl_add_u32 v{za}, v{t+4}, 8, v{t+5}
    v_xor_b32 v{za+1}, 64, v{za}
    ; strip (16x16x32 operand): row 8(g&1)+rr of tile parity g>>1, producer group gp = (g>>1) + 2(cc>>1), swizzle 4*((gp>>1) + 2(gp&1))
    v_xor_b32 v{t+4}, v{t+2}, v{t}
    v_lshlrev_b32 v{t+4}, 1, v{t+4}
    v_add_u32 v{t+4}, v{t+4}, v{t+3}
    v_bfe_u32 v{t+5}, v{LANE}, 2, 2
    v_lshl_add_u32 v{t+4}, v{t+4}, 2, v{t+5}
    v_lshlrev_b32 v{t+4}, 4, v{t+4}
    v_lshl_add_u32 v{t+4}, v{t+6}, 3, v{t+4}
    v_lshl_add_u32 v{t+4}, v{t}, 8, v{t+4}
    v_lshl_add_u32 v{za+2}, v{t+3}, 9, v{t+4}
    v_xor_b32 v{za+3}, 64, v{za+2}
    v_and_b32 v{t+4}, 15, v{LANE}
    v_lshrrev_b32 v{t+5}, 1, v{t+4}
    v_lshrrev_b32 v{t+7}, 4, v{LANE}
    v_xor_b32 v{t+5}, v{t+5}, v{t+7}
    v_lshlrev_b32 v{t+4}, 7, v{t+4}
    v_lshl_add_u32 v{t+4}, v{t+5}, 4, v{t+4}
    s_add_u32 s3, s30, {SPWR}
    v_add_u32 v{R['w16']}, s3, v{t+4}
    v_xor_b32 v{R['w16']+1}, 64, v{R['w16']}
    v_and_b32 v{t+1}, 31, v{LANE}
    v_bfe_u32 v{t+2}, v{LANE}, 1, 3
    v_xor_b32 v{t}, v{t}, v{t+2}
    v_lshlrev_b32 v{t+1}, 7, v{t+1}
    v_lshl_add_u32 v{t+1}, v{t}, 4, v{t+1}
    s_add_u32 s3, s30, {SPWR}
    v_add_u32 v{R['wa']}, s3, v{t+1}
    v_xor_b32 v{R['wa']+1}, 32, v{R['wa']}
    v_xor_b32 v{R['wa']+2}, 64, v{R['wa']}
    v_xor_b32 v{R['wa']+3}, 96, v{R['wa']}
    """)
    for i in range(4): A(f"v_add_u32 v{za+i}, {SPZ}, v{za+i}")
    for i in range(56): A(f"v_mov_b32 v{i}, 0")

def mix(rd, dm, every):
    fill = []; dm = list(dm)
    for i, r_ in enumerate(rd):
        fill.append(r_)
        if i % every == every - 1 and dm: fill.append(dm.pop(0))
    return fill + dm
def weave(main, fill):
    out = []; k = 0
    for i, g in enumerate(main):
        out += g
        tgt = ((i + 1) * len(fill) + len(main) - 1) // len(main)
        while k < tgt:
            out += [fill[k]] if isinstance(fill[k], str) else fill[k]; k += 1
    return out

def sp_wpre(A):
    for c in range(3):
        for g in sp_dma_w(c): A.extend(g)
    return 12
def sp_main(A):
    for c in range(4):
        for g in sp_dma_z(c): A.extend(g)
    A("s_waitcnt vmcnt(12)")
    gsync(A)
    A.extend(sp_reads(0))
    A("s_waitcnt vmcnt(8)")
    A.extend(arrive()); A.extend(poll_issue())
    stamp(A, 6)
    NR = OPT.get("spr", 11)
    def stage(t):
        m = sp_mfma(t & 1)
        if t == 31: return ["s_waitcnt lgkmcnt(0)"] + sum(m, [])
        cw = lambda u: 4 if 0 <= u and u + 3 < 32 else 0
        cz = lambda u: 4 if 0 <= u and u + 4 < 32 else 0
        dw = sp_dma_w(t % 3) if cw(t) else []; dz = sp_dma_z(t & 3) if cz(t) else []
        o = []
        if t >= 2: o.append(f"s_waitcnt vmcnt({cz(t-2) + cw(t-1) + cz(t-1)})")
        if "sw" in OPT and t == OPT["sw"]: o.append(f"s_setprio {OPT.get('swp', 0)}")
        o += poll_check(A)
        o += weave(m[:NR], mix(sp_reads(t + 1), dw, 9))
        if t < 30:
            vm = (4 if t == 0 else cw(t-1) + cz(t-1) if t > 1 else 8) + cw(t)
            o += [f"s_waitcnt vmcnt({vm})"] + arrive()
        o += weave(m[NR:15], dz)
        if t < 30: o += poll_issue()
        return o + m[15] + itr(3)
    itr0(A, 3)
    for t in range(2): A.extend(stage(t))
    L = A.label("sp")
    A(f"s_mov_b32 s29, 2\n{L}:")
    for t in range(2, 14): A.extend(stage(t))
    A(f"s_sub_u32 s29, s29, 1\ns_cmp_lg_u32 s29, 0\ns_cbranch_scc1 {L}")
    for t in range(26, 30): A.extend(stage(t))
    A.extend(stage(30))
    sp_epi_loads(A)
    A.extend(stage(31))

ZB = 56
def sp_epi_loads(A):
    srd(A, 16, PT["ws"], Z1F, ZBYTES)
    A(f"""
    s_lshl_b32 s3, s23, 6
    s_add_u32 s3, s3, s40
    s_mul_i32 s3, s3, {7*2048}
    s_lshl_b32 s6, s39, 13
    s_add_u32 s6, s6, s3
    s_add_u32 s7, s6, 4096
    s_lshl_b32 s41, s39, 10
    s_add_u32 s41, s41, 6144
    s_add_u32 s3, s3, s41
    """)
    for i in range(6): A(f"buffer_load_dwordx4 {vr(ZB+4*i,4)}, v{L16}, s[16:19], s{6+(i>>2)} offen offset:{(i&3)*1024} {SC}")
    A(f"""
    v_and_b32 v251, 15, v{LANE}
    v_lshrrev_b32 v252, 5, v{LANE}
    v_lshl_add_u32 v251, v252, 4, v251
    v_bfe_u32 v252, v{LANE}, 4, 1
    v_lshl_add_u32 v252, v252, 5, v251
    v_lshlrev_b32 v252, 4, v252
    buffer_load_dwordx4 {vr(ZB+24,4)}, v252, s[16:19], s3 offen {SC}
    """)
    srd(A, 16, PT["bsp"], 0, 4096)
    A(f"""
    s_lshl_b32 s3, s40, 6
    v_lshlrev_b32 v251, 1, v251
    v_and_b32 v254, 31, v{LANE}
    v_lshlrev_b32 v254, 1, v254
    buffer_load_ushort v251, v251, s[16:19], s3 offen
    buffer_load_ushort v254, v254, s[16:19], s3 offen
    """)

def sp_epi(A):
    D = 88; P = 104
    srd(A, 16, PT["ws"], UF, ZBYTES)
    A(f"""
    s_mul_i32 s3, s40, 56
    s_mul_i32 s6, s23, 7
    s_add_u32 s3, s3, s6
    s_lshl_b32 s3, s3, 11
    s_lshl_b32 s6, s39, 13
    s_add_u32 s6, s6, s3
    s_add_u32 s7, s6, 4096
    s_add_u32 s3, s3, s41
    s_waitcnt vmcnt(0)
    v_lshlrev_b32 v254, 16, v254
    v_lshlrev_b32 v240, 16, v251
    v_mov_b32 v255, v254
    v_mov_b32 v241, v240
    """)
    for p in range(4):
        a = 16 * p; n = 8 if p < 3 else 4
        if p == 3:
            for i in range(4): A(f"v_permlane32_swap_b32 v{48+i}, v{52+i}")
        for q in range(n): A(f"v_lshlrev_b32 v{D+2*q}, 16, v{ZB+8*p+q}\nv_and_b32 v{D+2*q+1}, 0xffff0000, v{ZB+8*p+q}")
        for q in range(n): A(f"v_pk_add_f32 {vr(a+2*q,2)}, {vr(a+2*q,2)}, {'v[254:255]' if p < 3 else 'v[240:241]'}")
        for q in range(n): A(f"v_pk_mul_f32 {vr(a+2*q,2)}, {vr(a+2*q,2)}, {vr(D+2*q,2)}")
        for q in range(n): A(f"v_cvt_pk_bf16_f32 v{P+8*p+q}, v{a+2*q}, v{a+2*q+1}")
        if p < 3:
            for f in range(2): A(f"buffer_store_dwordx4 {vr(P+8*p+4*f,4)}, v{L16}, s[16:19], s{6+((2*p+f)>>2)} offen offset:{((2*p+f)&3)*1024} {SC}")
    A(f"""
    buffer_store_dwordx4 {vr(P+24,4)}, v252, s[16:19], s3 offen {SC}
    s_lshr_b32 s42, s36, 1
    s_lshl_b32 s42, s42, 3
    s_add_u32 s42, s42, s23
    s_lshl_b32 s42, s42, 1
    s_add_u32 s42, s42, s39
    s_lshl_b32 s42, s42, 7
    s_add_u32 s42, s42, {FU}
    s_lshl_b32 s43, s100, 11
    s_add_u32 s43, s43, {FU}
    """)

FWS = 8192
def FP(role):
    if role == "A": return dict(ns=6, na=4, da=3, dw=5, nst=16)
    d = OPT.get("fda", 5)
    return dict(ns=8, na=8, da=d, dw=d + 2, nst=28)
RF = dict(wf=32, af=96, wa=224, da=226, dw=227, tmp=230, x=232)
def f_loads(role, t, w=True, a=True):
    R = RF; P = FP(role); g = []
    if w:
        g.append([f"s_add_u32 m0, s30, {FREG[role] + ((t + P['dw']) % P['ns']) * FWS}", "s_nop 0", f"buffer_load_dwordx4 v{R['dw']}, s[12:15], s27 offen lds"])
        g.append([f"buffer_load_dwordx4 v{R['dw']+1}, s[12:15], s27 offen offset:1024 lds", "s_add_u32 s27, s27, 131072"])
    if a:
        f = R["af"] + 16 * ((t + P["da"]) % P["na"])
        for ks in range(4):
            g.append([f"buffer_load_dwordx4 {vr(f+4*ks,4)}, v{R['da']}, s[8:11], s26 offen offset:{ks*1024} {SC}"] + (["s_add_u32 s26, s26, 4096"] if ks == 3 else []))
    return g
def f_reads(role, t):
    R = RF; f = R["wf"] + 32 * (t & 1); so = (t % FP(role)["ns"]) * FWS
    return [f"ds_read_b64_tr_b16 {vr(f+8*ks+4*nb+2*hf,2)}, v{R['wa']+nb} offset:{so+(16*ks+8*hf)*128}" for ks in range(4) for nb in range(2) for hf in range(2)]
def f_mfma(role, t):
    R = RF; f = R["wf"] + 32 * (t & 1); af = R["af"] + 16 * (t % FP(role)["na"])
    return [f"v_mfma_f32_32x32x16_bf16 {vr(16*nb,16)}, {vr(f+8*ks+4*nb,4)}, {vr(af+4*ks,4)}, {vr(16*nb,16)}" for ks in range(4) for nb in range(2)]

def f_setup(A, role):
    R = RF; t = 96; base = FREG[role]
    nkb = 32 if role == "A" else 56
    srd(A, 8, PT["ws"], OF if role == "A" else UF, 64 * nkb * 2048)
    srd(A, 12, PT["wo" if role == "A" else "wout"], 0, nkb * 32 * 2048)
    A(f"""
    s_lshl_b32 s3, s100, 2
    s_add_u32 s3, s3, s21
    s_mul_i32 s3, s3, {nkb*2048}
    v_add_u32 v{R['da']}, s3, v{L16}
    v_lshrrev_b32 v{t+1}, 3, v{LANE}
    s_lshl_b32 s3, s21, 4
    v_add_u32 v{t+1}, s3, v{t+1}
    v_lshlrev_b32 v{t+1}, 11, v{t+1}
    v_bfe_u32 v{t+2}, v{LANE}, 4, 1
    v_lshlrev_b32 v{t+2}, 2, v{t+2}
    v_and_b32 v{t+3}, 7, v{LANE}
    v_xor_b32 v{t+2}, v{t+2}, v{t+3}
    v_lshl_add_u32 v{t+1}, v{t+2}, 4, v{t+1}
    s_lshl_b32 s3, s101, 7
    v_add_u32 v{R['dw']}, s3, v{t+1}
    v_add_u32 v{R['dw']+1}, {8*2048-1024}, v{R['dw']}
    s_lshl_b32 s30, s21, 11
    s_mov_b32 s26, 0
    s_mov_b32 s27, 0
    v_lshrrev_b32 v{t+1}, 5, v{LANE}
    v_bfe_u32 v{t+2}, v{LANE}, 2, 2
    v_lshl_add_u32 v{t+1}, v{t+1}, 2, v{t+2}
    v_lshlrev_b32 v{t+1}, 7, v{t+1}
    v_lshrrev_b32 v{t+2}, 1, v{t+2}
    v_lshl_add_u32 v{t+1}, v{t+2}, 6, v{t+1}
    v_bfe_u32 v{t+2}, v{LANE}, 4, 1
    v_lshl_add_u32 v{t+1}, v{t+2}, 5, v{t+1}
    v_and_b32 v{t+2}, 3, v{LANE}
    v_lshl_add_u32 v{t+1}, v{t+2}, 3, v{t+1}
    v_add_u32 v{R['wa']}, {base}, v{t+1}
    v_xor_b32 v{R['wa']+1}, 64, v{R['wa']}
    """)
    for i in range(32): A(f"v_mov_b32 v{i}, 0")

def f_wpre(A, role):
    t = RF["tmp"]; X = RF["x"]; P = FP(role)
    srd(A, 16, PT["x"], 0, 4 * MB)
    A(f"""
    s_lshl_b32 s3, s100, 2
    s_add_u32 s3, s3, s21
    s_lshl_b32 s3, s3, 5
    v_and_b32 v{t}, 31, v{LANE}
    v_add_u32 v{t}, s3, v{t}
    v_lshlrev_b32 v{t}, 11, v{t}
    v_lshrrev_b32 v{t+1}, 5, v{LANE}
    v_lshl_add_u32 v{t}, v{t+1}, 4, v{t}
    s_lshl_b32 s3, s101, 7
    s_add_u32 s3, s3, {0 if role == 'A' else 64}
    v_add_u32 v{t}, s3, v{t}
    buffer_load_dwordx4 {vr(X,4)}, v{t}, s[16:19], 0 offen
    buffer_load_dwordx4 {vr(X+4,4)}, v{t}, s[16:19], 0 offen offset:32
    """)
    for c in range(P["dw"]):
        for g in f_loads(role, c - P["dw"], True, False): A.extend(g)
    return 2 + 2 * P["dw"]

def f_main(A, role):
    P = FP(role); nst, DA, DW = P["nst"], P["da"], P["dw"]
    for c in range(DA):
        for g in f_loads(role, c - DA, False, True): A.extend(g)
    A(f"s_waitcnt vmcnt({4*DA})")
    gsync(A)
    A.extend(f_reads(role, 0))
    A.extend(arrive()); A.extend(poll_issue())
    stamp(A, 8)
    def stage(t):
        m = f_mfma(role, t)
        def cnt(u): return (2 if u + DW < nst else 0) + (4 if u + DA < nst else 0)
        vm = sum(cnt(u) if u >= 0 else 4 for u in range(t - DA + 1, t))
        if t == nst - 1: return [f"s_waitcnt vmcnt(0) lgkmcnt(0)"] + m
        o = [f"s_waitcnt vmcnt({vm})"] + poll_check(A) + arrive()
        o += interleave(m[:6], mix(f_reads(role, t + 1), f_loads(role, t, t + DW < nst, t + DA < nst), 3))
        o += [m[6]] + poll_issue() + [m[7]]
        return o
    if role == "A":
        for t in range(nst): A.extend(stage(t))
        return
    for t in range(5): A.extend(stage(t))
    L = A.label("fin" + role)
    A(f"s_mov_b32 s29, 2\n{L}:")
    for t in range(5, 13): A.extend(stage(t))
    A(f"s_sub_u32 s29, s29, 1\ns_cmp_lg_u32 s29, 0\ns_cbranch_scc1 {L}")
    for t in range(21, nst): A.extend(stage(t))

def f_epi(A, role):
    t = 100; keep = 0 if role == "A" else 16; give = 16 - keep
    X = RF["x"]; Y = 32; E = 64; C = 96
    srd(A, 12, PT["out"], 0, 4 * MB)
    A(f"""
    s_lshl_b32 s3, s21, 12
    v_add_u32 v{t+3}, s3, v{L16}
    v_add_u32 v{t+2}, {XCH[role]}, v{t+3}
    v_add_u32 v{t+3}, {XCH["B" if role == "A" else "A"]}, v{t+3}
    """)
    for p in range(2): A(f"v_permlane32_swap_b32 v{X+4*p}, v{X+4*p+2}\nv_permlane32_swap_b32 v{X+4*p+1}, v{X+4*p+3}")
    def silu(b):
        for i in range(8): A(f"v_pk_mul_f32 {vr(E+2*i,2)}, {vr(b+2*i,2)}, {vr(C,2)}")
        for i in range(16): A(f"v_exp_f32 v{E+i}, v{E+i}")
        for i in range(8): A(f"v_pk_add_f32 {vr(E+2*i,2)}, {vr(E+2*i,2)}, {vr(C+2,2)}")
        for i in range(16): A(f"v_rcp_f32 v{E+i}, v{E+i}")
        for i in range(8): A(f"v_pk_mul_f32 {vr(b+2*i,2)}, {vr(b+2*i,2)}, {vr(E+2*i,2)}")
    if role == "B":
        A(f"v_mov_b32 v{C}, {fhex(-LOG2E)}\nv_mov_b32 v{C+1}, {fhex(-LOG2E)}\nv_mov_b32 v{C+2}, 1.0\nv_mov_b32 v{C+3}, 1.0")
        silu(give)
    else: A("s_nop 0")
    for q in range(4): A(f"ds_write_b128 v{t+2}, {vr(give+4*q,4)} offset:{q*1024}")
    if role == "B": silu(keep)
    for i in range(8): A(f"v_lshlrev_b32 v{E+2*i}, 16, v{X+i}\nv_and_b32 v{E+2*i+1}, 0xffff0000, v{X+i}")
    A("s_waitcnt lgkmcnt(0)\ns_barrier")
    for q in range(4): A(f"ds_read_b128 {vr(Y+4*q,4)}, v{t+3} offset:{q*1024}")
    for q in range(2):
        A(f"s_waitcnt lgkmcnt({2-2*q})")
        for i in range(4 * q, 4 * q + 4): A(f"v_pk_fma_f32 {vr(E+2*i,2)}, {vr(keep+2*i,2)}, {vr(Y+2*i,2)}, {vr(E+2*i,2)}")
        for i in range(4 * q, 4 * q + 4): A(f"v_cvt_pk_bf16_f32 v{X+i}, v{E+2*i}, v{E+2*i+1}")
        A(f"s_nop 1\nv_permlane32_swap_b32 v{X+4*q}, v{X+4*q+2}\nv_permlane32_swap_b32 v{X+4*q+1}, v{X+4*q+3}")
        A(f"buffer_store_dwordx4 {vr(X+4*q,4)}, v{RF['tmp']}, s[12:15], 0 offen offset:{32*q}")

def code_touch(A):
    A(f"""
    s_getpc_b64 s[6:7]
    L_pc:
    s_sub_u32 s12, s6, L_pc-{NAME}
    s_subb_u32 s13, s7, 0
    s_mov_b32 s14, L_codeend-{NAME}
    s_mov_b32 s15, 0x00020000
    v_lshlrev_b32 v212, 7, v{LANE}
    s_mul_i32 s3, s21, 24576
    buffer_load_dword v213, v212, s[12:15], s3 offen
    s_add_u32 s3, s3, 8192
    buffer_load_dword v213, v212, s[12:15], s3 offen
    s_add_u32 s3, s3, 8192
    buffer_load_dword v213, v212, s[12:15], s3 offen
    """)

def tlb_touch(A):
    L = A.label("tl")
    A(f"s_cmp_lg_u32 s21, 3\ns_cbranch_scc1 {L}")
    srd(A, 12, PT["ws"], 0, 58 * MB)
    A(f"v_lshlrev_b32 v212, 20, v{LANE}\nbuffer_load_dword v213, v212, s[12:15], 0 offen")
    srd(A, 12, PT["out"], 0, 4 * MB)
    A(f"buffer_load_dword v213, v212, s[12:15], 0 offen\n{L}:")

def mall_setup(A):
    A(f"""
    s_cmp_lt_u32 s21, 2
    s_cselect_b32 s16, s{PT['wsp']}, s{PT['wout']}
    s_cselect_b32 s17, s{PT['wsp']+1}, s{PT['wout']+1}
    s_mov_b32 s18, {112*128}
    s_cmov_b32 s18, {128*128}
    s_cmp_eq_u32 s21, 3
    s_cselect_b32 s16, s{PT['wo']}, s16
    s_cselect_b32 s17, s{PT['wo']+1}, s17
    s_cmov_b32 s18, {64*128}
    s_cmp_eq_u32 s21, 1
    s_cselect_b32 s3, 256, 0
    s_add_u32 s3, s3, s2
    s_mul_i32 s3, s3, s18
    s_add_u32 s16, s16, s3
    s_addc_u32 s17, s17, 0
    s_mov_b32 s19, 0x00020000
    v_lshlrev_b32 v210, 7, v{LANE}
    s_mov_b32 s30, 0
    s_mul_i32 s3, s36, {magic_div(OPT.get('mp', 5), 31)[0]}
    s_lshr_b32 s3, s3, {magic_div(OPT.get('mp', 5), 31)[1]}
    s_mul_i32 s3, s3, {OPT.get('mp', 5)}
    s_sub_u32 s43, s36, s3
    s_add_u32 s43, s43, {OPT.get('m0', 1)}
    """)

def mall_warm(A):
    L = A.label("mw"); t = RB["tmp"]
    A(f"s_cmp_ge_u32 s24, 2\ns_cbranch_scc1 {L}\ns_lshl_b32 s3, s2, 2\ns_add_u32 s3, s3, s21\nv_lshlrev_b32 v{t}, 7, v{LANE}")
    A(f"s_lshl_b32 s6, s3, 14\nbuffer_load_dword v{t+1}, v{t}, s[12:15], s6 offen\ns_add_u32 s6, s6, 8192\nbuffer_load_dword v{t+1}, v{t}, s[12:15], s6 offen")
    srd(A, 16, PT["wout"], 0, 1792 * 2048)
    A(f"v_min_u32 v{t+2}, {55*128}, v{t}\ns_mul_i32 s6, s3, {56*128}\nbuffer_load_dword v{t+1}, v{t+2}, s[16:19], s6 offen")
    srd(A, 16, PT["wo"], 0, 1024 * 2048)
    A(f"v_min_u32 v{t+2}, {31*128}, v{t}\ns_lshl_b32 s6, s3, 12\nbuffer_load_dword v{t+1}, v{t+2}, s[16:19], s6 offen\n{L}:")

def z_touch(A):
    t = RB["tmp"]
    A(f"""
    v_min_u32 v{t}, 55, v{LANE}
    v_lshlrev_b32 v{t}, 7, v{t}
    s_lshl_b32 s3, s23, 5
    s_add_u32 s3, s3, s36
    s_mul_i32 s3, s3, 28672
    s_add_u32 s3, s3, s28
    buffer_load_dword v{t+1}, v{t}, s[8:11], s3 offen {SC}
    """)
    return 1

def f_touch_w(A, role):
    t = RF["tmp"]; n = 64 if role == "A" else 56; rows = 256 if role == "A" else 448
    A(f"""
    v_min_u32 v{t}, {n-1}, v{LANE}
    v_lshlrev_b32 v{t}, 11, v{t}
    s_and_b32 s3, s100, 3
    s_mul_i32 s3, s3, {rows}
    s_mul_i32 s6, s21, {rows//4}
    s_add_u32 s3, s3, s6
    s_lshl_b32 s3, s3, 11
    s_lshl_b32 s6, s101, 7
    s_add_u32 s3, s3, s6
    buffer_load_dword v{t+1}, v{t}, s[12:15], s3 offen
    """)
    if role == "B": A(f"s_add_u32 s3, s3, {56*2048}\nbuffer_load_dword v{t+1}, v{t}, s[12:15], s3 offen")

def f_touch_a(A, role):
    t = RF["tmp"]; n = 64 if role == "A" else 56; blk = 8192 if role == "A" else 14336
    A(f"""
    v_min_u32 v{t}, {n-1}, v{LANE}
    v_lshlrev_b32 v{t}, 7, v{t}
    s_lshl_b32 s3, s100, 2
    s_add_u32 s3, s3, s21
    s_lshl_b32 s3, s3, 3
    s_and_b32 s6, s101, 7
    s_add_u32 s3, s3, s6
    s_mul_i32 s3, s3, {blk}
    buffer_load_dword v{t+1}, v{t}, s[8:11], s3 offen {SC}
    """)
    if role == "B": A(f"s_add_u32 s3, s3, 7168\nbuffer_load_dword v{t+1}, v{t}, s[8:11], s3 offen {SC}")
    return 1 if role == "A" else 2

def prio(A, key):
    if key in OPT: A(f"s_setprio {OPT[key]}")

P_SP_DONE = 2 + 1 + 1 + 30 + 1

def gen(A):
    kstart(A, NAME)
    start(A)
    stamp(A, 0)
    if common.PROFILE: A("s_memtime s[86:87]\ns_waitcnt lgkmcnt(0)\ns_mov_b32 s84, s86")
    A("s_cmp_ge_u32 s20, 4\ns_cbranch_scc1 L_roleB")
    if OPT.get("x_nostat") != 2: ln_loads(A)
    else: srd(A, 8, PT["x"], 0, 4 * MB)
    g1_setup_A(A)
    for par in (1, 0, 1, 0, 1):
        for g in g1_dma("A", par, GA, pro=True): A.extend(g)
    if not OPT.get("x_nostat"): ln_stats(A, 20)
    else: A("s_mov_b32 s31, 1")
    g1_main(A, "A", GA, 96, 1)
    stamp(A, 2)
    prio(A, "pa1")
    epi_A(A)
    stamp(A, 3)
    handoff(A, 42, 43, 8, attn_setup, tag='k')
    stamp(A, 4)
    prio(A, "pa1b")
    if not OPT.get("x_noattn"): attn_main(A)
    stamp(A, 6)
    prio(A, "pa2")
    attn_finish(A)
    handoff(A, 42, 43, 32, lambda A: f_setup(A, "A"), tag='o', after=lambda A: f_wpre(A, "A"), presync=True)
    stamp(A, 7)
    f_main(A, "A")
    stamp(A, 9)
    f_epi(A, "A")
    fin_prof(A)
    A("s_endpgm\nL_roleB:")
    if OPT.get("ct", 1): code_touch(A)
    if OPT.get("tlb"): tlb_touch(A)
    g1_setup_B(A)
    for s in range(4):
        for g in g1_dma("B", 0, GB, pro=True): A.extend(g)
    n = w_touch(A)
    g1_setup_B2(A)
    mall_setup(A)
    g1_main(A, "B", GB, 112, n)
    stamp(A, 2)
    prio(A, "pb1")
    epi_B(A)
    stamp(A, 4)
    handoff(A, 42, 43, 32, sp_setup, tag='z', after=sp_wpre)
    stamp(A, 5)
    prio(A, "pb2")
    sp_main(A)
    stamp(A, 7)
    prio(A, "pb2e")
    sp_epi(A)
    handoff(A, 42, 43, 16, lambda A: f_setup(A, "B"), tag='u', after=lambda A: f_wpre(A, "B"), presync=True)
    prio(A, "pb3")
    f_main(A, "B")
    A(f"v_mov_b32 v241, {NONCE + 4}\nv_mov_b32 v243, s31\nds_write_b32 v241, v243")
    stamp(A, 9)
    f_epi(A, "B")
    fin_prof(A)
    A("L_end:\ns_endpgm")
    A.extend(COLD)
    A("L_codeend:")
    A.raw(kd(NAME, 256, 256, 102))

def fin_prof(A):
    if not common.PROFILE: return
    A("s_mov_b32 s43, s84\ns_waitcnt vmcnt(0)")
    stamp(A, 10)
    A("s_mov_b32 s86, s43\ns_memtime s[42:43]\ns_waitcnt lgkmcnt(0)")
    srd(A, 88, 4, PROF, 256 * 8 * 64)
    A("s_lshl_b32 s92, s2, 3\ns_add_u32 s92, s92, s20\ns_lshl_b32 s92, s92, 6\nv_mov_b32 v251, s92")
    for k in range(12): A(f"v_mov_b32 v252, s{64+2*k}\nbuffer_store_dword v252, v251, s[88:91], 0 offen offset:{4*k}")
    A("v_mov_b32 v252, s42\nbuffer_store_dword v252, v251, s[88:91], 0 offen offset:48")
    if OPT.get("itr"):
        srd(A, 88, 4, PROF + 131072, 256 * 8 * 256)
        A(f"s_lshl_b32 s92, s92, 2\nv_lshlrev_b32 v251, 2, v{LANE}\nbuffer_store_dword v244, v251, s[88:91], s92 offen")

if __name__ == "__main__":
    out = sys.argv[1]
    common.PROFILE = "--prof" in sys.argv
    for a in sys.argv[2:]:
        if "=" in a:
            k, v = a.split("="); OPT[k] = int(v)
    A = Asm()
    A.raw("; out = x + MHA(LN x) * silu(gMLP(LN x)) as one persistent dataflow kernel (one 8-wave workgroup per CU); generated by gen/fused.py\n"
          f"; @launch grid=(256,1,1) block=(512,1,1) lds={LDS}\n" '.amdgcn_target "amdgcn-amd-amdhsa--gfx950"\n.text')
    gen(A)
    t = A.text()
    errs = check_hazards(t)
    for e in errs[:30]: print("HAZARD", e, file=sys.stderr)
    open(out, "w").write(t)
```

```python
import sys, re
from common import *
import common
from k_g1 import gelu_pairs, reduce4, bcast4, stats_combine, QSCALE, GC0, GC1

OPT = {"pa1": 3, "pa1b": 1, "pb1": 2, "pb2": 2, "pb2e": 2, "pb3": 0, "pa2": 3, "mw": 0, "pgB": 1, "me": 1, "mz": 0}
_stamp = stamp
def stamp(A, k, real=False, force=False):
    if OPT.get("hs") and k in (7, 8, 9) and not force: return
    if OPT.get("span") and k not in (0, 10): return
    _stamp(A, k, not OPT.get('cyc'))
NAME = "recurrent_scan__mha_block__mixer_gmlp__prompt_kernel"
XSLOT = 32768; WSLOT = 13312; WRING = 3 * XSLOT; WBO = 6144
AREG = 0; KV_SLOT = 16384
BREG = 49152; SP_SLOT = 36864; SPW = 28672
FREG = {"A": 0, "B": 49152}; SPX = 49152; XCH = {"A": 32768, "B": 114688}
FLG = BREG + 3 * SP_SLOT
NONCE = FLG + 2048
LDS = FLG + 2048 + 64
LANE, VF_, VG, VP, VT, L16 = 250, 246, 247, 248, 249, 245
PT = dict(x=48, wqkv=50, wo=52, win=56, wsp=58, bsp=60, wout=62, out=44, dbg=46, ws=4)
SC = "sc1"
LOG2E = 1.4426950408889634
COLD = []
def FL(k): return ("", "sc1 ", "nt ", "sc0 ")[OPT.get(k, 0)]

def align(A, key):
    v = OPT.get("al" + key, OPT.get("al"))
    if v is None: return
    A.raw(".p2align 6, 0xbf800000" if False else ".p2align 6")
    for i in range(v): A("s_nop 0")
def itr0(A, key):
    if OPT.get("itr") == key or (key == 3 and OPT.get("itr") == 2): A("s_memtime s[92:93]\ns_waitcnt lgkmcnt(0)\ns_mov_b32 s90, 0\nv_writelane_b32 v244, s92, 0")
def itr(key):
    if OPT.get("itr") == key or (key == 3 and OPT.get("itr") == 2):
        return ["s_memtime s[92:93]", "s_waitcnt lgkmcnt(0)", "s_add_u32 s90, s90, 1", "s_mov_b32 s91, m0", "s_mov_b32 m0, s90", "v_writelane_b32 v244, s92, m0", "s_mov_b32 m0, s91"]
    return []
def arrive(): return ["s_add_u32 s88, s88, 1", f"ds_add_u32 v{VF_}, v{VP}"]
def poll_issue(): return [f"ds_read_b32 v{VT}, v{VG}"]
def poll_check(A, slp=0, G=None, P=None):
    G = VG if G is None else G; P = "s88" if P is None else P
    L, Lok = A.label("spin"), A.label("ok")
    cmpi = f"v_cmp_gt_u32 vcc, {P}, v{VT}"
    COLD.extend([f"{L}:", "s_mov_b32 s97, 0x40000", f"{L}b:"] + ([f"s_sleep {slp}"] if slp else []) +
                [f"ds_read_b32 v{VT}, v{G}", "s_sub_u32 s97, s97, 1", "s_cmp_eq_u32 s97, 0", f"s_cbranch_scc1 {Lok}",
                 "s_waitcnt lgkmcnt(0)", cmpi, f"s_cbranch_vccnz {L}b", f"s_branch {Lok}"])
    return ["s_waitcnt lgkmcnt(0)", cmpi, f"s_cbranch_vccnz {L}", f"{Lok}:"]
def poll_split(A):
    c = poll_check(A)
    return c[:2], c[2:]
def gsync(A, slp=0):
    A.extend(arrive()); A.extend(poll_issue()); A.extend(poll_check(A, slp))
def rot3(s, size, base=0, n=3):
    return [f"s_add_u32 s{s}, s{s}, {size}", f"s_cmp_eq_u32 s{s}, {base + n * size}", f"s_cmov_b32 s{s}, {base}"]

def flag_wait(A, soff, lanes, tag):
    L, Ld = A.label("gp"), A.label("gpd")
    A(f"v_and_b32 v244, {lanes-1}, v{LANE}\nv_lshlrev_b32 v244, 7, v244\ns_mov_b32 s97, 0x8000")
    if tag == "o": A(f"v_mov_b32 v240, {NONCE + 4}")
    A(L + ":")
    A(f"buffer_load_dword v242, v244, s[32:35], s{soff} offen {SC}")
    if tag == "o": A("ds_read_b32 v243, v240")
    A(f"s_waitcnt vmcnt(0) lgkmcnt(0)\nv_cmp_ne_u32 vcc, s31, v242\ns_cbranch_vccz {Ld}\ns_sleep {OPT.get('slp' + tag, 4)}")
    if tag == "o": A(f"v_readfirstlane_b32 s3, v243\ns_nop 0\ns_cmp_eq_u32 s3, s31\ns_cbranch_scc1 {L}s\ns_sleep {OPT.get('slpl', 48)}\n{L}s:")
    A(f"s_sub_u32 s97, s97, 1\ns_cmp_lg_u32 s97, 0\ns_cbranch_scc1 {L}\n{Ld}:")
def handoff(A, sset, swait, lanes, between=None, slp=2, tag="", after=None, presync=False):
    Ls = A.label("fw")
    if between: A("s_nop 1"); between(A)
    dbg = OPT.get("hs") and tag == "xkzou......"[OPT["hs"] - 1]
    if dbg: stamp(A, 7, force=True)
    n = 0
    if OPT.get("early", 1) and after:
        if presync: gsync(A)
        n = after(A); after = None; presync = False
    A(f"s_waitcnt vmcnt({n})")
    if dbg: stamp(A, 8, force=True)
    A.extend(arrive())
    if presync: A.extend(poll_issue()); A.extend(poll_check(A))
    A(f"s_cmp_lg_u32 s21, 0\ns_cbranch_scc1 {Ls}")
    if not presync: A.extend(poll_issue()); A.extend(poll_check(A))
    if dbg: stamp(A, 9, force=True)
    A(f"""
    v_mov_b32 v242, 0
    v_mov_b32 v243, s31
    s_mov_b64 exec, 1
    buffer_store_dword v243, v242, s[32:35], s{sset} offen {SC}
    s_mov_b64 exec, -1
    """)
    if after:
        L2 = A.label("fw")
        A(f"{Ls}:"); after(A); Ls = L2
        A(f"s_cmp_lg_u32 s21, 0\ns_cbranch_scc1 {Ls}")
    flag_wait(A, swait, lanes, tag)
    A(f"{Ls}:")
    gsync(A, slp)

def start(A):
    A(f"""
    s_cmp_ge_u32 s2, 256
    s_cbranch_scc1 L_end
    s_load_dwordx16 s[48:63], s[0:1], 0
    s_load_dwordx4 s[44:47], s[0:1], 64
    s_load_dwordx2 s[4:5], s[0:1], 80
    v_lshrrev_b32 v1, 6, v0
    v_and_b32 v{LANE}, 63, v0
    v_readfirstlane_b32 s20, v1
    {"s_lshr_b32 s23, s2, 5" if OPT.get("badmap") else "s_and_b32 s23, s2, 7"}
    {"s_and_b32 s36, s2, 31" if OPT.get("badmap") else "s_lshr_b32 s36, s2, 3"}
    s_and_b32 s22, s36, 7
    s_lshr_b32 s24, s36, 3
    s_lshl_b32 s25, s23, 2
    s_add_u32 s25, s25, s24
    s_and_b32 s21, s20, 3
    s_and_b32 s37, s21, 1
    s_lshr_b32 s38, s21, 1
    s_lshr_b32 s100, s23, 1
    s_lshl_b32 s100, s100, 2
    s_and_b32 s3, s36, 3
    s_add_u32 s100, s100, s3
    s_and_b32 s101, s23, 1
    s_lshl_b32 s101, s101, 3
    s_lshr_b32 s3, s36, 2
    s_add_u32 s101, s101, s3
    v_lshlrev_b32 v{L16}, 4, v{LANE}
    s_lshl_b32 s3, s20, 8
    s_add_u32 s3, s3, {FLG}
    v_lshlrev_b32 v{VF_}, 2, v{LANE}
    v_and_b32 v{VG}, 3, v{LANE}
    v_lshlrev_b32 v{VG}, 8, v{VG}
    v_add_u32 v{VG}, v{VG}, v{VF_}
    v_add_u32 v{VF_}, s3, v{VF_}
    s_and_b32 s3, s20, 4
    s_lshl_b32 s3, s3, 8
    s_add_u32 s3, s3, {FLG}
    v_add_u32 v{VG}, s3, v{VG}
    v_mov_b32 v{VP}, 0
    ds_write_b32 v{VF_}, v{VP}
    v_mov_b32 v{VP}, 1
    s_mov_b32 s88, 0
    s_waitcnt lgkmcnt(0)
    s_barrier
    """)
    if OPT.get("wso"): A(f"s_add_u32 s4, s4, {OPT['wso'] << 20}\ns_addc_u32 s5, s5, 0")
    srd(A, 32, PT["ws"], FLAGS, FBYTES)
    Ln = A.label("non")
    A(f"s_lshl_b32 s3, s2, 3\ns_add_u32 s3, s3, s20\ns_cmp_lg_u32 s3, 4\ns_cbranch_scc1 {Ln}")
    srd(A, 16, PT["dbg"], 0, 256)
    A(f"""
    s_memrealtime s[6:7]
    s_waitcnt lgkmcnt(0)
    s_or_b32 s3, s6, 1
    v_mov_b32 v1, s3
    v_mov_b32 v2, 0
    s_mov_b64 exec, 1
    buffer_store_dword v1, v2, s[16:19], 0 offen {SC}
    s_mov_b64 exec, -1
    {Ln}:
    """)

def ln_loads(A):
    srd(A, 8, PT["x"], 0, 4 * MB); srd(A, 16, PT["dbg"], 0, 256)
    A(f"""
    s_lshl_b32 s3, s22, 8
    s_lshl_b32 s6, s25, 3
    s_add_u32 s3, s3, s6
    s_lshl_b32 s6, s21, 1
    s_add_u32 s39, s3, s6
    s_lshl_b32 s3, s39, 11
    v_mov_b32 v242, 0
    """)
    for rr in range(2):
        for q in range(2): A(f"buffer_load_dwordx4 {vr(8+40*rr+4*q,4)}, v{L16}, s[8:11], s3 offen offset:{2048*rr+1024*q}")
    A(f"buffer_load_dword v243, v242, s[16:19], 0 offen {SC}")

def ln_stats(A, younger):
    A(f"s_waitcnt vmcnt({younger})")
    streams = []
    for rr in range(2):
        B = Asm(); o = 40 * rr
        for i in range(8): B(f"v_lshlrev_b32 v{o+16+2*i}, 16, v{o+8+i}\nv_and_b32 v{o+17+2*i}, 0xffff0000, v{o+8+i}")
        for i in range(8): B(f"v_add_f32 v{o+32+i}, v{o+16+2*i}, v{o+17+2*i}")
        for i in range(4): B(f"v_add_f32 v{o+32+i}, v{o+32+i}, v{o+36+i}")
        B(f"v_add_f32 v{o+32}, v{o+32}, v{o+34}\nv_add_f32 v{o+33}, v{o+33}, v{o+35}\nv_add_f32 v{o+32}, v{o+32}, v{o+33}")
        wave_sum(B, o + 32, o + 33)
        B(f"v_mul_f32 v{o+32}, {fhex(1/1024)}, v{o+32}")
        for i in range(16): B(f"v_sub_f32 v{o+16+i}, v{o+16+i}, v{o+32}")
        B(f"v_mul_f32 v{o+34}, v{o+16}, v{o+16}\nv_mul_f32 v{o+35}, v{o+17}, v{o+17}")
        for i in range(2, 16): B(f"v_fmac_f32 v{o+34+(i&1)}, v{o+16+i}, v{o+16+i}")
        B(f"v_add_f32 v{o+34}, v{o+34}, v{o+35}")
        wave_sum(B, o + 34, o + 33)
        B(f"v_mul_f32 v{o+34}, {fhex(1/1024)}, v{o+34}")
        bf16_round(B, o + 32, o + 32); bf16_round(B, o + 34, o + 34)
        B(f"v_add_f32 v{o+34}, {fhex(1e-5)}, v{o+34}")
        bf16_round(B, o + 34, o + 34)
        B(f"v_sqrt_f32 v{o+34}, v{o+34}\ns_nop 0")
        bf16_round(B, o + 34, o + 34)
        B(f"v_rcp_f32 v{o+34}, v{o+34}\ns_nop 0")
        B(f"v_mul_f32 v{o+32}, v{o+32}, v{o+34}")
        streams.append([l.strip().replace("s_nop 1", "s_nop 0") for l in B.lines])
    for a_, b_ in zip(*streams):
        A(a_)
        if not (a_.startswith("s_nop") and b_.startswith("s_nop")): A(b_)
    L, Ld = A.label("nn"), A.label("nnd")
    COLD.extend([f"{L}:", "s_mov_b32 s97, 0x8000", f"{L}b:", "s_sleep 4", f"buffer_load_dword v243, v242, s[16:19], 0 offen {SC}", "s_waitcnt vmcnt(0)",
                 "v_readfirstlane_b32 s31, v243", "s_sub_u32 s97, s97, 1", "s_cmp_eq_u32 s97, 0", f"s_cbranch_scc1 {Ld}",
                 "s_cmp_eq_u32 s31, 0", f"s_cbranch_scc1 {L}b", f"s_branch {Ld}"])
    A(f"""
    v_readfirstlane_b32 s31, v243
    v_cmp_eq_u32 vcc, 0, v{LANE}
    s_cmp_eq_u32 s31, 0
    s_cbranch_scc1 {L}
    {Ld}:
    v_mov_b32 v242, {NONCE}
    ds_write_b32 v242, v243
    v_cndmask_b32 v4, v74, v34, vcc
    v_cndmask_b32 v6, v72, v32, vcc
    v_mov_b32 v5, s31
    v_sub_f32 v6, 0, v6
    v_mov_b32 v7, s31
    s_lshl_b32 s3, s39, 4
    """)
    srd(A, 12, PT["ws"], RS, 2048 * 16)
    A(f"s_mov_b64 exec, 3\nbuffer_store_dwordx4 v[4:7], v{L16}, s[12:15], s3 offen {SC}\ns_mov_b64 exec, -1\ns_nop 0")

GA = dict(frag=96, xr=176, xa=180, wr=184, wa=185, dv=186, cs=192, one=204, idx=208, ns=3, sel=0, tab=36864, rs=176)
GB = dict(frag=112, xr=200, xa=202, wr=204, wa=205, dv=206, cs=216, one=232, idx=236, ns=4, sel=1, tab=49152, rs=212)
ROWT = 37888

def g1_dma(role, par, R, touch=False, pro=False):
    g = []
    for j in range(4):
        ins = []
        if role == "A":
            if j == 0 and pro: ins += [f"s_add_u32 m0, s94, s28" if par else "s_add_u32 m0, s94, s30", "s_nop 0"]
            ins.append(f"buffer_load_dwordx4 v{R['dv']+j}, s[8:11], {'s26' if par else 's27'} offen offset:{j*1024} lds")
            if j == 3: ins += ["s_add_u32 s26, s26, 128"] if par else ["s_add_u32 s27, s27, 128"] + (rot3(94, XSLOT) if pro else [])
        else:
            if j == 0 and pro: ins += ["s_add_u32 m0, s94, s28", "s_nop 0"]
            if j == 3: ins.append("s_mov_b64 exec, s[98:99]")
            ins.append(f"buffer_load_dwordx4 v{R['dv']+j}, s[8:11], s26 offen offset:{j*1024} lds")
            if j == 3:
                ins += ["s_mov_b64 exec, -1", "s_add_u32 s26, s26, s27"] + (rot3(94, WSLOT, WRING, 4) if pro else [])
                if touch: ins += ["buffer_load_dword v211, v210, s[16:19], s30 offen", "s_add_u32 s30, s30, 1024"]
        g.append(ins)
    return g

def g1_addr(role, par, R, dma=False):
    o = []
    if dma and role == "B": o.append("s_add_u32 m0, s95, s28")
    if dma and role == "A": o.append("s_add_u32 m0, s96, s28" if par else "s_add_u32 m0, m0, 4096")
    w = rot3(95, WSLOT, WRING, 4) + [f"v_add_u32 v{R['wa']}, s95, v{R['wr']}"]
    x = []
    if par:
        x = rot3(96, XSLOT)
        for i in range(4 if role == "A" else 2): x.append(f"v_add_u32 v{R['xa']+i}, s96, v{R['xr']+i}")
    return o, x, w

def g1_step(role, par, dma, reads, R):
    cur = par; nxt = par ^ 1
    mf, rd = [], []
    if role == "A":
        fb = lambda buf: R["frag"] + 40 * buf
        xf = lambda buf, ks, rb: fb(buf) + 8 * ks + 4 * rb
        wf = lambda buf, ks, b: fb(buf) + 16 + 8 * b + 4 * ks
        for ks in range(2):
            for rb in range(2):
                for b in range(3):
                    acc = vr((rb * 3 + b) * 16, 16)
                    x_, w_ = vr(xf(cur, ks, rb), 4), vr(wf(cur, ks, b), 4)
                    if OPT.get("x16"):
                        for q in range(2):
                            a4 = vr((rb * 3 + b) * 16 + 8 * ks + 4 * q, 4)
                            mf.append(f"v_mfma_f32_16x16x32_bf16 {a4}, {w_}, {vr(xf(cur, ks ^ q, rb ^ q), 4)}, {a4}")
                        continue
                    mf.append(f"v_mfma_f32_32x32x16_bf16 {acc}, {w_}, {x_}, {acc}" if b < 2 else f"v_mfma_f32_32x32x16_bf16 {acc}, {x_}, {w_}, {acc}")
        for ks in range(2):
            for rb in range(2):
                rd.append(f"ds_read_b128 {vr(xf(nxt, ks, rb), 4)}, v{R['xa'] + 2 * nxt + ks} offset:{rb * 4096}")
            for b in range(3):
                for hf in range(2):
                    rd.append(f"ds_read_b64_tr_b16 {vr(wf(nxt, ks, b) + 2 * hf, 2)}, v{R['wa']} offset:{(16 * ks + 4 * hf) * 192 + 64 * b}")
    else:
        fb = lambda buf: R["frag"] + 44 * buf
        xf = lambda buf, st: fb(buf) + 4 * st
        wf = lambda buf, ft: fb(buf) + 16 + 4 * ft
        for ft in range(7):
            for st in range(4):
                acc = vr((st * 7 + ft) * 4, 4)
                mf.append(f"v_mfma_f32_16x16x32_bf16 {acc}, {vr(wf(cur, ft), 4)}, {vr(xf(cur, st), 4)}, {acc}")
        for st in range(4):
            rd.append(f"ds_read_b128 {vr(xf(nxt, st), 4)}, v{R['xa'] + nxt} offset:{st * 2048}")
        for ft in range(7):
            for hf in range(2):
                rd.append(f"ds_read_b64_tr_b16 {vr(wf(nxt, ft) + 2 * hf, 2)}, v{R['wa']} offset:{WBO + hf * 8 * 224 + 32 * ft}")
    if not reads: return mf, []
    o, x, w = g1_addr(role, par, R, dma)
    dm = g1_dma(role, par, R, OPT.get('mw')) if dma and not OPT.get("g_nodma" + role) else []
    if OPT.get("g_nord" + role): rd = rd[:4]
    if OPT.get("g_dupx") and role == "A": rd = [r for r in rd if "b128" not in r]
    nx = 2 if role == "A" else 4
    xs = [[i] for i in o + x[:3]] + ([x[3:]] if x else [])
    rds = rd[:nx] + [None] + rd[nx:]
    fill = list(xs)
    k = 0; step = max(1, len(rd) // max(1, len(dm))); i = 0
    wq = [[q] for q in w]
    for r_ in rd[:nx]:
        fill.append(r_); fill += wq[:2] if role == "A" else wq[:1]; wq = wq[2:] if role == "A" else wq[1:]
    fill += wq
    for i, r_ in enumerate(rd[nx:]):
        fill.append(r_)
        if (i + 1) % step == 0 and k < len(dm): fill.append(dm[k]); k += 1
    fill += dm[k:]
    nlast = OPT.get("nl" + role, 2 if role == "A" else 5)
    st0 = OPT.get("st" + role, 0)
    return interleave(mf[:-nlast], fill, start=st0) + mf[-nlast:], x + w + rd

def g1_setup_A(A):
    R = GA
    A(f"""
    s_mov_b32 s26, 0
    s_mov_b32 s27, 65536
    s_lshl_b32 s28, s21, 13
    s_add_u32 s30, s28, 4096
    s_mov_b32 s94, 0
    v_lshrrev_b32 v1, 3, v{LANE}
    s_lshl_b32 s3, s22, 8
    s_lshl_b32 s6, s21, 6
    s_add_u32 s3, s3, s6
    v_add_u32 v1, s3, v1
    v_lshlrev_b32 v1, 11, v1
    v_lshrrev_b32 v2, 4, v{LANE}
    v_and_b32 v3, 7, v{LANE}
    v_xor_b32 v4, v2, v3
    v_xor_b32 v5, 4, v4
    v_lshl_add_u32 v4, v4, 4, v1
    v_lshl_add_u32 v5, v5, 4, v1
    v_mov_b32 v{R['dv']}, v4
    v_add_u32 v{R['dv']+1}, {16384-1024}, v5
    v_add_u32 v{R['dv']+2}, {2*(16384-1024)}, v4
    v_add_u32 v{R['dv']+3}, {3*(16384-1024)}, v5
    v_lshrrev_b32 v2, 5, v{LANE}
    v_and_b32 v1, 31, v{LANE}
    v_bfe_u32 v3, v{LANE}, 1, 3
    v_xor_b32 v3, v3, v2
    v_add_u32 v1, s6, v1
    v_lshlrev_b32 v1, 7, v1
    v_lshl_add_u32 v{R['xr']}, v3, 4, v1
    v_xor_b32 v{R['xr']+1}, 32, v{R['xr']}
    v_xor_b32 v{R['xr']+2}, 64, v{R['xr']}
    v_xor_b32 v{R['xr']+3}, 96, v{R['xr']}
    v_bfe_u32 v1, v{LANE}, 2, 2
    v_lshl_add_u32 v1, v2, 3, v1
    v_mul_u32_u24 v1, 192, v1
    v_bfe_u32 v3, v{LANE}, 4, 1
    v_lshl_add_u32 v1, v3, 5, v1
    v_and_b32 v3, 3, v{LANE}
    v_lshl_add_u32 v{R['wr']}, v3, 3, v1
    """)

def g1_setup_B(A):
    R = GB
    m12, s12 = magic_div(12, 511); m14, s14 = magic_div(14, 511)
    LB, LE = A.label("sB"), A.label("sE")
    A(f"""
    s_mov_b32 s26, 0
    s_mov_b32 s94, {WRING}
    s_cmp_eq_u32 s21, 2
    s_cselect_b32 s98, -1, 0
    s_mov_b32 s99, s98
    s_cmp_ge_u32 s21, 2
    s_cselect_b32 s8, s{PT['win']}, s{PT['wqkv']}
    s_cselect_b32 s9, s{PT['win']+1}, s{PT['wqkv']+1}
    s_mov_b32 s10, {1024*6144}
    s_cmov_b32 s10, {1024*7168}
    s_mov_b32 s11, 0x00020000
    s_mov_b32 s27, {32*6144}
    s_cmov_b32 s27, {32*7168}
    s_cbranch_scc1 {LB}
    s_mul_i32 s3, s21, 3
    s_lshl_b32 s28, s3, 10
    s_lshl_b32 s3, s3, 6
    s_lshl_b32 s39, s25, 6
    """)
    for j in range(4):
        A(f"""
        v_add_u32 v1, s3, v{LANE}
        v_add_u32 v1, {64*j}, v1
        v_mul_u32_u24 v2, {m12}, v1
        v_lshrrev_b32 v2, {s12}, v2
        v_mul_u32_u24 v3, 12, v2
        v_sub_u32 v3, v1, v3
        v_mul_u32_u24 v2, 6144, v2
        v_lshrrev_b32 v4, 2, v3
        v_lshl_add_u32 v2, v4, 11, v2
        v_and_b32 v3, 3, v3
        v_lshl_add_u32 v2, v3, 4, v2
        v_add_u32 v2, s39, v2
        v_subrev_u32 v{R['dv']+j}, {1024*j}, v2
        """)
    A(f"""
    s_add_u32 s40, s39, 2048
    s_add_u32 s41, s39, 4096
    s_branch {LE}
    {LB}:
    s_sub_u32 s3, s21, 2
    s_lshl_b32 s3, s3, 2
    s_lshl_b32 s28, s3, 10
    s_add_u32 s28, s28, {WBO}
    s_lshl_b32 s3, s3, 6
    s_lshr_b32 s39, s24, 1
    s_mul_i32 s39, s39, 3584
    s_mul_i32 s7, s23, 448
    s_add_u32 s39, s39, s7
    s_and_b32 s7, s24, 1
    s_mul_i32 s7, s7, 224
    s_add_u32 s39, s39, s7
    """)
    for j in range(4):
        A(f"""
        v_add_u32 v1, s3, v{LANE}
        v_add_u32 v1, {64*j}, v1
        v_mul_u32_u24 v2, {m14}, v1
        v_lshrrev_b32 v2, {s14}, v2
        v_mul_u32_u24 v3, 14, v2
        v_sub_u32 v3, v1, v3
        v_and_b32 v4, 0x13, v2
        v_bfe_u32 v5, v2, 2, 1
        v_lshl_add_u32 v4, v5, 3, v4
        v_bfe_u32 v5, v2, 3, 1
        v_lshl_add_u32 v4, v5, 2, v4
        v_mul_u32_u24 v4, 7168, v4
        v_lshl_add_u32 v4, v3, 4, v4
        v_add_u32 v4, s39, v4
        v_subrev_u32 v{R['dv']+j}, {1024*j}, v4
        """)
    A(f"s_add_u32 s40, s39, 128\ns_add_u32 s41, s39, 220\n{LE}:")

def g1_setup_B2(A):
    R = GB
    A(f"""
    v_and_b32 v1, 15, v{LANE}
    v_lshrrev_b32 v2, 4, v{LANE}
    v_lshrrev_b32 v3, 1, v1
    v_xor_b32 v4, v3, v2
    s_lshl_b32 s6, s21, 6
    v_add_u32 v1, s6, v1
    v_lshlrev_b32 v1, 7, v1
    v_lshl_add_u32 v{R['xr']}, v4, 4, v1
    v_xor_b32 v{R['xr']+1}, 64, v{R['xr']}
    v_bfe_u32 v1, v{LANE}, 2, 2
    v_bfe_u32 v3, v{LANE}, 4, 1
    v_lshl_add_u32 v1, v3, 2, v1
    v_lshrrev_b32 v3, 5, v{LANE}
    v_lshl_add_u32 v1, v3, 4, v1
    v_mul_u32_u24 v1, 224, v1
    v_and_b32 v3, 3, v{LANE}
    v_lshl_add_u32 v{R['wr']}, v3, 3, v1
    """)

def w_touch(A):
    L = A.label("wt")
    A(f"""
    s_lshl_b32 s3, s37, 9
    s_lshl_b32 s6, s22, 6
    s_add_u32 s3, s3, s6
    v_add_u32 v214, s3, v{LANE}
    s_lshr_b32 s3, s27, 5
    v_mul_lo_u32 v214, v214, s3
    v_add_u32 v214, s39, v214
    s_sub_u32 s14, s40, s39
    s_sub_u32 s15, s41, s39
    v_add_u32 v215, s14, v214
    v_add_u32 v237, s15, v214
    s_and_b32 s39, s36, 3
    s_cmp_eq_u32 s37, 1
    s_cbranch_scc1 {L}
    s_mov_b32 s39, 99
    """)
    A.extend(w_touch_loads())
    A(L + ":")
    return 0
def w_touch_loads(): return [f"buffer_load_dword v213, v{r}, s[8:11], 0 offen" for r in (214, 215, 237)]

def ones_setup(A, R, role):
    t = 1
    sel = "v_lshrrev_b32 v3, 1, v1" if role == "A" else f"v_lshrrev_b32 v3, 5, v{LANE}\nv_lshrrev_b32 v4, 1, v1\nv_xor_b32 v3, v3, v4"
    A(f"""
    v_and_b32 v1, 15, v{LANE}
    v_mov_b32 v2, 0x3f803f80
    {sel}
    v_cmp_eq_u32 vcc, 0, v3
    v_and_b32 v5, 1, v1
    v_mul_u32_u24 v5, 0xaaaa, v5
    v_cndmask_b32 v{R['one']}, 0, v2, vcc
    v_cndmask_b32 v{R['one']+1}, 0, v2, vcc
    """)
    if role == "A": A("v_cmp_eq_u32 vcc, 1, v3\ns_nop 1")
    A(f"v_cndmask_b32 v{R['one']+2}, 0, v2, vcc\nv_cndmask_b32 v{R['one']+3}, 0, v2, vcc\nv_add_u32 v{R['idx']}, 0x4444, v5")
    for i in range(4 * R["ns"]): A(f"v_mov_b32 v{R['cs']+i}, 0")
    A(f"s_cmp_eq_u32 s21, {R['sel']}\ns_cselect_b32 s42, s22, 99\ns_mov_b32 s41, 0\ns_mov_b32 s40, 0\nv_mov_b32 v240, 0\nv_mov_b32 v241, 0")
    srd(A, 12, PT["ws"], CSP, 32 * 8 * 2048)

def cs_sums(role, R):
    c = R["cs"]; ins = []; regs = []
    for i in range(R["ns"]):
        if role == "B" and i == 3: ins.append(f"v_add_f32 v{c+12}, v{c+12}, v{c+14}"); regs.append(c + 12)
        else: ins += [f"v_add_f32 v{c+4*i}, v{c+4*i}, v{c+4*i+1}", f"v_add_f32 v{c+4*i+2}, v{c+4*i+2}, v{c+4*i+3}"]; regs += [c + 4 * i, c + 4 * i + 2]
    return regs, ins

GTAB = 40960
def cs_hook(A, role, R, par, kind):
    L = A.label("cs")
    B = Asm(); B._lab = A._lab * 100
    B(L + ":")
    w0 = R["frag"] + (40 if role == "A" else 44) * par + 16
    for i in range(3): B(f"v_smfmac_f32_16x16x64_bf16 {vr(R['cs']+4*i,4)}, {vr(R['one'],4)}, {vr(w0+8*i,8)}, v{R['idx']}")
    if role == "B": B(f"v_mfma_f32_16x16x32_bf16 {vr(R['cs']+12,4)}, {vr(R['one'],4)}, {vr(w0+24,4)}, {vr(R['cs']+12,4)}")
    so = 0 if role == "A" else 1024
    if kind == "share" and par == 1:
        B(f"s_bitcmp1_b32 s41, 0\ns_cbranch_scc0 {L}r\ns_nop 7")
        B.extend(cs_sums(role, R)[1])
        B("s_lshl_b32 s3, s25, 3\ns_add_u32 s3, s3, s22\ns_lshl_b32 s3, s3, 11")
        for i in range(R["ns"]): B(f"v_mov_b32 v{R['cs']+4*i+1}, s31\nv_mov_b32 v{R['cs']+4*i+3}, s31")
        B("s_mov_b64 exec, 0xffff")
        for i in range(R["ns"]): B(f"buffer_store_dwordx4 {vr(R['cs']+4*i,4)}, v{L16}, s[12:15], s3 offen offset:{so+256*i} {SC}")
        B("s_mov_b64 exec, -1\ns_nop 0")
        for i in range(4 * R["ns"]): B(f"v_mov_b32 v{R['cs']+i}, 0")
    if kind == "last":
        regs, ins = cs_sums(role, R)
        G = R["frag"]
        B(f"v_lshlrev_b32 v238, 2, v{LANE}\nv_and_b32 v238, 63, v238\nv_add_u32 v237, {GTAB + (0 if role == 'A' else 512)}, v238\nv_add_u32 v238, {R['tab']}, v238")
        for k in range(len(regs)): B(f"ds_read_b32 v{G+k}, v237 offset:{64*k}")
        B.extend(ins)
        B("s_waitcnt lgkmcnt(0)")
        for k, r_ in enumerate(regs): B(f"v_add_f32 v{G+k}, v{G+k}, v{r_}")
        B("s_mov_b64 exec, 0xffff")
        for k in range(len(regs)): B(f"ds_write_b32 v238, v{G+k} offset:{64*k}")
        B("s_mov_b64 exec, -1\ns_waitcnt lgkmcnt(0)")
    B(f"s_branch {L}r")
    COLD.extend(l.strip() for l in B.lines)
    return [f"s_cbranch_vccnz {L}", f"{L}r:"]

GG = 210
def gather_regs(): return [210 + 4 * i for i in range(7)] + [186]
def gather_issue(A):
    L = A.label("ga"); B = Asm()
    B(f"""
    {L}:
    s_lshl_b32 s40, s25, 14
    s_lshl_b32 s3, s37, 10
    s_add_u32 s40, s40, s3
    v_lshrrev_b32 v241, 4, v{LANE}
    v_and_b32 v240, 15, v{LANE}
    v_lshlrev_b32 v240, 4, v240
    v_lshl_add_u32 v240, v241, 11, v240
    v_cmp_lt_u32 vcc, 1, v241
    v_add_u32 v241, 8192, v240
    v_mov_b32 v239, 1.0
    v_cndmask_b32 v241, v241, v240, vcc
    v_cndmask_b32_e64 v239, v239, 0, vcc
    """)
    B.extend(gather_loads()); B(f"s_mov_b64 vcc, 0\ns_branch {L}r")
    COLD.extend(l.strip() for l in B.lines)
    return ["s_cmp_ge_u32 s21, 2", f"s_cbranch_scc1 {L}", f"{L}r:"]
def gather_loads():
    g = gather_regs()
    return [f"buffer_load_dwordx4 {vr(g[4*u+i],4)}, v{240+u}, s[12:15], s40 offen offset:{256*i} {SC}" for u in range(2) for i in range(4)]
def gather_finish(A):
    L = A.label("gf"); B = Asm(); g = gather_regs()
    B(f"{L}:\ns_mov_b32 s97, 0x8000\n{L}p:\ns_waitcnt vmcnt(0)\nv_xor_b32 v238, s31, v{g[0]+1}")
    for i in range(8):
        for u in (1, 3):
            if i & 3 == 3: continue
            if i or u == 3: B(f"v_xor_b32 v209, s31, v{g[i]+u}\nv_or_b32 v238, v238, v209")
    B(f"v_xor_b32 v209, s31, v{g[3]+1}\nv_xor_b32 v{g[3]+3}, s31, v{g[7]+1}\nv_or_b32 v209, v209, v{g[3]+3}\nv_mul_lo_u32 v209, v209, s37\nv_or_b32 v238, v238, v209")
    B(f"v_cmp_ne_u32 vcc, 0, v238\ns_sub_u32 s97, s97, 1\ns_cbranch_vccz {L}q\ns_cmp_eq_u32 s97, 0\ns_cbranch_scc1 {L}q\ns_sleep 2")
    B.extend(gather_loads())
    B(f"s_branch {L}p\n{L}q:")
    vals = [g[k // 2] + 2 * (k & 1) for k in range(7)]
    for k, v in enumerate(vals): B(f"v_fmac_f32 v{v}, v239, v{g[4 + k // 2] + 2 * (k & 1)}")
    for sw in ("v_permlane16_swap_b32", "v_permlane32_swap_b32"):
        for v in vals: B(f"v_mov_b32 v{v+1}, v{v}")
        B("s_nop 0")
        for v in vals: B(f"{sw} v{v}, v{v+1}")
        for v in vals: B(f"v_add_f32 v{v}, v{v}, v{v+1}")
    B(f"s_lshl_b32 s3, s37, 9\ns_add_u32 s3, s3, {GTAB}\nv_lshlrev_b32 v238, 2, v{LANE}\nv_add_u32 v238, s3, v238\ns_mov_b64 exec, 0xffff")
    for k, v in enumerate(vals): B(f"ds_write_b32 v238, v{v} offset:{64*k}")
    B(f"s_mov_b64 exec, -1\ns_mov_b64 vcc, 0\ns_branch {L}r")
    COLD.extend(l.strip() for l in B.lines)
    return ["s_cmp_ge_u32 s21, 2", f"s_cbranch_scc1 {L}", f"{L}r:"]

def rs_load(role, R):
    return [f"buffer_load_dwordx4 {vr(R['rs'],4)}, v{L16}, s[16:19], s39 offen {SC}"]
def rs_wait(A, role, R):
    L = A.label("rs"); g = R["rs"]
    chk = ["s_waitcnt vmcnt(0)", f"v_cmp_ne_u32 vcc, s31, v{g+1}", f"v_cmp_ne_u32 s[40:41], s31, v{g+3}", "s_nop 0", "s_or_b64 vcc, vcc, s[40:41]"]
    COLD.extend([f"{L}:", "s_mov_b32 s97, 0x8000", f"{L}b:", "s_sleep 2"] + rs_load(role, R) + ["s_sub_u32 s97, s97, 1", "s_cmp_eq_u32 s97, 0", f"s_cbranch_scc1 {L}t"] + chk +
                [f"s_cbranch_vccnz {L}b", f"{L}t:", "s_waitcnt vmcnt(0)", f"s_branch {L}r"])
    A.extend(chk + [f"s_cbranch_vccnz {L}", f"{L}r:"])

def g1_main(A, role, R, nacc, extra):
    A(f"s_mov_b32 s95, {WRING + 3*WSLOT}\ns_mov_b32 s96, {2*XSLOT}")
    prio(A, "pg" + role)
    ones_setup(A, R, role)
    for i in range(nacc): A(f"v_mov_b32 v{i}, 0")
    A(f"s_waitcnt vmcnt({12 + extra}) lgkmcnt(0)\ns_barrier")
    stamp(A, 1)
    if role == "B": A(f"v_mov_b32 v242, {NONCE}\nds_read_b32 v243, v242")
    A.extend(g1_step(role, 1, False, True, R)[1])
    A(f"s_waitcnt vmcnt({8 + extra}) lgkmcnt(0)" if role == "B" else "s_waitcnt lgkmcnt(0)")
    if role == "B": A("v_readfirstlane_b32 s31, v243")
    nl = OPT.get("nt" + role, 1 if role == "A" else 2)
    flag = {"share": ["s_lshr_b32 s3, s41, 1", "s_cmp_eq_u32 s3, s42", "s_cselect_b64 vcc, -1, 0"],
            "own": [f"s_cmp_eq_u32 s21, {R['sel']}", "s_cselect_b64 vcc, -1, 0"]}
    def step(par, dma, vm, kind, reads=1, pre=(), book=(), cut=False):
        body = g1_step(role, par, dma, reads, R)[0]
        A("s_barrier"); A(body[0])
        A.extend(cs_hook(A, role, R, par, kind)); A.extend(pre)
        A.extend(body[1:-nl]); A.extend(book)
        w = ([f"vmcnt({vm})"] if vm is not None else []) + (["lgkmcnt(0)"] if reads else [])
        end = body[-nl:] + (["s_waitcnt " + " ".join(w)] if w else [])
        if cut: return end
        A.extend(end)
    ev = []
    if role == "B":
        if OPT.get("me"):
            Lw = A.label("mw")
            ev += ["s_cmp_eq_u32 s41, s43", f"s_cbranch_scc1 {Lw}", f"{Lw}r:"]
            COLD.extend([f"{Lw}:", "buffer_load_dword v211, v210, s[16:19], s30 offen", "s_add_u32 s30, s30, 8192", f"s_add_u32 s43, s43, {OPT.get('mp', 5)}", f"s_branch {Lw}r"])
        Lw = A.label("w2")
        ev += ["s_cmp_eq_u32 s41, s39", f"s_cbranch_scc1 {Lw}", f"{Lw}r:"]
        COLD.extend([f"{Lw}:"] + w_touch_loads() + [f"s_branch {Lw}r"])
    v0, v1 = (8, None) if role == "A" else (8, 8)
    L = A.label("g1" + role)
    if role == "A": itr0(A, 1)
    A.extend(flag["share"])
    A(f"s_branch {L}m")
    S = Asm(); cold_n = len(COLD)
    odd_end = g1_step(role, 1, 1, 1, R)[0][-nl:] + ["s_waitcnt " + " ".join(([f"vmcnt({v1})"] if v1 is not None else []) + ["lgkmcnt(0)"])]
    A(L + ":"); A.extend(odd_end); A(L + "m:")
    step(0, 1, v0, "share", book=ev)
    end = step(1, 1, v1, "share", cut=True,
               book=(itr(1) if role == "A" else []) + ["s_add_u32 s41, s41, 1"] + flag["share"] + ["s_cmp_lt_u32 s41, 12", f"s_cbranch_scc1 {L}"])
    A.extend(flag["own"]); A.extend(end)
    if OPT.get("hs") == 9: stamp(A, 7, force=True)
    B = Asm(); srd(B, 16, PT["ws"], RS, 2048 * 16); B("s_lshl_b32 s39, s22, 2\ns_add_u32 s39, s39, s21\ns_lshl_b32 s39, s39, 10")
    rsl = [l.strip() for l in B.lines] + rs_load(role, R)
    tr = itr(1) if role == "A" else []
    if role == "A":
        step(0, 1, 8, "own"); step(1, 1, None, "own", book=tr)
        step(0, 1, 8, "own"); step(1, 0, None, "own", pre=gather_issue(A) + flag["own"], book=tr)
        step(0, 0, 0, "own"); step(1, 0, None, "own", pre=gather_finish(A) + flag["own"], book=tr)
    else:
        step(0, 1, 8, "own"); step(1, 1, 8, "own"); step(0, 1, 8, "own"); step(1, 1, 8, "own")
        step(0, 0, 4, "own"); step(1, 0, 0, "own")
    step(0, 0, None, "own", pre=rsl); step(1, 0, None, "last", reads=0, book=tr)
    if OPT.get("hs") == 9: stamp(A, 8, force=True)
    rs_wait(A, role, R)
    if OPT.get("hs") == 9: stamp(A, 9, force=True)
    A("s_barrier")

RA = dict(O=0, S=32, Pk=64, Q=96, K=112, V=120, L=128, ONE=136, IDX=140, cur=141, nxt=142, dk=143, dv=144, tmp=148)

def epi_A(A):
    R = RA; g = 198
    CS, RW, T = 144, 160, 176
    A("v_mov_b32 v198, v176\nv_mov_b32 v199, v178")
    srd(A, 8, PT["ws"], KF, 8 * MB)
    A(f"""
    s_lshl_b32 s3, s21, 9
    s_add_u32 s3, s3, {ROWT}
    v_lshlrev_b32 v192, 2, v{LANE}
    v_add_u32 v193, s3, v192
    ds_write_b32 v193, v{g}
    ds_write_b32 v193, v{g+1} offset:256
    v_lshrrev_b32 v194, 5, v{LANE}
    v_lshlrev_b32 v194, 4, v194
    v_add_u32 v195, s3, v194
    v_add_u32 v194, {GA['tab']}, v194
    v_and_b32 v192, 127, v192
    v_add_u32 v192, {GA['tab']+256}, v192
    ds_read_b32 v196, v192
    """)
    for q in range(4): A(f"ds_read_b128 {vr(CS+4*q,4)}, v194 offset:{128+32*q}")
    A(f"""
    v_mov_b32 v200, v{g}
    v_mov_b32 v202, v{g}
    v_mov_b32 v204, v{g+1}
    v_mov_b32 v206, v{g+1}
    s_lshl_b32 s3, s25, 6
    s_lshl_b32 s6, s22, 3
    v_permlane32_swap_b32 v200, v202
    v_permlane32_swap_b32 v204, v206
    s_add_u32 s3, s3, s6
    s_lshl_b32 s6, s21, 1
    s_add_u32 s3, s3, s6
    s_lshl_b32 s6, s3, 11
    s_add_u32 s7, s6, {4*MB}
    v_mov_b32 v201, v200
    v_mov_b32 v203, v202
    v_mov_b32 v205, v204
    v_mov_b32 v207, v206
    """)
    def fix_rowlane(a0, rb):
        for q in range(8): A(f"v_pk_mul_f32 {vr(T+2*q,2)}, {vr(CS+2*q,2)}, {vr(204+2*rb,2)}")
        for q in range(8): A(f"v_pk_fma_f32 {vr(a0+2*q,2)}, {vr(a0+2*q,2)}, {vr(200+2*rb,2)}, {vr(T+2*q,2)}")
    def pack_store(a0, d0, so, rb):
        for i in range(8): A(f"v_cvt_pk_bf16_f32 v{d0+i}, v{a0+2*i}, v{a0+2*i+1}")
        for f in range(2): A(f"buffer_store_dwordx4 {vr(d0+4*f,4)}, v{L16}, s[8:11], {so} offen offset:{(rb*2+f)*1024} {SC}")
    def rowreads(rb):
        for q in range(4): A(f"ds_read_b128 {vr(RW+4*q,4)}, v195 offset:{128*rb+32*q}")
        for q in range(4): A(f"ds_read_b128 {vr(208+4*q,4)}, v195 offset:{256+128*rb+32*q}")
    rowreads(0)
    A("s_waitcnt lgkmcnt(8)\nv_mov_b32 v197, v196")
    for rb in range(2): fix_rowlane((rb * 3 + 1) * 16, rb); pack_store((rb * 3 + 1) * 16, 112 + 8 * rb, "s6", rb)
    for q in range(4): A(f"ds_read_b128 {vr(CS+4*q,4)}, v194 offset:{32*q}")
    for rb in range(2):
        a0 = (rb * 3 + 2) * 16
        A(f"s_waitcnt lgkmcnt({4 if rb == 0 else 0})")
        for q in range(8): A(f"v_pk_mul_f32 {vr(T+2*q,2)}, {vr(208+2*q,2)}, v[196:197]")
        for q in range(8): A(f"v_pk_fma_f32 {vr(a0+2*q,2)}, {vr(a0+2*q,2)}, {vr(RW+2*q,2)}, {vr(T+2*q,2)}")
        if rb == 0: rowreads(1)
        pack_store(a0, 128 + 8 * rb, "s7", rb)
    for i in range(8): A(f"v_mul_f32 v{200+i}, {fhex(QSCALE)}, v{200+i}")
    for rb in range(2):
        fix_rowlane(rb * 48, rb)
        for i in range(8): A(f"v_cvt_pk_bf16_f32 v{R['Q']+8*rb+i}, v{rb*48+2*i}, v{rb*48+2*i+1}")
    A(f"s_lshl_b32 s43, s25, 10\ns_add_u32 s43, s43, {FKV}\ns_lshl_b32 s42, s22, 7\ns_add_u32 s42, s42, s43")

def attn_slot(n, sl, extra_mid=None, extra_end=None):
    R = RA; cur = AREG + sl * KV_SLOT; nxt = AREG + (sl + 1) % 3 * KV_SLOT
    qb = n & 1; b = n >> 1
    S = R["S"] + 16 * qb; Sn = R["S"] + 16 * (qb ^ 1)
    P = R["Pk"] + 8 * qb; Pp = R["Pk"] + 8 * (qb ^ 1)
    qn = qb ^ 1
    K, V, Q, O, L = R["K"], R["V"], R["Q"] + 8 * qn, R["O"] + 16 * qn, R["L"] + 4 * qn
    valu = []
    head = [f"v_cvt_pk_bf16_f32 v{Pp+7}, v{Sn+14}, v{Sn+15}"]
    for i in range(16):
        valu.append(f"v_exp_f32 v{S+i}, v{S+i}")
        p2 = i - 3
        if p2 >= 0 and p2 % 2 == 0: valu.append(f"v_cvt_pk_bf16_f32 v{P+p2//2}, v{S+p2}, v{S+p2+1}")
    M = [f"v_mfma_f32_32x32x16_bf16 {vr(Sn,16)}, {vr(K,4)}, {vr(Q,4)}, 0",
         f"v_mfma_f32_32x32x16_bf16 {vr(Sn,16)}, {vr(K+4,4)}, {vr(Q+4,4)}, {vr(Sn,16)}",
         f"v_mfma_f32_32x32x16_bf16 {vr(O,16)}, {vr(V,4)}, {vr(Pp,4)}, {vr(O,16)}",
         f"v_mfma_f32_32x32x16_bf16 {vr(O,16)}, {vr(V+4,4)}, {vr(Pp+4,4)}, {vr(O,16)}",
         f"v_smfmac_f32_16x16x64_bf16 {vr(L,4)}, {vr(R['ONE'],4)}, {vr(Pp,8)}, v{R['IDX']}"]
    pre = [[] for _ in range(5)]; post = [[] for _ in range(5)]
    if qb == 1: pre[0].append("s_waitcnt lgkmcnt(0)")
    if qb == 0:
        ko = cur + (b + 1) * 4096 if b < 3 else nxt
        post[1] += [f"ds_read_b128 {vr(K,4)}, v{L16} offset:{ko}", f"ds_read_b128 {vr(K+4,4)}, v{L16} offset:{ko+1024}"]
        post[3] += [f"ds_read_b128 {vr(V,4)}, v{L16} offset:{cur+b*4096+2048}", f"ds_read_b128 {vr(V+4,4)}, v{L16} offset:{cur+b*4096+3072}"]
    if extra_mid:
        for k, v in extra_mid.items(): post[k] += v
    out = list(head)
    cuts = {0: [0, 4, 9, 14, 19], 1: [0, 0, 10, 10, 19], 2: [0, 0, 9, 9, 9], 3: [0, 7, 7, 14, 14], 4: [0, 0, 8, 8, 16]}[OPT.get("av", 0)] + [len(valu)]
    for g in range(5): out += pre[g] + [M[g]] + post[g] + valu[cuts[g]:cuts[g + 1]]
    return out + (extra_end or [])

def kv_dma(sl):
    R = RA
    return [[f"s_add_u32 m0, s28, {AREG + sl * KV_SLOT}"], [f"buffer_load_dwordx4 v{R['dk']}, s[8:11], s26 offen {SC} lds"],
            [f"buffer_load_dwordx4 v{R['dk']}, s[8:11], s26 offen offset:1024 {SC} lds"],
            [f"buffer_load_dwordx4 v{R['dv']}, s[8:11], s26 offen offset:2048 {SC} lds"],
            [f"buffer_load_dwordx4 v{R['dv']}, s[8:11], s26 offen offset:3072 {SC} lds", "s_add_u32 s26, s26, 8192"]]

def attn_setup(A):
    R = RA; t = R["tmp"]
    for i in range(32): A(f"v_mov_b32 v{R['O']+i}, 0")
    for i in range(16): A(f"v_mov_b32 v{R['Pk']+i}, 0\nv_mov_b32 v{R['S']+16+i}, 0")
    for i in range(8): A(f"v_mov_b32 v{R['V']+i}, 0\nv_mov_b32 v{R['L']+i}, 0")
    A(f"""
    v_and_b32 v{t}, 15, v{LANE}
    v_mov_b32 v{t+1}, 0x3f803f80
    v_cmp_gt_u32 vcc, 2, v{t}
    v_lshrrev_b32 v{t+2}, 1, v{t}
    s_nop 0
    v_cndmask_b32 v{R['ONE']}, 0, v{t+1}, vcc
    v_cndmask_b32 v{R['ONE']+1}, 0, v{t+1}, vcc
    v_cmp_eq_u32 vcc, 1, v{t+2}
    v_and_b32 v{t}, 1, v{t}
    v_mul_u32_u24 v{t}, 0xaaaa, v{t}
    v_cndmask_b32 v{R['ONE']+2}, 0, v{t+1}, vcc
    v_cndmask_b32 v{R['ONE']+3}, 0, v{t+1}, vcc
    v_add_u32 v{R['IDX']}, 0x4444, v{t}
    s_lshl_b32 s3, s25, 17
    s_lshl_b32 s6, s21, 11
    s_add_u32 s6, s6, s3
    v_add_u32 v{R['dk']}, s6, v{L16}
    v_add_u32 v{R['dv']}, {4*MB-2048}, v{R['dk']}
    s_mov_b32 s26, 0
    s_lshl_b32 s28, s21, 12
    """)

def attn_main(A):
    R = RA
    for c in range(2):
        d = kv_dma(c); A.extend(d[0] + ["s_nop 0"] + sum(d[1:], []))
    A("s_waitcnt vmcnt(4)")
    gsync(A)
    K, Q, S = R["K"], R["Q"], R["S"]
    A(f"""
    ds_read_b128 {vr(K,4)}, v{L16} offset:{AREG}
    ds_read_b128 {vr(K+4,4)}, v{L16} offset:{AREG+1024}
    s_waitcnt lgkmcnt(0)
    v_mfma_f32_32x32x16_bf16 {vr(S,16)}, {vr(K,4)}, {vr(Q,4)}, 0
    v_mfma_f32_32x32x16_bf16 {vr(S,16)}, {vr(K+4,4)}, {vr(Q+4,4)}, {vr(S,16)}
    s_mov_b32 s29, 0
    s_nop 7
    s_nop 2
    """)
    stamp(A, 5)
    def chunk(sl, dma, sync, end7=()):
        d = kv_dma((sl + 2) % 3)
        for n in range(8):
            mid, end = None, None
            if n == 4 and sync: mid = {4: ["s_waitcnt vmcnt(0)"] + arrive()}
            if n == 5 and sync:
                c1, c2 = poll_split(A)
                mid = {1: poll_issue(), 3: d[0] if dma else [], 4: c1}; end = c2
            if dma == "test" and n == 6:
                Ls = A.label("kd")
                mid = {0: ["s_cmp_eq_u32 s29, 4", f"s_cbranch_scc1 {Ls}"] + sum(d[1:], []) + [Ls + ":"]}
            elif dma is True:
                if n == 6: mid = {0: d[1], 2: d[2], 4: d[3]}
                if n == 7: mid = {1: d[4]}
            if n == 7: end = list(end7)
            A.extend(attn_slot(n, sl, mid, end))
    L = A.label("att")
    A(L + ":")
    chunk(0, True, True); chunk(1, True, True)
    chunk(2, "test", True, ["s_add_u32 s29, s29, 1", "s_cmp_lt_u32 s29, 5", f"s_cbranch_scc1 {L}"])
    chunk(0, False, False)
    V, Pp, O, Lq = R["V"], R["Pk"] + 8, R["O"] + 16, R["L"] + 4
    A(f"""
    v_cvt_pk_bf16_f32 v{Pp+7}, v{S+30}, v{S+31}
    s_nop 1
    v_mfma_f32_32x32x16_bf16 {vr(O,16)}, {vr(V,4)}, {vr(Pp,4)}, {vr(O,16)}
    v_mfma_f32_32x32x16_bf16 {vr(O,16)}, {vr(V+4,4)}, {vr(Pp+4,4)}, {vr(O,16)}
    v_smfmac_f32_16x16x64_bf16 {vr(Lq,4)}, {vr(R['ONE'],4)}, {vr(Pp,8)}, v{R['IDX']}
    s_nop 7
    s_nop 3
    """)

def attn_finish(A):
    R = RA; t = R["tmp"]; O = R["O"]
    for qb in range(2):
        L = R["L"] + 4 * qb
        A(f"""
        v_add_f32 v{L}, v{L}, v{L+1}
        v_add_f32 v{L+2}, v{L+2}, v{L+3}
        s_nop 1
        v_permlane16_swap_b32 v{L}, v{L+2}
        v_mov_b32 v{t+qb}, v{L}
        s_nop 1
        v_permlane32_swap_b32 v{t+qb}, v{L}
        """)
    LS, LD = A.label("slow"), A.label("fin")
    A(f"v_mov_b32 v{t+8}, 0\nv_mov_b32 v{t+9}, 0\nv_pk_mul_f32 {vr(t+2,2)}, {vr(O,2)}, {vr(t+8,2)}")
    for i in range(1, 16): A(f"v_pk_fma_f32 {vr(t+2,2)}, {vr(O+2*i,2)}, {vr(t+8,2)}, {vr(t+2,2)}")
    A(f"v_add_f32 v{t+2}, v{t+2}, v{t+3}")
    A(f"""
    v_min_f32 v{t+3}, v{t}, v{t+1}
    v_max_f32 v{t+4}, v{t}, v{t+1}
    v_add_f32 v{t+3}, v{t+3}, v{t+2}
    v_add_f32 v{t+4}, v{t+4}, v{t+2}
    v_cmp_nle_f32 vcc, {fhex(2.0**-60)}, v{t+3}
    s_mov_b32 s42, {fhex(2.0**60)}
    v_cmp_nge_f32 s[40:41], s42, v{t+4}
    v_cmp_u_f32 s[42:43], v{t}, v{t+1}
    s_nop 1
    s_or_b64 vcc, vcc, s[40:41]
    s_or_b64 vcc, vcc, s[42:43]
    s_cbranch_vccnz {LS}
    {LD}:
    """)
    B = Asm(); B._lab = 9000
    B(LS + ":"); attn_slow(B); B(f"s_branch {LD}")
    COLD.extend(l.strip() for l in B.lines)
    srd(A, 12, PT["ws"], OF, 4 * MB)
    A(f"""
    v_rcp_f32 v{t+2}, v{t}
    v_rcp_f32 v{t+3}, v{t}
    v_rcp_f32 v{t+4}, v{t+1}
    v_rcp_f32 v{t+5}, v{t+1}
    s_lshl_b32 s6, s22, 3
    s_lshl_b32 s7, s21, 1
    s_add_u32 s6, s6, s7
    s_lshl_b32 s6, s6, 5
    s_add_u32 s6, s6, s25
    s_lshl_b32 s6, s6, 11
    s_add_u32 s7, s6, {32*2048}
    """)
    for qb in range(2):
        for i in range(8): A(f"v_pk_mul_f32 {vr(O+16*qb+2*i,2)}, {vr(O+16*qb+2*i,2)}, {vr(t+2+2*qb,2)}")
        d = R["Pk"] + 8 * qb
        for i in range(8): A(f"v_cvt_pk_bf16_f32 v{d+i}, v{O+16*qb+2*i}, v{O+16*qb+2*i+1}")
        for f in range(2): A(f"buffer_store_dwordx4 {vr(d+4*f,4)}, v{L16}, s[12:15], s{6+qb} offen offset:{1024*f} {SC}")
    A(f"""
    s_lshl_b32 s42, s22, 5
    s_add_u32 s42, s42, s25
    s_lshl_b32 s42, s42, 7
    s_add_u32 s42, s42, {FO}
    s_lshr_b32 s43, s100, 1
    s_lshl_b32 s43, s43, 12
    s_add_u32 s43, s43, {FO}
    """)

def attn_slow(A):
    R = RA; t = R["tmp"]; O, S, P, K, V, Q = R["O"], R["S"], R["Pk"], R["K"], R["V"], R["Q"]
    m = t + 4; al = t + 6; u = t + 7
    L = A.label("sl")
    for i in range(32): A(f"v_mov_b32 v{O+i}, 0")
    A(f"""
    v_mov_b32 v{t}, 0
    v_mov_b32 v{t+1}, 0
    v_mov_b32 v{m}, {fhex(-3.0e38)}
    v_mov_b32 v{m+1}, {fhex(-3.0e38)}
    s_lshl_b32 s26, s25, 17
    s_add_u32 s27, s26, {4*MB}
    s_mov_b32 s29, 64
    {L}:
    buffer_load_dwordx4 {vr(K,4)}, v{L16}, s[8:11], s26 offen {SC}
    buffer_load_dwordx4 {vr(K+4,4)}, v{L16}, s[8:11], s26 offen offset:1024 {SC}
    buffer_load_dwordx4 {vr(V,4)}, v{L16}, s[8:11], s27 offen {SC}
    buffer_load_dwordx4 {vr(V+4,4)}, v{L16}, s[8:11], s27 offen offset:1024 {SC}
    s_add_u32 s26, s26, 2048
    s_add_u32 s27, s27, 2048
    s_waitcnt vmcnt(0)
    """)
    for qb in range(2):
        Oq = O + 16 * qb
        A(f"""
        v_mfma_f32_32x32x16_bf16 {vr(S,16)}, {vr(K,4)}, {vr(Q+8*qb,4)}, 0
        v_mfma_f32_32x32x16_bf16 {vr(S,16)}, {vr(K+4,4)}, {vr(Q+8*qb+4,4)}, {vr(S,16)}
        s_nop 7
        s_nop 3
        v_max3_f32 v{u}, v{S}, v{S+1}, v{m+qb}
        """)
        for i in range(2, 16, 2): A(f"v_max3_f32 v{u}, v{S+i}, v{S+i+1}, v{u}")
        A(f"""
        v_mov_b32 v{al}, v{u}
        s_nop 1
        v_permlane32_swap_b32 v{al}, v{u}
        v_max_f32 v{u}, v{u}, v{al}
        v_sub_f32 v{al}, v{m+qb}, v{u}
        v_exp_f32 v{al}, v{al}
        v_mov_b32 v{m+qb}, v{u}
        """)
        for i in range(16): A(f"v_sub_f32 v{S+i}, v{S+i}, v{u}")
        for i in range(16): A(f"v_exp_f32 v{S+i}, v{S+i}")
        A(f"v_mul_f32 v{t+qb}, v{t+qb}, v{al}")
        for i in range(16): A(f"v_mul_f32 v{Oq+i}, v{Oq+i}, v{al}")
        for i in range(16): A(f"v_add_f32 v{t+qb}, v{t+qb}, v{S+i}")
        for i in range(8): A(f"v_cvt_pk_bf16_f32 v{P+i}, v{S+2*i}, v{S+2*i+1}")
        A(f"""
        s_nop 1
        v_mfma_f32_32x32x16_bf16 {vr(Oq,16)}, {vr(V,4)}, {vr(P,4)}, {vr(Oq,16)}
        v_mfma_f32_32x32x16_bf16 {vr(Oq,16)}, {vr(V+4,4)}, {vr(P+4,4)}, {vr(Oq,16)}
        """)
    A(f"s_sub_u32 s29, s29, 1\ns_cmp_lg_u32 s29, 0\ns_nop 7\ns_cbranch_scc1 {L}\ns_nop 3")
    for qb in range(2):
        A(f"v_mov_b32 v{u}, v{t+qb}\ns_nop 1\nv_permlane32_swap_b32 v{u}, v{t+qb}\nv_add_f32 v{t+qb}, v{t+qb}, v{u}")

def pack2(A, d, a, b, swap):
    A(f"v_cvt_pk_bf16_f32 v{d}, v{a}, v{a+1}\nv_cvt_pk_bf16_f32 v{d+1}, v{a+2}, v{a+3}")
    A(f"v_cvt_pk_bf16_f32 v{d+2}, v{b}, v{b+1}\nv_cvt_pk_bf16_f32 v{d+3}, v{b+2}, v{b+3}")
    A(f"s_nop 1\n{swap} v{d}, v{d+2}\n{swap} v{d+1}, v{d+3}")

def epi_B(A):
    LZ2, LH1, LEND = A.label("z2"), A.label("h1"), A.label("eB")
    CS, TM = 112, 120
    A(f"v_lshrrev_b32 v204, 4, v{LANE}\nv_lshlrev_b32 v204, 4, v204\nv_add_u32 v204, {GB['tab']}, v204")
    for ft in range(7): A(f"ds_read_b128 {vr(160+4*ft,4)}, v204 offset:{64*ft}")
    bcast4(A, 212, 188); bcast4(A, 214, 196)
    A("s_waitcnt lgkmcnt(0)")
    for st in range(4):
        for i in range(14): A(f"v_pk_mul_f32 {vr(120+2*i,2)}, {vr(160+2*i,2)}, {vr(196+2*st,2)}")
        for i in range(14): A(f"v_pk_fma_f32 {vr(st*28+2*i,2)}, {vr(st*28+2*i,2)}, {vr(188+2*st,2)}, {vr(120+2*i,2)}")
    for i, c in enumerate((GC0, GC0, GC1, GC1)): A(f"v_mov_b32 v{CS+i}, {fhex(c)}")
    A(f"v_mov_b32 v{CS+4}, 1.0\nv_mov_b32 v{CS+5}, 1.0\ns_nop 1")
    gelu_pairs(A, list(range(0, 112, 2)), TM, CS)
    stamp(A, 3)
    A(f"s_mov_b32 s16, 4096\ns_mov_b32 s17, 8192\ns_mov_b32 s18, 12288\ns_cmp_ge_u32 s24, 2\ns_cbranch_scc1 {LZ2}")
    so = lambda k: ("0", "s16", "s17", "s18")[k >> 2]
    srd(A, 12, PT["ws"], Z1F, ZBYTES)
    A(f"""
    v_and_b32 v130, 15, v{LANE}
    v_lshrrev_b32 v131, 5, v{LANE}
    v_lshl_add_u32 v130, v131, 4, v130
    v_bfe_u32 v131, v{LANE}, 4, 1
    v_lshl_add_u32 v130, v131, 5, v130
    v_lshlrev_b32 v130, 4, v130
    s_lshl_b32 s3, s23, 6
    s_lshl_b32 s6, s22, 3
    s_add_u32 s3, s3, s6
    s_lshl_b32 s6, s21, 1
    s_add_u32 s3, s3, s6
    s_lshl_b32 s3, s3, 1
    s_add_u32 s3, s3, s24
    s_mul_i32 s3, s3, 7168
    v_add_u32 v130, s3, v130
    v_add_u32 v131, {7*2048}, v130
    """)
    k = 0
    for sp in range(2):
        for ft in range(7):
            d = 136 + 4 * (k % 4); k += 1
            pack2(A, d, ((2 * sp) * 7 + ft) * 4, ((2 * sp + 1) * 7 + ft) * 4, "v_permlane32_swap_b32")
            A(f"buffer_store_dwordx4 {vr(d,4)}, v{130+sp}, s[12:15], {so(ft)} offen offset:{(ft&3)*1024} {SC}")
    A(f"s_branch {LEND}\n{LZ2}:")
    S = 128
    for st in range(4): A(f"v_pk_add_f32 {vr(S+2*st,2)}, {vr(st*28,2)}, {vr(st*28+2,2)}")
    for i in range(2, 14):
        for st in range(4): A(f"v_pk_add_f32 {vr(S+2*st,2)}, {vr(S+2*st,2)}, {vr(st*28+2*i,2)}")
    for st in range(4): A(f"v_add_f32 v{136+st}, v{S+2*st}, v{S+2*st+1}")
    reduce4(A, 136)
    A(f"v_mul_f32 v137, {fhex(-1/112)}, v136")
    bcast4(A, 137, 140)
    for i in range(14):
        for st in range(4): A(f"v_pk_add_f32 {vr(148+2*st,2)}, {vr(st*28+2*i,2)}, {vr(140+2*st,2)}")
        for st in range(4):
            if i == 0: A(f"v_pk_mul_f32 {vr(S+2*st,2)}, {vr(148+2*st,2)}, {vr(148+2*st,2)}")
            else: A(f"v_pk_fma_f32 {vr(S+2*st,2)}, {vr(148+2*st,2)}, {vr(148+2*st,2)}, {vr(S+2*st,2)}")
    for st in range(4): A(f"v_add_f32 v{156+st}, v{S+2*st}, v{S+2*st+1}")
    reduce4(A, 156)
    if OPT.get("hs") == 10: stamp(A, 7, force=True)
    srd(A, 12, PT["ws"], STAT, 16 * 2048 * 16)
    Lp, Lpd = A.label("stp"), A.label("std")
    A(f"""
    v_mov_b32 v137, s31
    v_mov_b32 v138, v156
    v_mov_b32 v139, s31
    s_lshl_b32 s6, s22, 8
    s_lshl_b32 s7, s21, 6
    s_add_u32 s6, s6, s7
    s_lshl_b32 s6, s6, 4
    v_add_u32 v160, s6, v{L16}
    s_lshl_b32 s3, s23, 1
    s_add_u32 s3, s3, s24
    s_sub_u32 s3, s3, 2
    s_lshl_b32 s3, s3, 15
    buffer_store_dwordx4 v[136:139], v160, s[12:15], s3 offen {SC}
    s_mov_b32 s97, 0x8000
    v_and_b32 v161, 15, v{LANE}
    v_lshlrev_b32 v161, 15, v161
    s_add_u32 s6, s6, {63*16+12}
    {Lp}:
    buffer_load_dword v162, v161, s[12:15], s6 offen {SC}
    s_sub_u32 s97, s97, 1
    s_cmp_eq_u32 s97, 0
    s_cbranch_scc1 {Lpd}
    s_waitcnt vmcnt(0)
    v_cmp_ne_u32 vcc, s31, v162
    s_cbranch_vccz {Lp}f
    s_sleep 4
    s_branch {Lp}
    {Lp}f:
    """)
    G = 164
    if OPT.get("hs") == 10: stamp(A, 8, force=True)
    for ct in range(16): A(f"s_mov_b32 s3, {ct*32768}\nbuffer_load_dwordx4 {vr(G+4*ct,4)}, v160, s[12:15], s3 offen {SC}")
    A("s_waitcnt vmcnt(0)")
    A(f"v_xor_b32 v163, s31, v{G+1}")
    for ct in range(16):
        for u in (1, 3):
            if ct or u == 3: A(f"v_xor_b32 v162, s31, v{G+4*ct+u}\nv_or_b32 v163, v163, v162")
    A(f"""
    v_cmp_ne_u32 vcc, 0, v163
    s_cbranch_vccnz {Lp}
    {Lpd}:
    s_waitcnt vmcnt(0)
    """)
    if OPT.get("hs") == 10: stamp(A, 9, force=True)
    for ct in range(16): A(f"v_mov_b32 v{128+2*ct}, v{G+4*ct}\nv_mov_b32 v{129+2*ct}, v{G+4*ct+2}")
    stats_combine(A, 128, 160)
    A("v_mul_f32 v160, v160, v161\nv_sub_f32 v160, 0, v160")
    bcast4(A, 161, 128); bcast4(A, 160, 136)
    for i in range(14):
        for st in range(4): A(f"v_pk_fma_f32 {vr(st*28+2*i,2)}, {vr(st*28+2*i,2)}, {vr(128+2*st,2)}, {vr(136+2*st,2)}")
    srd(A, 12, PT["ws"], Z2N, ZBYTES)
    A(f"""
    s_lshl_b32 s3, s23, 5
    s_lshl_b32 s6, s22, 2
    s_add_u32 s3, s3, s6
    s_add_u32 s3, s3, s21
    s_lshl_b32 s3, s3, 1
    s_and_b32 s6, s24, 1
    s_add_u32 s3, s3, s6
    s_mul_i32 s3, s3, 14336
    v_lshrrev_b32 v146, 4, v{LANE}
    v_lshlrev_b32 v146, 6, v146
    v_xor_b32 v146, v146, v{L16}
    v_add_u32 v146, s3, v146
    v_bfe_u32 v147, v{LANE}, 4, 1
    v_lshrrev_b32 v148, 5, v{LANE}
    v_lshl_add_u32 v147, v147, 1, v148
    v_lshlrev_b32 v147, 6, v147
    v_xor_b32 v147, v147, v{L16}
    v_add_u32 v147, s3, v147
    s_cmp_eq_u32 s24, 3
    s_cbranch_scc1 {LH1}
    """)
    for half in range(2):
        n = 0
        for st in range(4):
            for p in range(3):
                ft = 2 * p + half; k = st * 3 + p; d = 148 + 4 * (n % 4); n += 1
                pack2(A, d, (st * 7 + ft) * 4, (st * 7 + ft + 1) * 4, "v_permlane16_swap_b32")
                A(f"buffer_store_dwordx4 {vr(d,4)}, v146, s[12:15], {so(k)} offen offset:{(k&3)*1024} {SC}")
            if st & 1:
                ft = 6 if half == 0 else 0; k = 12 + st // 2; d = 148 + 4 * (n % 4); n += 1
                pack2(A, d, ((st - 1) * 7 + ft) * 4, (st * 7 + ft) * 4, "v_permlane16_swap_b32")
                A(f"buffer_store_dwordx4 {vr(d,4)}, v147, s[12:15], {so(k)} offen offset:{(k&3)*1024} {SC}")
        if half == 0: A(f"s_branch {LEND}\n{LH1}:")
    A(f"""
    {LEND}:
    s_lshl_b32 s43, s23, 12
    s_add_u32 s43, s43, {FZ}
    s_lshl_b32 s42, s36, 7
    s_add_u32 s42, s42, s43
    """)

ZS = 14336; WS_ = 16384; SPZ = BREG; SPWR = BREG + 4 * ZS
RB = dict(fr=56, za=232, wa=236, w16=240, dz=251, dw=252, tmp=64)

def sp_dma_w(slot):
    R = RB
    g = [[f"buffer_load_dwordx4 v{R['dw']+j}, s[12:15], s27 offen offset:{j*1024} lds"] for j in range(4)]
    g[0] = [f"s_add_u32 m0, s30, {SPWR + slot * WS_}", "s_nop 0"] + g[0]
    g[3] += ["s_add_u32 s27, s27, 128"]
    return g
def sp_dma_z(slot):
    R = RB
    g = [[f"buffer_load_dwordx4 v{R['dz']}, s[8:11], s26 offen offset:{j*1024} {SC} lds"] for j in range(4)]
    g[0] = [f"s_add_u32 m0, s28, {SPZ + slot * ZS}", "s_nop 0"] + g[0]
    g[3] = ["s_mov_b64 exec, s[98:99]"] + g[3] + ["s_mov_b64 exec, -1", "s_add_u32 s26, s26, 28672"]
    return g
def sp_reads(t):
    R = RB; f = R["fr"] + 88 * (t & 1); rd = []; zo = (t & 3) * ZS; wo = (t % 3) * WS_
    for ks in range(4):
        rd.append(f"ds_read_b128 {vr(f+4*ks,4)}, v{R['wa']+ks} offset:{wo}")
        for p in range(3):
            for hf in range(2): rd.append(f"ds_read_b64_tr_b16 {vr(f+16+12*ks+4*p+2*hf,2)}, v{R['za']+hf} offset:{zo+(3*ks+p)*1024}")
        if ks & 1:
            u = ks >> 1
            for hf in range(2): rd.append(f"ds_read_b64_tr_b16 {vr(f+64+4*u+2*hf,2)}, v{R['za']+2+hf} offset:{zo+(12+u)*1024}")
            for a in range(2): rd.append(f"ds_read_b128 {vr(f+72+8*u+4*a,4)}, v{R['w16']+u} offset:{wo+2048*a}")
    return rd
def sp_mfma(buf):
    f = RB["fr"] + 88 * buf
    big = lambda ks, p: [f"v_mfma_f32_32x32x16_bf16 {vr(16*p,16)}, {vr(f+16+12*ks+4*p,4)}, {vr(f+4*ks,4)}, {vr(16*p,16)}"]
    sm = lambda u, a: [f"v_mfma_f32_16x16x32_bf16 {vr(48+4*a,4)}, {vr(f+64+4*u,4)}, {vr(f+72+8*u+4*a,4)}, {vr(48+4*a,4)}"]
    if OPT.get("smp"): return [big(0, 0), big(0, 1), big(0, 2), big(1, 0), sm(0, 0) + sm(0, 1), [], big(1, 1), big(1, 2), big(2, 0), big(2, 1), big(2, 2), sm(1, 0) + sm(1, 1), [], big(3, 0), big(3, 1), big(3, 2)]
    return [big(0, 0), big(0, 1), big(0, 2), sm(0, 0), big(1, 0), big(1, 1), big(1, 2), sm(0, 1), big(2, 0), big(2, 1), big(2, 2), sm(1, 0), big(3, 0), big(3, 1), sm(1, 1), big(3, 2)]

def sp_setup(A):
    R = RB; t = R["tmp"]; za = R["za"]
    srd(A, 8, PT["ws"], Z2N, ZBYTES); srd(A, 12, PT["wsp"], 0, 2048 * 4096)
    A(f"""
    s_and_b32 s39, s36, 1
    s_lshr_b32 s40, s36, 1
    s_lshl_b32 s40, s40, 2
    s_add_u32 s40, s40, s21
    s_lshl_b32 s28, s21, 12
    s_cmp_eq_u32 s21, 3
    s_cmov_b32 s28, {11*1024}
    s_cmp_lt_u32 s21, 2
    s_cselect_b32 s98, -1, 0
    s_mov_b32 s99, s98
    s_mul_i32 s3, s23, {32*28672}
    s_mul_i32 s6, s39, {ZS}
    s_add_u32 s3, s3, s6
    s_add_u32 s3, s3, s28
    v_add_u32 v{R['dz']}, s3, v{L16}
    s_lshl_b32 s3, s40, 5
    v_lshrrev_b32 v{t}, 3, v{LANE}
    v_add_u32 v{t}, s3, v{t}
    v_lshlrev_b32 v{t}, 12, v{t}
    v_lshrrev_b32 v{t+1}, 4, v{LANE}
    v_and_b32 v{t+2}, 7, v{LANE}
    v_xor_b32 v{t+1}, v{t+1}, v{t+2}
    v_lshl_add_u32 v{R['dw']}, v{t+1}, 4, v{t}
    v_xor_b32 v{t+1}, 4, v{t+1}
    v_lshl_add_u32 v{R['dw']+1}, v{t+1}, 4, v{t}
    v_add_u32 v{R['dw']+2}, {2*(8*4096-1024)}, v{R['dw']}
    v_add_u32 v{R['dw']+3}, {3*(8*4096-1024)}, v{R['dw']+1}
    v_add_u32 v{R['dw']+1}, {8*4096-1024}, v{R['dw']+1}
    s_lshl_b32 s30, s21, 12
    s_mov_b32 s26, 0
    s_mov_b32 s27, 0
    v_lshrrev_b32 v{t}, 5, v{LANE}
    v_bfe_u32 v{t+1}, v{LANE}, 2, 2
    v_lshl_add_u32 v{t+1}, v{t}, 3, v{t+1}
    v_bfe_u32 v{t+2}, v{LANE}, 4, 1
    v_bfe_u32 v{t+3}, v{LANE}, 1, 1
    v_lshl_add_u32 v{t+4}, v{t+3}, 1, v{t+2}
    v_lshlrev_b32 v{t+5}, 2, v{t+4}
    v_xor_b32 v{t+5}, v{t+5}, v{t+1}
    v_lshlrev_b32 v{t+5}, 4, v{t+5}
    v_and_b32 v{t+6}, 1, v{LANE}
    v_lshl_add_u32 v{t+5}, v{t+6}, 3, v{t+5}
    v_lshl_add_u32 v{za}, v{t+4}, 8, v{t+5}
    v_xor_b32 v{za+1}, 64, v{za}
    ; strip (16x16x32 operand): row 8(g&1)+rr of tile parity g>>1, producer group gp = (g>>1) + 2(cc>>1), swizzle 4*((gp>>1) + 2(gp&1))
    v_xor_b32 v{t+4}, v{t+2}, v{t}
    v_lshlrev_b32 v{t+4}, 1, v{t+4}
    v_add_u32 v{t+4}, v{t+4}, v{t+3}
    v_bfe_u32 v{t+5}, v{LANE}, 2, 2
    v_lshl_add_u32 v{t+4}, v{t+4}, 2, v{t+5}
    v_lshlrev_b32 v{t+4}, 4, v{t+4}
    v_lshl_add_u32 v{t+4}, v{t+6}, 3, v{t+4}
    v_lshl_add_u32 v{t+4}, v{t}, 8, v{t+4}
    v_lshl_add_u32 v{za+2}, v{t+3}, 9, v{t+4}
    v_xor_b32 v{za+3}, 64, v{za+2}
    v_and_b32 v{t+4}, 15, v{LANE}
    v_lshrrev_b32 v{t+5}, 1, v{t+4}
    v_lshrrev_b32 v{t+7}, 4, v{LANE}
    v_xor_b32 v{t+5}, v{t+5}, v{t+7}
    v_lshlrev_b32 v{t+4}, 7, v{t+4}
    v_lshl_add_u32 v{t+4}, v{t+5}, 4, v{t+4}
    s_add_u32 s3, s30, {SPWR}
    v_add_u32 v{R['w16']}, s3, v{t+4}
    v_xor_b32 v{R['w16']+1}, 64, v{R['w16']}
    v_and_b32 v{t+1}, 31, v{LANE}
    v_bfe_u32 v{t+2}, v{LANE}, 1, 3
    v_xor_b32 v{t}, v{t}, v{t+2}
    v_lshlrev_b32 v{t+1}, 7, v{t+1}
    v_lshl_add_u32 v{t+1}, v{t}, 4, v{t+1}
    s_add_u32 s3, s30, {SPWR}
    v_add_u32 v{R['wa']}, s3, v{t+1}
    v_xor_b32 v{R['wa']+1}, 32, v{R['wa']}
    v_xor_b32 v{R['wa']+2}, 64, v{R['wa']}
    v_xor_b32 v{R['wa']+3}, 96, v{R['wa']}
    """)
    for i in range(4): A(f"v_add_u32 v{za+i}, {SPZ}, v{za+i}")
    for i in range(56): A(f"v_mov_b32 v{i}, 0")

def mix(rd, dm, every):
    fill = []; dm = list(dm)
    for i, r_ in enumerate(rd):
        fill.append(r_)
        if i % every == every - 1 and dm: fill.append(dm.pop(0))
    return fill + dm
def weave(main, fill):
    out = []; k = 0
    for i, g in enumerate(main):
        out += g
        tgt = ((i + 1) * len(fill) + len(main) - 1) // len(main)
        while k < tgt:
            out += [fill[k]] if isinstance(fill[k], str) else fill[k]; k += 1
    return out

def sp_wpre(A):
    for c in range(3):
        for g in sp_dma_w(c): A.extend(g)
    return 12
def sp_main(A):
    for c in range(4):
        for g in sp_dma_z(c): A.extend(g)
    A("s_waitcnt vmcnt(12)")
    gsync(A)
    A.extend(sp_reads(0))
    A("s_waitcnt vmcnt(8)")
    A.extend(arrive()); A.extend(poll_issue())
    stamp(A, 6)
    NR = OPT.get("spr", 11)
    def stage(t):
        m = sp_mfma(t & 1)
        if t == 31: return ["s_waitcnt lgkmcnt(0)"] + sum(m, [])
        cw = lambda u: 4 if 0 <= u and u + 3 < 32 else 0
        cz = lambda u: 4 if 0 <= u and u + 4 < 32 else 0
        dw = sp_dma_w(t % 3) if cw(t) else []; dz = sp_dma_z(t & 3) if cz(t) else []
        o = []
        if t >= 2: o.append(f"s_waitcnt vmcnt({cz(t-2) + cw(t-1) + cz(t-1)})")
        if "sw" in OPT and t == OPT["sw"]: o.append(f"s_setprio {OPT.get('swp', 0)}")
        o += poll_check(A)
        o += weave(m[:NR], mix(sp_reads(t + 1), dw, 9))
        if t < 30:
            vm = (4 if t == 0 else cw(t-1) + cz(t-1) if t > 1 else 8) + cw(t)
            o += [f"s_waitcnt vmcnt({vm})"] + arrive()
        o += weave(m[NR:15], dz)
        if t < 30: o += poll_issue()
        return o + m[15] + itr(3)
    itr0(A, 3)
    for t in range(2): A.extend(stage(t))
    L = A.label("sp")
    A(f"s_mov_b32 s29, 2\n{L}:")
    for t in range(2, 14): A.extend(stage(t))
    A(f"s_sub_u32 s29, s29, 1\ns_cmp_lg_u32 s29, 0\ns_cbranch_scc1 {L}")
    for t in range(26, 30): A.extend(stage(t))
    A.extend(stage(30))
    sp_epi_loads(A)
    A.extend(stage(31))

ZB = 56
def sp_epi_loads(A):
    srd(A, 16, PT["ws"], Z1F, ZBYTES)
    A(f"""
    s_lshl_b32 s3, s23, 6
    s_add_u32 s3, s3, s40
    s_mul_i32 s3, s3, {7*2048}
    s_lshl_b32 s6, s39, 13
    s_add_u32 s6, s6, s3
    s_add_u32 s7, s6, 4096
    s_lshl_b32 s41, s39, 10
    s_add_u32 s41, s41, 6144
    s_add_u32 s3, s3, s41
    """)
    for i in range(6): A(f"buffer_load_dwordx4 {vr(ZB+4*i,4)}, v{L16}, s[16:19], s{6+(i>>2)} offen offset:{(i&3)*1024} {SC}")
    A(f"""
    v_and_b32 v251, 15, v{LANE}
    v_lshrrev_b32 v252, 5, v{LANE}
    v_lshl_add_u32 v251, v252, 4, v251
    v_bfe_u32 v252, v{LANE}, 4, 1
    v_lshl_add_u32 v252, v252, 5, v251
    v_lshlrev_b32 v252, 4, v252
    buffer_load_dwordx4 {vr(ZB+24,4)}, v252, s[16:19], s3 offen {SC}
    """)
    srd(A, 16, PT["bsp"], 0, 4096)
    A(f"""
    s_lshl_b32 s3, s40, 6
    v_lshlrev_b32 v251, 1, v251
    v_and_b32 v254, 31, v{LANE}
    v_lshlrev_b32 v254, 1, v254
    buffer_load_ushort v251, v251, s[16:19], s3 offen
    buffer_load_ushort v254, v254, s[16:19], s3 offen
    """)

def sp_epi(A):
    D = 88; P = 104
    srd(A, 16, PT["ws"], UF, ZBYTES)
    A(f"""
    s_mul_i32 s3, s40, 56
    s_mul_i32 s6, s23, 7
    s_add_u32 s3, s3, s6
    s_lshl_b32 s3, s3, 11
    s_lshl_b32 s6, s39, 13
    s_add_u32 s6, s6, s3
    s_add_u32 s7, s6, 4096
    s_add_u32 s3, s3, s41
    s_waitcnt vmcnt(0)
    v_lshlrev_b32 v254, 16, v254
    v_lshlrev_b32 v240, 16, v251
    v_mov_b32 v255, v254
    v_mov_b32 v241, v240
    """)
    for p in range(4):
        a = 16 * p; n = 8 if p < 3 else 4
        if p == 3:
            for i in range(4): A(f"v_permlane32_swap_b32 v{48+i}, v{52+i}")
        for q in range(n): A(f"v_lshlrev_b32 v{D+2*q}, 16, v{ZB+8*p+q}\nv_and_b32 v{D+2*q+1}, 0xffff0000, v{ZB+8*p+q}")
        for q in range(n): A(f"v_pk_add_f32 {vr(a+2*q,2)}, {vr(a+2*q,2)}, {'v[254:255]' if p < 3 else 'v[240:241]'}")
        for q in range(n): A(f"v_pk_mul_f32 {vr(a+2*q,2)}, {vr(a+2*q,2)}, {vr(D+2*q,2)}")
        for q in range(n): A(f"v_cvt_pk_bf16_f32 v{P+8*p+q}, v{a+2*q}, v{a+2*q+1}")
        if p < 3:
            for f in range(2): A(f"buffer_store_dwordx4 {vr(P+8*p+4*f,4)}, v{L16}, s[16:19], s{6+((2*p+f)>>2)} offen offset:{((2*p+f)&3)*1024} {SC}")
    A(f"""
    buffer_store_dwordx4 {vr(P+24,4)}, v252, s[16:19], s3 offen {SC}
    s_lshr_b32 s42, s36, 1
    s_lshl_b32 s42, s42, 3
    s_add_u32 s42, s42, s23
    s_lshl_b32 s42, s42, 1
    s_add_u32 s42, s42, s39
    s_lshl_b32 s42, s42, 7
    s_add_u32 s42, s42, {FU}
    s_lshl_b32 s43, s100, 11
    s_add_u32 s43, s43, {FU}
    """)

FWS = 8192
def FP(role):
    if role == "A": return dict(ns=6, na=4, da=3, dw=5, nst=16)
    d = OPT.get("fda", 5)
    return dict(ns=8, na=8, da=d, dw=d + 2, nst=28)
RF = dict(wf=32, af=96, wa=224, da=226, dw=227, tmp=230, x=232)
def f_loads(role, t, w=True, a=True):
    R = RF; P = FP(role); g = []
    if w:
        g.append([f"s_add_u32 m0, s30, {FREG[role] + ((t + P['dw']) % P['ns']) * FWS}", "s_nop 0", f"buffer_load_dwordx4 v{R['dw']}, s[12:15], s27 offen lds"])
        g.append([f"buffer_load_dwordx4 v{R['dw']+1}, s[12:15], s27 offen offset:1024 lds", "s_add_u32 s27, s27, 131072"])
    if a:
        f = R["af"] + 16 * ((t + P["da"]) % P["na"])
        for ks in range(4):
            g.append([f"buffer_load_dwordx4 {vr(f+4*ks,4)}, v{R['da']}, s[8:11], s26 offen offset:{ks*1024} {SC}"] + (["s_add_u32 s26, s26, 4096"] if ks == 3 else []))
    return g
def f_reads(role, t):
    R = RF; f = R["wf"] + 32 * (t & 1); so = (t % FP(role)["ns"]) * FWS
    return [f"ds_read_b64_tr_b16 {vr(f+8*ks+4*nb+2*hf,2)}, v{R['wa']+nb} offset:{so+(16*ks+8*hf)*128}" for ks in range(4) for nb in range(2) for hf in range(2)]
def f_mfma(role, t):
    R = RF; f = R["wf"] + 32 * (t & 1); af = R["af"] + 16 * (t % FP(role)["na"])
    return [f"v_mfma_f32_32x32x16_bf16 {vr(16*nb,16)}, {vr(f+8*ks+4*nb,4)}, {vr(af+4*ks,4)}, {vr(16*nb,16)}" for ks in range(4) for nb in range(2)]

def f_setup(A, role):
    R = RF; t = 96; base = FREG[role]
    nkb = 32 if role == "A" else 56
    srd(A, 8, PT["ws"], OF if role == "A" else UF, 64 * nkb * 2048)
    srd(A, 12, PT["wo" if role == "A" else "wout"], 0, nkb * 32 * 2048)
    A(f"""
    s_lshl_b32 s3, s100, 2
    s_add_u32 s3, s3, s21
    s_mul_i32 s3, s3, {nkb*2048}
    v_add_u32 v{R['da']}, s3, v{L16}
    v_lshrrev_b32 v{t+1}, 3, v{LANE}
    s_lshl_b32 s3, s21, 4
    v_add_u32 v{t+1}, s3, v{t+1}
    v_lshlrev_b32 v{t+1}, 11, v{t+1}
    v_bfe_u32 v{t+2}, v{LANE}, 4, 1
    v_lshlrev_b32 v{t+2}, 2, v{t+2}
    v_and_b32 v{t+3}, 7, v{LANE}
    v_xor_b32 v{t+2}, v{t+2}, v{t+3}
    v_lshl_add_u32 v{t+1}, v{t+2}, 4, v{t+1}
    s_lshl_b32 s3, s101, 7
    v_add_u32 v{R['dw']}, s3, v{t+1}
    v_add_u32 v{R['dw']+1}, {8*2048-1024}, v{R['dw']}
    s_lshl_b32 s30, s21, 11
    s_mov_b32 s26, 0
    s_mov_b32 s27, 0
    v_lshrrev_b32 v{t+1}, 5, v{LANE}
    v_bfe_u32 v{t+2}, v{LANE}, 2, 2
    v_lshl_add_u32 v{t+1}, v{t+1}, 2, v{t+2}
    v_lshlrev_b32 v{t+1}, 7, v{t+1}
    v_lshrrev_b32 v{t+2}, 1, v{t+2}
    v_lshl_add_u32 v{t+1}, v{t+2}, 6, v{t+1}
    v_bfe_u32 v{t+2}, v{LANE}, 4, 1
    v_lshl_add_u32 v{t+1}, v{t+2}, 5, v{t+1}
    v_and_b32 v{t+2}, 3, v{LANE}
    v_lshl_add_u32 v{t+1}, v{t+2}, 3, v{t+1}
    v_add_u32 v{R['wa']}, {base}, v{t+1}
    v_xor_b32 v{R['wa']+1}, 64, v{R['wa']}
    """)
    for i in range(32): A(f"v_mov_b32 v{i}, 0")

def f_wpre(A, role):
    t = RF["tmp"]; X = RF["x"]; P = FP(role)
    srd(A, 16, PT["x"], 0, 4 * MB)
    A(f"""
    s_lshl_b32 s3, s100, 2
    s_add_u32 s3, s3, s21
    s_lshl_b32 s3, s3, 5
    v_and_b32 v{t}, 31, v{LANE}
    v_add_u32 v{t}, s3, v{t}
    v_lshlrev_b32 v{t}, 11, v{t}
    v_lshrrev_b32 v{t+1}, 5, v{LANE}
    v_lshl_add_u32 v{t}, v{t+1}, 4, v{t}
    s_lshl_b32 s3, s101, 7
    s_add_u32 s3, s3, {0 if role == 'A' else 64}
    v_add_u32 v{t}, s3, v{t}
    buffer_load_dwordx4 {vr(X,4)}, v{t}, s[16:19], 0 offen
    buffer_load_dwordx4 {vr(X+4,4)}, v{t}, s[16:19], 0 offen offset:32
    """)
    for c in range(P["dw"]):
        for g in f_loads(role, c - P["dw"], True, False): A.extend(g)
    return 2 + 2 * P["dw"]

def f_main(A, role):
    P = FP(role); nst, DA, DW = P["nst"], P["da"], P["dw"]
    for c in range(DA):
        for g in f_loads(role, c - DA, False, True): A.extend(g)
    A(f"s_waitcnt vmcnt({4*DA})")
    gsync(A)
    A.extend(f_reads(role, 0))
    A.extend(arrive()); A.extend(poll_issue())
    stamp(A, 8)
    def stage(t):
        m = f_mfma(role, t)
        def cnt(u): return (2 if u + DW < nst else 0) + (4 if u + DA < nst else 0)
        vm = sum(cnt(u) if u >= 0 else 4 for u in range(t - DA + 1, t))
        if t == nst - 1: return [f"s_waitcnt vmcnt(0) lgkmcnt(0)"] + m
        o = [f"s_waitcnt vmcnt({vm})"] + poll_check(A) + arrive()
        o += interleave(m[:6], mix(f_reads(role, t + 1), f_loads(role, t, t + DW < nst, t + DA < nst), 3))
        o += [m[6]] + poll_issue() + [m[7]]
        return o
    if role == "A":
        for t in range(nst): A.extend(stage(t))
        return
    for t in range(5): A.extend(stage(t))
    L = A.label("fin" + role)
    A(f"s_mov_b32 s29, 2\n{L}:")
    for t in range(5, 13): A.extend(stage(t))
    A(f"s_sub_u32 s29, s29, 1\ns_cmp_lg_u32 s29, 0\ns_cbranch_scc1 {L}")
    for t in range(21, nst): A.extend(stage(t))

def f_epi(A, role):
    t = 100; keep = 0 if role == "A" else 16; give = 16 - keep
    X = RF["x"]; Y = 32; E = 64; C = 96
    srd(A, 12, PT["out"], 0, 4 * MB)
    A(f"""
    s_lshl_b32 s3, s21, 12
    v_add_u32 v{t+3}, s3, v{L16}
    v_add_u32 v{t+2}, {XCH[role]}, v{t+3}
    v_add_u32 v{t+3}, {XCH["B" if role == "A" else "A"]}, v{t+3}
    """)
    for p in range(2): A(f"v_permlane32_swap_b32 v{X+4*p}, v{X+4*p+2}\nv_permlane32_swap_b32 v{X+4*p+1}, v{X+4*p+3}")
    def silu(b):
        for i in range(8): A(f"v_pk_mul_f32 {vr(E+2*i,2)}, {vr(b+2*i,2)}, {vr(C,2)}")
        for i in range(16): A(f"v_exp_f32 v{E+i}, v{E+i}")
        for i in range(8): A(f"v_pk_add_f32 {vr(E+2*i,2)}, {vr(E+2*i,2)}, {vr(C+2,2)}")
        for i in range(16): A(f"v_rcp_f32 v{E+i}, v{E+i}")
        for i in range(8): A(f"v_pk_mul_f32 {vr(b+2*i,2)}, {vr(b+2*i,2)}, {vr(E+2*i,2)}")
    if role == "B":
        A(f"v_mov_b32 v{C}, {fhex(-LOG2E)}\nv_mov_b32 v{C+1}, {fhex(-LOG2E)}\nv_mov_b32 v{C+2}, 1.0\nv_mov_b32 v{C+3}, 1.0")
        silu(give)
    else: A("s_nop 0")
    for q in range(4): A(f"ds_write_b128 v{t+2}, {vr(give+4*q,4)} offset:{q*1024}")
    if role == "B": silu(keep)
    for i in range(8): A(f"v_lshlrev_b32 v{E+2*i}, 16, v{X+i}\nv_and_b32 v{E+2*i+1}, 0xffff0000, v{X+i}")
    A("s_waitcnt lgkmcnt(0)\ns_barrier")
    for q in range(4): A(f"ds_read_b128 {vr(Y+4*q,4)}, v{t+3} offset:{q*1024}")
    for q in range(2):
        A(f"s_waitcnt lgkmcnt({2-2*q})")
        for i in range(4 * q, 4 * q + 4): A(f"v_pk_fma_f32 {vr(E+2*i,2)}, {vr(keep+2*i,2)}, {vr(Y+2*i,2)}, {vr(E+2*i,2)}")
        for i in range(4 * q, 4 * q + 4): A(f"v_cvt_pk_bf16_f32 v{X+i}, v{E+2*i}, v{E+2*i+1}")
        A(f"s_nop 1\nv_permlane32_swap_b32 v{X+4*q}, v{X+4*q+2}\nv_permlane32_swap_b32 v{X+4*q+1}, v{X+4*q+3}")
        A(f"buffer_store_dwordx4 {vr(X+4*q,4)}, v{RF['tmp']}, s[12:15], 0 offen offset:{32*q}")

def code_touch(A):
    A(f"""
    s_getpc_b64 s[6:7]
    L_pc:
    s_sub_u32 s12, s6, L_pc-{NAME}
    s_subb_u32 s13, s7, 0
    s_mov_b32 s14, L_codeend-{NAME}
    s_mov_b32 s15, 0x00020000
    v_lshlrev_b32 v212, 7, v{LANE}
    s_mul_i32 s3, s21, 24576
    buffer_load_dword v213, v212, s[12:15], s3 offen
    s_add_u32 s3, s3, 8192
    buffer_load_dword v213, v212, s[12:15], s3 offen
    s_add_u32 s3, s3, 8192
    buffer_load_dword v213, v212, s[12:15], s3 offen
    """)

def tlb_touch(A):
    L = A.label("tl")
    A(f"s_cmp_lg_u32 s21, 3\ns_cbranch_scc1 {L}")
    srd(A, 12, PT["ws"], 0, 58 * MB)
    A(f"v_lshlrev_b32 v212, 20, v{LANE}\nbuffer_load_dword v213, v212, s[12:15], 0 offen")
    srd(A, 12, PT["out"], 0, 4 * MB)
    A(f"buffer_load_dword v213, v212, s[12:15], 0 offen\n{L}:")

def mall_setup(A):
    A(f"""
    s_cmp_lt_u32 s21, 2
    s_cselect_b32 s16, s{PT['wsp']}, s{PT['wout']}
    s_cselect_b32 s17, s{PT['wsp']+1}, s{PT['wout']+1}
    s_mov_b32 s18, {112*128}
    s_cmov_b32 s18, {128*128}
    s_cmp_eq_u32 s21, 3
    s_cselect_b32 s16, s{PT['wo']}, s16
    s_cselect_b32 s17, s{PT['wo']+1}, s17
    s_cmov_b32 s18, {64*128}
    s_cmp_eq_u32 s21, 1
    s_cselect_b32 s3, 256, 0
    s_add_u32 s3, s3, s2
    s_mul_i32 s3, s3, s18
    s_add_u32 s16, s16, s3
    s_addc_u32 s17, s17, 0
    s_mov_b32 s19, 0x00020000
    v_lshlrev_b32 v210, 7, v{LANE}
    s_mov_b32 s30, 0
    s_mul_i32 s3, s36, {magic_div(OPT.get('mp', 5), 31)[0]}
    s_lshr_b32 s3, s3, {magic_div(OPT.get('mp', 5), 31)[1]}
    s_mul_i32 s3, s3, {OPT.get('mp', 5)}
    s_sub_u32 s43, s36, s3
    s_add_u32 s43, s43, {OPT.get('m0', 1)}
    """)

def mall_warm(A):
    L = A.label("mw"); t = RB["tmp"]
    A(f"s_cmp_ge_u32 s24, 2\ns_cbranch_scc1 {L}\ns_lshl_b32 s3, s2, 2\ns_add_u32 s3, s3, s21\nv_lshlrev_b32 v{t}, 7, v{LANE}")
    A(f"s_lshl_b32 s6, s3, 14\nbuffer_load_dword v{t+1}, v{t}, s[12:15], s6 offen\ns_add_u32 s6, s6, 8192\nbuffer_load_dword v{t+1}, v{t}, s[12:15], s6 offen")
    srd(A, 16, PT["wout"], 0, 1792 * 2048)
    A(f"v_min_u32 v{t+2}, {55*128}, v{t}\ns_mul_i32 s6, s3, {56*128}\nbuffer_load_dword v{t+1}, v{t+2}, s[16:19], s6 offen")
    srd(A, 16, PT["wo"], 0, 1024 * 2048)
    A(f"v_min_u32 v{t+2}, {31*128}, v{t}\ns_lshl_b32 s6, s3, 12\nbuffer_load_dword v{t+1}, v{t+2}, s[16:19], s6 offen\n{L}:")

def z_touch(A):
    t = RB["tmp"]
    A(f"""
    v_min_u32 v{t}, 55, v{LANE}
    v_lshlrev_b32 v{t}, 7, v{t}
    s_lshl_b32 s3, s23, 5
    s_add_u32 s3, s3, s36
    s_mul_i32 s3, s3, 28672
    s_add_u32 s3, s3, s28
    buffer_load_dword v{t+1}, v{t}, s[8:11], s3 offen {SC}
    """)
    return 1

def f_touch_w(A, role):
    t = RF["tmp"]; n = 64 if role == "A" else 56; rows = 256 if role == "A" else 448
    A(f"""
    v_min_u32 v{t}, {n-1}, v{LANE}
    v_lshlrev_b32 v{t}, 11, v{t}
    s_and_b32 s3, s100, 3
    s_mul_i32 s3, s3, {rows}
    s_mul_i32 s6, s21, {rows//4}
    s_add_u32 s3, s3, s6
    s_lshl_b32 s3, s3, 11
    s_lshl_b32 s6, s101, 7
    s_add_u32 s3, s3, s6
    buffer_load_dword v{t+1}, v{t}, s[12:15], s3 offen
    """)
    if role == "B": A(f"s_add_u32 s3, s3, {56*2048}\nbuffer_load_dword v{t+1}, v{t}, s[12:15], s3 offen")

def f_touch_a(A, role):
    t = RF["tmp"]; n = 64 if role == "A" else 56; blk = 8192 if role == "A" else 14336
    A(f"""
    v_min_u32 v{t}, {n-1}, v{LANE}
    v_lshlrev_b32 v{t}, 7, v{t}
    s_lshl_b32 s3, s100, 2
    s_add_u32 s3, s3, s21
    s_lshl_b32 s3, s3, 3
    s_and_b32 s6, s101, 7
    s_add_u32 s3, s3, s6
    s_mul_i32 s3, s3, {blk}
    buffer_load_dword v{t+1}, v{t}, s[8:11], s3 offen {SC}
    """)
    if role == "B": A(f"s_add_u32 s3, s3, 7168\nbuffer_load_dword v{t+1}, v{t}, s[8:11], s3 offen {SC}")
    return 1 if role == "A" else 2

def prio(A, key):
    if key in OPT: A(f"s_setprio {OPT[key]}")

P_SP_DONE = 2 + 1 + 1 + 30 + 1

def gen(A):
    kstart(A, NAME)
    start(A)
    stamp(A, 0)
    if common.PROFILE: A("s_memtime s[86:87]\ns_waitcnt lgkmcnt(0)\ns_mov_b32 s84, s86")
    A("s_cmp_ge_u32 s20, 4\ns_cbranch_scc1 L_roleB")
    if OPT.get("x_nostat") != 2: ln_loads(A)
    else: srd(A, 8, PT["x"], 0, 4 * MB)
    g1_setup_A(A)
    for par in (1, 0, 1, 0, 1):
        for g in g1_dma("A", par, GA, pro=True): A.extend(g)
    if not OPT.get("x_nostat"): ln_stats(A, 20)
    else: A("s_mov_b32 s31, 1")
    g1_main(A, "A", GA, 96, 1)
    stamp(A, 2)
    prio(A, "pa1")
    epi_A(A)
    stamp(A, 3)
    handoff(A, 42, 43, 8, attn_setup, tag='k')
    stamp(A, 4)
    prio(A, "pa1b")
    if not OPT.get("x_noattn"): attn_main(A)
    stamp(A, 6)
    prio(A, "pa2")
    attn_finish(A)
    handoff(A, 42, 43, 32, lambda A: f_setup(A, "A"), tag='o', after=lambda A: f_wpre(A, "A"), presync=True)
    stamp(A, 7)
    f_main(A, "A")
    stamp(A, 9)
    f_epi(A, "A")
    fin_prof(A)
    A("s_endpgm\nL_roleB:")
    if OPT.get("ct", 1): code_touch(A)
    if OPT.get("tlb"): tlb_touch(A)
    g1_setup_B(A)
    for s in range(4):
        for g in g1_dma("B", 0, GB, pro=True): A.extend(g)
    n = w_touch(A)
    g1_setup_B2(A)
    mall_setup(A)
    g1_main(A, "B", GB, 112, n)
    stamp(A, 2)
    prio(A, "pb1")
    epi_B(A)
    stamp(A, 4)
    handoff(A, 42, 43, 32, sp_setup, tag='z', after=sp_wpre)
    stamp(A, 5)
    prio(A, "pb2")
    sp_main(A)
    stamp(A, 7)
    prio(A, "pb2e")
    sp_epi(A)
    handoff(A, 42, 43, 16, lambda A: f_setup(A, "B"), tag='u', after=lambda A: f_wpre(A, "B"), presync=True)
    prio(A, "pb3")
    f_main(A, "B")
    A(f"v_mov_b32 v241, {NONCE + 4}\nv_mov_b32 v243, s31\nds_write_b32 v241, v243")
    stamp(A, 9)
    f_epi(A, "B")
    fin_prof(A, "B")
    A("L_end:\ns_endpgm")
    A.extend(COLD)
    A("L_codeend:")
    A.raw(kd(NAME, 256, 256, 102))

def fin_prof(A, role="A"):
    if not common.PROFILE: return
    if OPT.get("dbgt"):
        A("s_waitcnt vmcnt(0)"); stamp(A, 10)
        srd(A, 88, PT["dbg"], 0, 256)
        A("v_mov_b32 v251, 0\ns_mov_b64 exec, 1")
        for slot, k in (enumerate((0, 1, 2, 4, 5, 6, 7, 9, 10), 1) if role == "A" else enumerate((4, 5, 7, 8, 9), 10)):
            A(f"s_sub_u32 s92, s{64+2*k}, s31\ns_add_u32 s92, s92, 1000\nv_mov_b32 v252, s92\nbuffer_atomic_umax v252, v251, s[88:91], 0 offen offset:{4*slot}")
        A("s_mov_b64 exec, -1")
        return
    A("s_mov_b32 s43, s84\ns_waitcnt vmcnt(0)")
    stamp(A, 10)
    A("s_mov_b32 s86, s43\ns_memtime s[42:43]\ns_waitcnt lgkmcnt(0)")
    srd(A, 88, 4, PROF, 256 * 8 * 64)
    A("s_lshl_b32 s92, s2, 3\ns_add_u32 s92, s92, s20\ns_lshl_b32 s92, s92, 6\nv_mov_b32 v251, s92")
    for k in range(12): A(f"v_mov_b32 v252, s{64+2*k}\nbuffer_store_dword v252, v251, s[88:91], 0 offen offset:{4*k}")
    A("v_mov_b32 v252, s42\nbuffer_store_dword v252, v251, s[88:91], 0 offen offset:48")
    if OPT.get("itr"):
        srd(A, 88, 4, PROF + 131072, 256 * 8 * 256)
        A(f"s_lshl_b32 s92, s92, 2\nv_lshlrev_b32 v251, 2, v{LANE}\nbuffer_store_dword v244, v251, s[88:91], s92 offen")

if __name__ == "__main__":
    out = sys.argv[1]
    common.PROFILE = "--prof" in sys.argv
    for a in sys.argv[2:]:
        if "=" in a:
            k, v = a.split("="); OPT[k] = int(v)
    A = Asm()
    A.raw("; out = x + MHA(LN x) * silu(gMLP(LN x)) as one persistent dataflow kernel (one 8-wave workgroup per CU); generated by gen/fused.py\n"
          f"; @launch grid=(256,1,1) block=(512,1,1) lds={LDS}\n" '.amdgcn_target "amdgcn-amd-amdhsa--gfx950"\n.text')
    gen(A)
    t = A.text()
    errs = check_hazards(t)
    for e in errs[:30]: print("HAZARD", e, file=sys.stderr)
    open(out, "w").write(t)
```
